```python
import torch

def _softmax(x, axis=-1):
    return torch.softmax(x, dim=axis)
def _gelu(x):
    return torch.nn.functional.gelu(x, approximate="tanh")
def _silu(x):
    return torch.nn.functional.silu(x)
def _sigmoid(x):
    return torch.sigmoid(x)
def _layernorm(x, axis=-1, eps=1e-5):
    m = x.mean(dim=axis, keepdim=True)
    v = x.var(dim=axis, keepdim=True, unbiased=False)
    return (x - m) / torch.sqrt(v + eps)
def _scatter_add(tgt, idx, src, axis=0):
    return tgt.clone().index_add_(axis, idx, src)
def _segment_sum(src, seg, n):
    out = torch.zeros((n,) + src.shape[1:], dtype=src.dtype)
    return out.index_add_(0, seg, src)
def _pad(x, pw):
    flat = tuple(v for pair in reversed(pw) for v in pair)
    return torch.nn.functional.pad(x, flat)

kernel_name = 'standalone__modern_conv_block_convnext_v2__vision'

def setup_inputs():

    _w = (lambda a: (lambda t: t.to(torch.bfloat16) if t.is_floating_point() else t)(torch.as_tensor(a)))
    H = W = 512
    C = 96
    K = 3
    return {
        "x": _w((lambda *s: torch.randn(*s, dtype=torch.bfloat16) * 0.05)(1, H, W, C)),
        "dw": _w((lambda *s: torch.randn(*s, dtype=torch.bfloat16) * 0.05)(K, K, C)),
        "w1": _w((lambda *s: torch.randn(*s, dtype=torch.bfloat16) * 0.05)(C, 4 * C)),
        "w2": _w((lambda *s: torch.randn(*s, dtype=torch.bfloat16) * 0.05)(4 * C, C)),
        "grn_gamma": _w((lambda *s: torch.randn(*s, dtype=torch.bfloat16) * 0.05)(4 * C)),
        "grn_beta": _w((lambda *s: torch.randn(*s, dtype=torch.bfloat16) * 0.05)(4 * C)),
    }

def reference(x, dw, w1, w2, grn_gamma, grn_beta):
    B, H, W, C = x.shape
    K = dw.shape[0]
    pad = K // 2
    xp = _pad(x, ((0,0),(pad,pad),(pad,pad),(0,0)))
    out = torch.zeros_like(x)
    for i in range(K):
        for j in range(K):
            out = out + xp[:, i:i+H, j:j+W, :] * dw[i, j][None, None, None, :]
    h = _layernorm(out, axis=-1)
    h = torch.einsum('bhwc,ce->bhwe', h, w1)
    h = _gelu(h)
    gx = torch.sqrt((h * h).sum(axis=(1, 2), keepdims=True) + 1e-6)
    nx = gx / (gx.mean(axis=-1, keepdims=True) + 1e-6)
    h = grn_gamma * (h * nx) + grn_beta + h
    h = torch.einsum('bhwe,ec->bhwc', h, w2)
    return x + h
```

```python
class V:
    __slots__ = ("b", "n")

    def __init__(self, b, n=1):
        assert 0 <= b and b + n <= 256, (b, n)
        if n > 1:
            assert b % 2 == 0, ("unaligned tuple", b, n)
        self.b, self.n = b, n

    def __str__(self):
        return f"v{self.b}" if self.n == 1 else f"v[{self.b}:{self.b + self.n - 1}]"

    def regs(self):
        return range(self.b, self.b + self.n)

    def sub(self, off, n=1):
        assert off + n <= self.n
        return V(self.b + off, n)


class S:
    __slots__ = ("b", "n")

    def __init__(self, b, n=1):
        self.b, self.n = b, n

    def __str__(self):
        return f"s{self.b}" if self.n == 1 else f"s[{self.b}:{self.b + self.n - 1}]"

    def sub(self, off, n=1):
        return S(self.b + off, n)


TRANS = ("v_exp_f32", "v_rcp_f32", "v_rsq_f32", "v_sqrt_f32", "v_log_f32",
         "v_exp_f16", "v_rcp_f16", "v_exp_f16_sdwa", "v_rcp_f16_sdwa")
NEG = -10 ** 9


class Prog:
    def __init__(self):
        self.lines = []
        self.pos = 0
        self.w_valu = [NEG] * 256
        self.w_trans = [NEG] * 256
        self.w_mfma = [(NEG, None)] * 256
        self.c_read = [NEG] * 256
        self.st_read = [NEG] * 256
        self.p_lgkm = [None] * 256
        self.p_vm = [None] * 256
        self.lgkm_seq = 0
        self.lgkm_done = 0
        self.vm_seq = 0
        self.vm_done = 0
        self.sgpr_valu_w = {}
        self.m0_w = NEG
        self.stats = {}
        self.lds_age = 0
        self.lds_pos = {}

    def raw(self, text, states=1):
        self.lines.append(text)
        self.pos += states
        k = text.split()[0]
        self.stats[k] = self.stats.get(k, 0) + 1

    def comment(self, text):
        self.lines.append("; " + text)

    def nop(self, n):
        while n > 0:
            k = min(n, 16)
            self.raw(f"s_nop {k - 1}", k)
            n -= k

    def _need(self, target):
        if target > self.pos:
            self.nop(target - self.pos)

    def wait(self, lgkm=None, vm=None):
        parts = []
        if vm is not None and vm > self.vm_done:
            n = min(self.vm_seq - vm, 63)
            parts.append(f"vmcnt({n})")
            self.vm_done = self.vm_seq - n
        if lgkm is not None and lgkm > self.lgkm_done:
            if self.lds_age:
                while lgkm < self.lgkm_seq and self.lds_pos.get(lgkm + 1, self.pos) <= self.pos - self.lds_age:
                    lgkm += 1
            n = min(self.lgkm_seq - lgkm, 15)
            parts.append(f"lgkmcnt({n})")
            self.lgkm_done = self.lgkm_seq - n
        if parts:
            self.raw("s_waitcnt " + " ".join(parts))

    def wait_all(self, lgkm=True, vm=True):
        self.wait(self.lgkm_seq if lgkm else None, self.vm_seq if vm else None)

    def sync(self):
        self.raw("s_waitcnt vmcnt(0) lgkmcnt(0)")
        self.lgkm_done = self.lgkm_seq
        self.vm_done = self.vm_seq
        last = max(p for p, _ in self.w_mfma)
        self._need(max(last + 1 + 12, self.pos + 5))

    def _mem_deps(self, regs):
        lg = vm = None
        for r in regs:
            if self.p_lgkm[r] is not None:
                lg = max(lg or 0, self.p_lgkm[r])
            if self.p_vm[r] is not None:
                vm = max(vm or 0, self.p_vm[r])
        self.wait(lg, vm)

    @staticmethod
    def _vregs(ops):
        out = []
        for o in ops:
            if isinstance(o, V):
                out.extend(o.regs())
        return out

    def _sgpr_from_valu(self, ops, states):
        for o in ops:
            if isinstance(o, S):
                for r in range(o.b, o.b + o.n):
                    if r in self.sgpr_valu_w:
                        self._need(self.sgpr_valu_w[r] + 1 + states)
            elif o == "vcc" and "vcc" in self.sgpr_valu_w:
                self._need(self.sgpr_valu_w["vcc"] + 1 + states)

    def valu(self, op, dst, *src, mods="", rmw=False, extra_w=()):
        rd = self._vregs(src)
        wr = self._vregs([dst] + list(extra_w))
        if rmw:
            rd += wr
        self._mem_deps(rd + wr)
        trans = op in TRANS
        t = self.pos
        for r in rd + wr:
            t = max(t, self.w_mfma[r][0] + 1 + 12)
        for r in wr:
            t = max(t, self.c_read[r] + 1 + 7, self.st_read[r] + 1 + 2)
        if not trans or rmw:
            for r in rd:
                t = max(t, self.w_trans[r] + 1 + 1)
        if "permlane" in op or "dpp" in op:
            for r in rd:
                t = max(t, self.w_valu[r] + 1 + 2)
        if "readfirstlane" in op or "readlane" in op:
            for r in rd:
                t = max(t, self.w_valu[r] + 1 + 1)
        self._need(t)
        self._sgpr_from_valu(src, 2)
        txt = f"{op} {dst}" + "".join(f", {s}" for s in src) + (" " + mods if mods else "")
        p = self.pos
        self.raw(txt)
        for r in wr:
            self.w_valu[r] = p
            if trans:
                self.w_trans[r] = p
        if isinstance(dst, S):
            for r in range(dst.b, dst.b + dst.n):
                self.sgpr_valu_w[r] = p
        elif dst == "vcc":
            self.sgpr_valu_w["vcc"] = p

    def swap32(self, a, b):
        self.valu("v_permlane32_swap_b32", a, b, rmw=True, extra_w=(b,))

    def swap16(self, a, b):
        self.valu("v_permlane16_swap_b32", a, b, rmw=True, extra_w=(b,))

    def hi16(self, op, dst, src):
        self.valu(op + "_sdwa", dst, src, mods="dst_sel:WORD_1 dst_unused:UNUSED_PRESERVE src0_sel:WORD_1", rmw=True)

    def mfma(self, d, a, b, c, ty="bf16"):
        rd_ab = self._vregs([a, b])
        rd_c = self._vregs([c])
        wr = list(d.regs())
        self._mem_deps(rd_ab + rd_c + wr)
        t = self.pos
        for r in rd_ab + rd_c:
            t = max(t, self.w_valu[r] + 1 + 2)
        for r in rd_ab:
            t = max(t, self.w_mfma[r][0] + 1 + 12)
        key = (d.b, d.n)
        for r in rd_c:
            p, k = self.w_mfma[r]
            if k != (c.b, c.n):
                t = max(t, p + 1 + 10)
        for r in wr:
            p, k = self.w_mfma[r]
            if not (isinstance(c, V) and k == (c.b, c.n) == key):
                t = max(t, p + 1 + 10)
            t = max(t, self.st_read[r] + 1 + 2)
        self._need(t)
        p = self.pos
        short = 4 if d.n == 4 else 0
        name = ("v_mfma_f32_16x16x32_" if d.n == 4 else "v_mfma_f32_32x32x16_") + ty
        self.raw(f"{name} {d}, {a}, {b}, {c}")
        for r in wr:
            self.w_mfma[r] = (p - short, key)
        for r in rd_c:
            self.c_read[r] = p - short

    def _mem_issue(self, rd, wr):
        self._mem_deps(rd + wr)
        t = self.pos
        for r in rd + wr:
            t = max(t, self.w_mfma[r][0] + 1 + 12)
        for r in rd:
            t = max(t, self.w_trans[r] + 1 + 1)
        for r in wr:
            t = max(t, self.c_read[r] + 1 + 7, self.st_read[r] + 1 + 1)
        self._need(t)

    def ds_read(self, op, dst, addr, off=0):
        assert 0 <= off < 65536, off
        self._mem_issue([addr.b], list(dst.regs()))
        self.raw(f"{op} {dst}, {addr}" + (f" offset:{off}" if off else ""))
        self.lgkm_seq += 1
        self.lds_pos[self.lgkm_seq] = self.pos
        for r in dst.regs():
            self.p_lgkm[r] = self.lgkm_seq
        return self.lgkm_seq

    def ds_write(self, op, addr, data, off=0):
        assert 0 <= off < 65536, off
        self._mem_issue([addr.b] + list(data.regs()), [])
        p = self.pos
        self.raw(f"{op} {addr}, {data}" + (f" offset:{off}" if off else ""))
        for r in data.regs():
            self.st_read[r] = p
        self.lgkm_seq += 1
        return self.lgkm_seq

    def _vm_text(self, op, data, voff, srd, soff, off, flags):
        assert 0 <= off < 4096, off
        self._sgpr_from_valu([srd, soff], 5)
        t = op + " " + (f"{data}, " if data is not None else "") + f"{voff}, {srd}, {soff} offen"
        if off:
            t += f" offset:{off}"
        if flags:
            t += " " + flags
        return t

    def buf_load(self, op, dst, voff, srd, soff=0, off=0, flags=""):
        self._mem_issue([voff.b], list(dst.regs()))
        self.raw(self._vm_text(op, dst, voff, srd, soff, off, flags))
        self.vm_seq += 1
        for r in dst.regs():
            self.p_vm[r] = self.vm_seq
        return self.vm_seq

    def buf_store(self, op, data, voff, srd, soff=0, off=0, flags="", ret=False):
        self._mem_issue([voff.b] + list(data.regs()), [])
        txt = self._vm_text(op, data, voff, srd, soff, off, flags)
        p = self.pos
        self.raw(txt)
        self.vm_seq += 1
        for r in data.regs():
            self.st_read[r] = p
            if ret:
                self.p_vm[r] = self.vm_seq
        return self.vm_seq

    def dma(self, voff, srd, soff=0, off=0, flags=""):
        self._mem_issue([voff.b], [])
        self._need(self.m0_w + 1 + 1)
        self.raw(self._vm_text("buffer_load_dwordx4", None, voff, srd, soff, off, (flags + " lds").strip()))
        self.vm_seq += 1
        return self.vm_seq

    def salu(self, op, *ops):
        self._sgpr_from_valu(ops, 2)
        p = self.pos
        self.raw(f"{op} " + ", ".join(str(o) for o in ops))
        if ops and ops[0] == "m0":
            self.m0_w = p

    def label(self, name):
        self.sync()
        self.lines.append(f"{name}:")

    def branch(self, op, name):
        self.sync_soft()
        self.raw(f"{op} {name}")

    def sync_soft(self):
        self.raw("s_waitcnt vmcnt(0) lgkmcnt(0)")
        self.lgkm_done = self.lgkm_seq
        self.vm_done = self.vm_seq
        last = max(p for p, _ in self.w_mfma)
        self._need(max(last + 1 + 12, self.pos + 5))

    def cond_begin(self):
        self._cond = (self.vm_seq, self.vm_done, self.lgkm_seq, self.lgkm_done)
        self._cond_pos = self.pos

    def cond_end(self):
        vs, vd, ls, ld = self._cond
        for arr, lim in ((self.p_vm, vs), (self.p_lgkm, ls)):
            for r in range(256):
                if arr[r] is not None and arr[r] > lim:
                    arr[r] = lim
        self.vm_done = min(vd, vs - 1) if self.vm_seq > vs else vd
        self.lgkm_done = min(ld, ls - 1) if self.lgkm_seq > ls else ld
        self.vm_seq, self.lgkm_seq = vs, ls
        shift = self.pos - self._cond_pos
        for arr in (self.w_valu, self.w_trans, self.c_read, self.st_read):
            for r in range(256):
                if arr[r] < self._cond_pos:
                    arr[r] += shift
        for r in range(256):
            if self.w_mfma[r][0] < self._cond_pos:
                self.w_mfma[r] = (self.w_mfma[r][0] + shift, self.w_mfma[r][1])
        for k, v in self.sgpr_valu_w.items():
            if v < self._cond_pos:
                self.sgpr_valu_w[k] = v + shift
        if self.m0_w < self._cond_pos:
            self.m0_w += shift
        return vs

    def barrier(self):
        self.raw("s_barrier")

    def text(self):
        return "\n".join(self.lines) + "\n"
```

```python
from asmgen import *


def merge(a, b):
    ca, cb = sum(x[0] for x in a) or 1, sum(x[0] for x in b) or 1
    out, i, j, xa, xb = [], 0, 0, 0.0, 0.0
    while i < len(a) or j < len(b):
        if j >= len(b) or (i < len(a) and xa / ca <= xb / cb):
            out.append(a[i]); xa += a[i][0]; i += 1
            while i < len(a) and a[i][0] == 0:
                out.append(a[i]); i += 1
        else:
            out.append(b[j]); xb += b[j][0]; j += 1
            while j < len(b) and b[j][0] == 0:
                out.append(b[j]); j += 1
    return out


def seg():
    return dict(pre=[], mf=[], fill=[], vm=[], pb=[], end=[])


def rd128(addr, off, ring=None, hook=None):
    return dict(parts=[("ds_read_b128", addr, off, 0, 4)], ring=ring, hook=hook)


class Engine:
    def __init__(self, opt):
        self.o = opt
        self.p = Prog()
        self.gq = []
        self.prio = 0

    def setprio(self, lv):
        self.prio = lv
        self.p.raw(f"s_setprio {lv}")

    def flush(self):
        while self.gq:
            self.gq.pop(0)()

    def run(self, segs, ring):
        p = self.p
        reads, cnt, last = [], {}, {}
        n_it = 0
        for s in segs:
            for it in s['mf']:
                it['ri'], it['id'] = [], n_it
                for rd in it['reads']:
                    rg = rd['ring'] or s.get('ring') or ring
                    k = cnt.get(id(rg), 0)
                    cnt[id(rg)] = k + 1
                    buf = rg[k % len(rg)]
                    it['ri'].append(len(reads))
                    reads.append((rd, buf, last.get(buf.b, s.get('free_from', {}).get(buf.b, -1))))
                    last[buf.b] = n_it
                n_it += 1
        nxt = [0]

        def issue(cur, lim=None):
            while nxt[0] < (len(reads) if lim is None else lim) and reads[nxt[0]][2] < cur:
                rd, buf, _ = reads[nxt[0]]
                if rd.get('after') is not None and not rd['after']():
                    assert lim is None, "fragment read needed before its gate"
                    break
                if rd['hook']:
                    rd['hook']()
                for op, addr, off, so, n in rd['parts']:
                    p.ds_read(op, buf.sub(so, n), addr() if callable(addr) else addr, off)
                nxt[0] += 1

        issue(0)
        for s in segs:
            for f in s['pre']:
                f()
            fill = list(s['fill'])
            total = sum(x[0] for x in fill)
            wsum = sum(it.get('w', 1.0) * (len(it['emit']) if isinstance(it['emit'], list) else 1) for it in s['mf'])
            head, tail = s.get('head', 0), s.get('tail', 0)
            per = max(0.0, total - head - tail) / wsum if wsum else 0.0
            budget = head
            nfill = len(fill)
            vm = list(s['vm'])
            nvm = len(vm)
            nm = len(s['mf'])

            done = set()

            def step():
                nonlocal budget
                x = fill.pop(0)
                assert len(x) < 3 or x[2] in done, "fill entry forced ahead of the matrix item it must follow"
                x[1]()
                budget -= x[0]

            def drain():
                while fill and budget >= fill[0][0] and (len(fill[0]) < 3 or fill[0][2] in done):
                    step()

            drain()
            for k_it, it in enumerate(s['mf']):
                while nfill - len(fill) < it.get('need', 0):
                    step()
                if it['ri']:
                    issue(it['id'], it['ri'][-1] + 1)
                bufs = [reads[i][1] for i in it['ri']]
                emits = it['emit'] if isinstance(it['emit'], list) else [it['emit']]
                for k, e in enumerate(emits):
                    after = s.get('cl', self.o.get('cl', 2)) == 1
                    if after:
                        e(*bufs)
                    if k == 0:
                        p._mem_deps([r for b in bufs for r in b.regs()])
                        while vm and (nvm - len(vm)) * nm <= k_it * nvm:
                            vm.pop(0)()
                        if k_it % s.get('rg', self.o.get('rg', 1)) == 0:
                            issue(it['id'])
                    if k == 0 and k_it % s.get('rg', self.o.get('rg', 1)) == 0:
                        self.flush()
                    if not after:
                        e(*bufs)
                    if k == len(emits) - 1:
                        done.add(it.get('tag'))
                        if it.get('post'):
                            it['post']()
                    budget += per * it.get('w', 1.0)
                    drain()
            if vm and not s['mf']:
                st = max(1, len(fill) // (len(vm) + 1))
                for k in range(len(vm), 0, -1):
                    fill.insert(min(k * st, len(fill)), (0, vm[k - 1]))
                vm = []
            for f in vm:
                f()
            while fill:
                step()
            if s['pb']:
                p.raw("s_setprio 3")
                for f in s['pb']:
                    f()
                p.raw(f"s_setprio {self.prio}")
            for f in s['end']:
                f()
        self.flush()
        assert nxt[0] == len(reads)


def insert_at(segs, pos, fn):
    k = int(pos)
    s = segs[k]
    fr = pos - k
    if fr == 0:
        s['pre'].append(fn)
        return
    tot = sum(x[0] for x in s['fill'])
    lo = max([it.get('need', 0) for it in s['mf']] + [0])
    x = 0
    for i, f in enumerate(s['fill']):
        if x >= fr * tot and i >= lo and f[0] > 0:
            s['fill'].insert(i, (0, fn))
            return
        x += f[0]
    s['end'].append(fn)
```

```python
from engine import *


class Gelu:
    def __init__(self, eng, W, sK, sM, tab=0, bf=False):
        self.bf = bf
        self.e, self.W, self.sK, self.sM, self.tab = eng, W, sK, sM, tab

    def treg(self, k):
        n = len(self.W)
        return [self.W[n - 1 - 3 * k - j] for j in range(3)]

    def cvts(self, y, nD):
        p = self.e.p
        assert 2 * nD + 3 * (8 - nD) <= len(self.W)
        d = [(4, lambda i=i: p.valu("v_cvt_pkrtz_f16_f32", self.W[2 * i + 1], y[2 * i], y[2 * i + 1])) for i in range(nD)]
        return d + [(4, lambda i=i: p.valu("v_cvt_pk_f16_f32", self.treg(i - nD)[0], y[2 * i], y[2 * i + 1])) for i in range(nD, 8)]

    def front(self, nD, grp=2, stat=False):
        p, e = self.e.p, self.e
        R = [self.treg(k) for k in range(8 - nD)]
        a = [(4, lambda P=P, T=T: p.valu("v_pk_fma_f16", T, P, P, self.sK)) for P, T, E in R]
        a += [(4, lambda P=P, T=T: p.valu("v_pk_mul_f16", T, P, T)) for P, T, E in R]
        d = []
        for i0 in range(0, nD, grp):
            g = [(self.W[2 * i], self.W[2 * i + 1]) for i in range(i0, min(nD, i0 + grp))]
            d += [(4, lambda b=b: p.valu("v_and_b32", b, self.sM, b)) for a_, b in g]
            for a_, b in g:
                d.append((4, lambda a_=a_, b=b: p.valu("v_bfe_u32", a_, b, 2, 14)))
                d.append((0, lambda a_=a_: e.gq.append(lambda: p.ds_read("ds_read_u16_d16_hi" if stat and self.bf else "ds_read_u16_d16", a_, a_, self.tab))))
            for a_, b in g:
                d.append((4, lambda b=b: p.valu("v_lshrrev_b32", b, 18, b)))
                d.append((0, lambda b=b: e.gq.append(lambda: p.ds_read("ds_read_u16_d16_hi", b, b, self.tab))))
        return a, d

    def mid(self, nD):
        p = self.e.p
        R = [self.treg(k) for k in range(8 - nD)]
        a = [(8, lambda T=T, E=E: p.valu("v_exp_f16", E, T)) for P, T, E in R]
        a += [(8, lambda T=T, E=E: p.hi16("v_exp_f16", E, T)) for P, T, E in R]
        a += [(4, lambda E=E: p.valu("v_pk_add_f16", E, E, "1.0", mods="op_sel_hi:[1,0]")) for P, T, E in R]
        a += [(8, lambda T=T, E=E: p.valu("v_rcp_f16", T, E)) for P, T, E in R]
        a += [(8, lambda T=T, E=E: p.hi16("v_rcp_f16", T, E)) for P, T, E in R]
        return a

    def back_pack(self, G, nD):
        p = self.e.p
        a = [(4, lambda k=k: p.valu("v_pk_mul_f16", G[nD + k], self.treg(k)[0], self.treg(k)[1])) for k in range(8 - nD)]
        d = [(4, lambda i=i: (self.e.flush(), p.valu("v_or_b32", G[i], self.W[2 * i], self.W[2 * i + 1]))) for i in range(nD)]
        return a, d

    def back_stat(self, sq, sq2, nD, first, mix=False):
        p = self.e.p
        R = [self.treg(k) for k in range(8 - nD)]
        a = [(4, lambda P=P, T=T: p.valu("v_pk_mul_f16", P, P, T)) for P, T, E in R]
        st = {'f': first}

        def acc(r, h, one=False):
            c = 0 if st['f'] else sq
            st['f'] = False
            if one:
                p.valu("v_fma_mix_f32", sq, r, "1.0", c, mods=f"op_sel:[{h},0,0] op_sel_hi:[1,0,0]")
            else:
                p.valu("v_fma_mix_f32", sq, r, r, c, mods=f"op_sel:[{h},{h},0] op_sel_hi:[1,1,0]")
        if mix:
            a += [(4, lambda P=P, h=h: acc(P, h)) for P, T, E in R for h in range(2)]
        elif R:
            A = R[0][2]
            a += [(4, lambda k=k: p.valu("v_pk_fma_f16", A, R[k][0], R[k][0], A) if k else p.valu("v_pk_mul_f16", A, R[k][0], R[k][0])) for k in range(len(R))]
            a += [(4, lambda h=h: acc(A, h, True)) for h in range(2)]
        def accd(r):
            if st['f']:
                p.valu("v_mul_f32", sq, r, r)
            else:
                p.valu("v_fmac_f32", sq, r, r, rmw=True)
            st['f'] = False
        d = [(4, lambda i=i: (self.e.flush(), accd(self.W[i]) if self.bf else acc(self.W[i], i % 2))) for i in range(2 * nD)]
        return a, d


def fix_flush(eng, fill, keep):
    return [(c, eng.flush if f == 'flush' else f) for c, f in fill if keep or f != 'flush']


def split_cost(stream, c):
    x = 0
    for k, (cc, *_) in enumerate(stream):
        if x >= c:
            return stream[:k], stream[k:]
        x += cc
    return stream, []


def regs(*vs):
    return [V(r) for v in vs for r in v.regs()]
```

```python
import math
import struct
import sys

from gelu import *

NAME = 'standalone__modern_conv_block_convnext_v2__vision_kernel'


def f2u(x):
    return struct.unpack('<I', struct.pack('<f', x))[0]


C2 = -2 * math.sqrt(2 / math.pi) * math.log2(math.e)
C1 = C2 * 0.044715
KH = 0x44EA
GK = 4.9140625
GA = C2 / GK
GC = C1 / GA ** 3

H0, H1 = 0x1F00, 0x3F00
BT0, BT1 = H0, H1
CNT = H1 + 128
W1F = 16384
W2R = 90112
RP = 6656
DIAG = W2R + 10 * RP
TABO = 7168
LDS_BYTES = 163840
WS_TOT = 96 * 256 * 16
WS_STAMP = 1 << 20
WS_LN = 4 << 20
WS_BYTES = 80 << 20
OOB_V = 0x80000000
OOB_S = 0x40000000
X_BYTES = 512 * 512 * 96 * 2
ROWB = 512 * 192
REP = 8

sX, sOUT, sW1, sW2, sDW, sGA, sBE, sWS, sDBG = [S(4 + 4 * i, 4) for i in range(9)]
sWAVE, sX0, sY0, sT0, sT1, sT2, sT3 = [S(40 + i) for i in range(7)]
sK, sM = S(48), S(49)
sYB, sXM = S(66), S(67)
sTILE = [S(68 + i) for i in range(4)]
sPRIV = S(72)
sSTAMP = S(73)
sEX = S(74, 2)
sCNT = S(76)
sROLE = S(77)
sRET = S(78, 2)
sLNB, sW2B = S(80), S(82)
sLD = S(80, 16)
sTM = S(96, 2)
sRT = S(98, 2)


def ints(s):
    return [int(x) for x in str(s).split(',') if x not in ('', 'n')]


def flts(s):
    return [float(x) for x in str(s).split(',') if x not in ('', 'n')]


class Gen(Engine):
    def __init__(self, opt):
        super().__init__(opt)
        self.nstamp = 0
        self.ss = []
        self.nrow = self.nready = 0

    def stamp(self, tb):
        if not self.o.get('stamps'):
            return
        p = self.p
        t = V(tb, 4)
        p.raw(f"s_memtime {sTM}")
        p.raw(f"s_memrealtime {sRT}")
        p.raw("s_waitcnt lgkmcnt(0)")
        p.lgkm_done = p.lgkm_seq
        for i in range(4):
            p.valu("v_mov_b32", t.sub(i), S(sTM.b + i))
        p.raw("s_mov_b64 exec, 1")
        p.buf_store("buffer_store_dwordx4", t, self.vA[0], sWS, sSTAMP, 16 * self.nstamp)
        p.raw("s_mov_b64 exec, -1")
        p.nop(2)
        self.nstamp += 1

    def sstamp(self, where='p2'):
        if not self.o.get('stamps') or self.o.get('fine', 'p2') != where:
            return
        p = self.p
        k = len(self.ss)
        self.ss.append(S((84, 86, 88, 90, 92, 94, 50, 52, 54, 56, 58, 60, 62, 64)[k], 2))
        p.raw(f"s_memtime {self.ss[-1]}")
        p.raw("s_waitcnt lgkmcnt(0)")
        p.lgkm_done = p.lgkm_seq

    def sstamp_flush(self, tb):
        p = self.p
        t = V(tb, 4)
        for r in self.ss:
            p.valu("v_mov_b32", t.sub(0), r.sub(0))
            p.valu("v_mov_b32", t.sub(1), r.sub(1))
            p.valu("v_mov_b32", t.sub(2), sRT.sub(0))
            p.valu("v_mov_b32", t.sub(3), sRT.sub(1))
            p.raw("s_mov_b64 exec, 1")
            p.buf_store("buffer_store_dwordx4", t, self.vA[0], sWS, sSTAMP, 16 * self.nstamp)
            p.raw("s_mov_b64 exec, -1")
            p.nop(2)
            self.nstamp += 1

    def frag(self, byte, ring=None):
        return rd128(self.vA[byte >> 16], byte & 0xFFFF, ring)

    def srd(self, d, ptr, nbytes):
        p = self.p
        p.salu("s_mov_b32", d.sub(0), ptr.sub(0))
        p.salu("s_and_b32", d.sub(1), ptr.sub(1), 0xFFFF)
        p.salu("s_mov_b32", d.sub(2), nbytes)
        p.salu("s_mov_b32", d.sub(3), 0x20000)

    def row_off(self, dst, base, delta):
        p = self.p
        p.salu("s_add_i32", sT0, base, delta)
        p.salu("s_mul_i32", sT1, sT0, ROWB)
        p.salu("s_cmp_lt_u32", sT0, 512)
        p.salu("s_cselect_b32", dst, sT1, OOB_S)

    def lane_sum64(self, v, t):
        p = self.p
        for r in (8, 4, 2, 1):
            p.valu("v_add_f32_dpp", v, v, v, mods=f"row_ror:{r} row_mask:0xf bank_mask:0xf")
        p.valu("v_mov_b32", t, v)
        p.swap16(v, t)
        p.valu("v_add_f32", v, v, t)
        p.valu("v_mov_b32", t, v)
        p.swap32(v, t)
        p.valu("v_add_f32", v, v, t)

    def cond(self, cmp, a, b, label, body, skip_on=1):
        p = self.p
        p.salu(cmp, a, b)
        p.raw(f"s_cbranch_scc{skip_on} {label}")
        p.cond_begin()
        body()
        tok = p.cond_end()
        p.lines.append(f"{label}:")
        return tok

    def spin_guard(self, exit_label):
        p = self.p
        p.salu("s_cmp_eq_u32", sCNT, 0)
        p.salu("s_cbranch_scc1", exit_label)
        p.salu("s_sub_u32", sCNT, sCNT, 1)

    def lds_spin(self, a, t, off, target, tag):
        p = self.p
        p.valu("v_mov_b32", a, CNT)
        p._mem_issue([a.b], [t.b])
        p.lines.append(f"L{tag}w:")
        p.raw(f"ds_read_b32 {t}, {a} offset:{off}")
        p.raw("s_waitcnt lgkmcnt(0)")
        p.lgkm_done = p.lgkm_seq
        p.raw(f"v_readfirstlane_b32 {sT0}, {t}")
        self.spin_guard(f"L{tag}x")
        p.raw(f"s_cmp_lt_u32 {sT0}, {target}")
        p.raw(f"s_cbranch_scc0 L{tag}x")
        p.raw("s_sleep 2")
        p.raw(f"s_branch L{tag}w")
        p.lines.append(f"L{tag}x:")

    def alloc(self):
        o = self.o
        self.S3 = [V(8 * i, 8) for i in range(12)]
        self.CA = V(0, 48)
        self.LN = [V(48, 24), V(72, 24), V(96, 24), V(168, 24)]
        self.Y = V(120, 16)
        self.W = regs(V(136, 20))
        self.SQ = [V(156 + i) for i in range(12)]
        self.ls = [V(168, 2), V(170, 2), V(172, 2)]
        self.rb = [V(192 + 4 * i, 4) for i in range(6)]
        self.D0 = V(192, 16)
        self.idf = [V(208, 4), V(212, 4)]
        self.ring2 = [V(224 + 4 * i, 4) for i in range(4)]
        self.ring1 = self.ring2 + [V(216, 4), V(220, 4)]
        self.vX, self.vL = V(240), V(241)
        self.vB = [V(242), V(243), V(244)]
        self.vC = [V(245), V(246)]
        self.tq = [V(247), V(252), V(253), V(254), V(255)]
        self.vA = [V(248), V(249), V(250)]
        self.vLane = V(251)
        self.vG, self.vR, self.vBias = V(252), V(253), V(254)
        self.J2 = ints(o.get('j2', '5,6,7,8,9,10,11'))
        self.S2 = {j: V(168 + 8 * k, 8) for k, j in enumerate(self.J2)}
        assert len(self.J2) <= 7
        self.ge = Gelu(self, self.W, sK, sM, 0)

    def rows_dma(self, rows, label):
        p = self.p

        def body():
            for r in rows:
                self.row_off(sT2, sYB, r)
                p.salu("s_add_u32", "m0", sXM, ((r + 1) % 10) * RP)
                p.dma(self.vX, sX, sT2, flags='nt' if r < self.o.get('ntrows', 9) else '')
        self.x_tok = self.cond("s_cmp_eq_u32", sWAVE, 7, label, body)

    def row_dma_fast(self, r):
        p = self.p
        p.salu("s_add_u32", "m0", sXM, ((r + 1) % 10) * RP)
        p.salu("s_add_u32", sYB, sYB, ROWB)
        self.nrow += 1
        self.x_tok = p.dma(self.vX, sX, sYB, flags='nt' if r < self.o.get('ntrows', 9) else '')

    def gelu_table(self, tid):
        p = self.p
        y = [V(0 + i) for i in range(8)]
        t = [V(8 + i) for i in range(8)]
        r = [V(16 + i) for i in range(8)]
        a, b = V(24), V(25)
        pn, pp = V(28, 4), V(32, 4)
        p.valu("v_lshlrev_b32", a, 6, tid)
        p.salu("s_mov_b32", sT0, f2u(GC))
        p.valu("v_mov_b32", b, f2u(GK))
        for i in range(8):
            p.valu("v_add_u32", y[i], 0x8004 + 8 * i, a)
        for i in range(8):
            p.valu("v_cvt_f32_f16", y[i], y[i])
        for i in range(8):
            p.valu("v_mul_f32", t[i], y[i], y[i])
        for i in range(8):
            p.valu("v_fma_f32", t[i], t[i], sT0, b)
        for i in range(8):
            p.valu("v_mul_f32", t[i], y[i], t[i])
        for i in range(8):
            p.valu("v_exp_f32", t[i], t[i])
        for i in range(8):
            p.valu("v_add_f32", r[i], "1.0", t[i])
        for i in range(8):
            p.valu("v_rcp_f32", r[i], r[i])
        for i in range(8):
            p.valu("v_mul_f32", y[i], y[i], r[i])
        for i in range(8):
            p.valu("v_mul_f32", t[i], t[i], y[i])
        for i in range(4):
            p.valu("v_cvt_pk_f16_f32", pn.sub(i), y[2 * i], y[2 * i + 1])
            p.valu("v_cvt_pk_f16_f32", pp.sub(i), f"-{t[2 * i]}", f"-{t[2 * i + 1]}")
        p.valu("v_lshlrev_b32", a, 4, tid)
        p.valu("v_mov_b32", b, LDS_BYTES)
        p.salu("s_movk_i32", sT0, 496)
        p.valu("v_cmp_gt_u32", "vcc", sT0, tid)
        p.valu("v_cndmask_b32", a, b, a, "vcc")
        p.ds_write("ds_write_b128", a, pp)
        p.ds_write("ds_write_b128", a, pn, 8192)

    def prologue(self):
        p, o = self.p, self.o
        p.salu("s_cmp_ge_u32", S(2), 256)
        p.raw("s_cbranch_scc1 Lend")
        p.raw(f"s_load_dwordx16 {sLD}, s[0:1], 0")
        p.raw(f"s_load_dwordx2 {sTM}, s[0:1], 64")
        if o.get('stamps'):
            p.raw("s_memtime s[68:69]")
            p.raw("s_memrealtime s[70:71]")
        lane = self.vLane
        tid = V(199)
        t = [V(120 + i) for i in range(40)]
        p.valu("v_mov_b32", tid, V(0))
        p.valu("v_and_b32", lane, 63, V(0))
        p.valu("v_lshrrev_b32", t[0], 6, V(0))
        p.valu("v_readfirstlane_b32", sWAVE, t[0])
        p.salu("s_and_b32", sT0, S(2), 7)
        p.salu("s_lshr_b32", sT1, S(2), 3)
        p.salu("s_and_b32", sX0, sT0, 3)
        p.salu("s_lshl_b32", sX0, sX0, 2)
        p.salu("s_and_b32", sT2, sT1, 3)
        p.salu("s_add_u32", sX0, sX0, sT2)
        p.salu("s_lshr_b32", sY0, sT0, 2)
        p.salu("s_lshl_b32", sY0, sY0, 3)
        p.salu("s_lshr_b32", sT2, sT1, 2)
        p.salu("s_add_u32", sY0, sY0, sT2)
        p.salu("s_lshl_b32", sX0, sX0, 5)
        p.salu("s_lshl_b32", sY0, sY0, 5)
        p.salu("s_lshl_b32", sXM, sWAVE, 6)
        p.salu("s_cmp_eq_u32", sWAVE, 6)
        p.salu("s_cselect_b32", sXM, 352, sXM)
        p.valu("v_add_u32", t[5], sXM, lane)
        p.valu("v_mul_u32_u24", t[1], 5462, t[5])
        p.valu("v_lshrrev_b32", t[1], 16, t[1])
        p.valu("v_mul_u32_u24", t[2], 12, t[1])
        p.valu("v_sub_u32", t[2], t[5], t[2])
        p.valu("v_bfe_u32", t[3], t[1], 2, 2)
        p.valu("v_xor_b32", t[2], t[2], t[3])
        p.valu("v_add_u32", t[3], sX0, t[1])
        p.valu("v_subrev_u32", t[3], 1, t[3])
        p.valu("v_mul_u32_u24", t[4], 192, t[3])
        p.valu("v_lshl_add_u32", t[4], t[2], 4, t[4])
        p.valu("v_mov_b32", self.vX, OOB_V)
        p.salu("s_movk_i32", sT0, 512)
        p.valu("v_cmp_gt_u32", "vcc", sT0, t[3])
        p.valu("v_cndmask_b32", t[4], self.vX, t[4], "vcc")
        p.valu("v_cmp_gt_u32", "vcc", 34, t[1])
        p.valu("v_cndmask_b32", self.vX, self.vX, t[4], "vcc")
        dv = [t[6], t[7]]
        di = [t[8], t[9]]
        p.valu("v_mov_b32", di[0], tid)
        p.valu("v_add_u32", di[1], 512, tid)
        p.valu("v_min_u32", di[1], 863, di[1])
        for r in range(2):
            p.valu("v_lshlrev_b32", t[10 + r], 1, di[r])
        p.salu("s_mov_b32", sYB, sY0)
        p.salu("s_lshl_b32", sXM, sXM, 4)
        p.salu("s_add_u32", sXM, sXM, W2R)
        p.raw("s_waitcnt lgkmcnt(0)")
        self.srd(sX, sLD.sub(0, 2), X_BYTES)
        self.srd(sDW, sLD.sub(2, 2), 1728)
        for r in range(2):
            dv_tok = p.buf_load("buffer_load_ushort", dv[r], t[10 + r], sDW)
        self.rows_dma(range(-1, 5), "Lskipx0")
        self.srd(sW1, sLD.sub(4, 2), 73728)
        p.valu("v_lshrrev_b32", self.vW1g, 2, lane)
        p.valu("v_mul_u32_u24", self.vW1g, 768, self.vW1g)
        p.valu("v_and_b32", t[5], 3, lane)
        p.valu("v_lshl_add_u32", self.vW1g, t[5], 4, self.vW1g)
        self.srd(sW2, sLD.sub(6, 2), 73728)
        self.srd(sGA, sLD.sub(8, 2), 768)
        self.srd(sBE, sLD.sub(10, 2), 768)
        self.srd(sOUT, sLD.sub(12, 2), X_BYTES)
        self.srd(sDBG, sLD.sub(14, 2), 256)
        self.srd(sWS, sTM, WS_BYTES)
        early = o.get('w1e', 0)
        if early:
            self.cond("s_cmp_lt_u32", sWAVE, 4, "Lnow1a", lambda: [self.w1_dma(u) for u in range(6)])
        self.gelu_table(tid)
        p.salu("s_and_b32", sT0, sWAVE, 1)
        p.salu("s_lshl_b32", sT3, sT0, 4)
        p.salu("s_add_u32", sX0, sX0, sT3)
        p.salu("s_and_b32", sT0, sWAVE, 6)
        p.salu("s_add_u32", sY0, sY0, sT0)
        p.salu("s_mul_i32", sT2, sT0, RP)
        p.salu("s_add_u32", sT2, sT2, W2R)
        m, g = t[11], t[12]
        p.valu("v_and_b32", m, 15, lane)
        p.valu("v_lshrrev_b32", g, 4, lane)
        p.valu("v_mul_u32_u24", t[2], RP, g)
        p.valu("v_add_u32", t[2], sT2, t[2])
        p.valu("v_add_u32", t[1], sT3, m)
        for dx in range(3):
            if dx:
                p.valu("v_add_u32", t[1], 1, t[1])
            p.valu("v_mul_u32_u24", t[3], 192, t[1])
            p.valu("v_bfe_u32", t[4], t[1], 2, 2)
            p.valu("v_lshl_add_u32", t[3], t[4], 4, t[3])
            p.valu("v_add_u32", self.vB[dx], t[2], t[3])
        p.salu("s_mul_i32", sPRIV, sWAVE, 9216)
        p.salu("s_add_u32", sPRIV, sPRIV, W2R)
        z = V(160, 4)
        for i in range(4):
            p.valu("v_mov_b32", z.sub(i), 0)
        p.valu("v_mov_b32", t[20], CNT)
        p.ds_write("ds_write_b128", t[20], z)
        p.valu("v_bfe_u32", t[13], m, 2, 1)
        p.valu("v_sub_u32", t[13], g, t[13])
        p.valu("v_lshrrev_b32", t[14], 3, m)
        p.valu("v_and_b32", t[15], 3, m)
        p.valu("v_lshl_add_u32", t[15], t[14], 2, t[15])
        p.valu("v_lshlrev_b32", t[16], 6, t[13])
        p.valu("v_lshl_add_u32", t[16], t[15], 3, t[16])
        p.valu("v_add_u32", t[16], DIAG, t[16])
        p.valu("v_mov_b32", t[17], LDS_BYTES)
        p.valu("v_cmp_gt_u32", "vcc", 3, t[13])
        p.valu("v_cndmask_b32", t[16], t[17], t[16], "vcc")
        p.valu("v_cmp_eq_u32", "vcc", 0, t[14])
        p.valu("v_cndmask_b32", self.vC[0], t[17], t[16], "vcc")
        p.valu("v_cndmask_b32", self.vC[1], t[16], t[17], "vcc")
        p.valu("v_lshlrev_b32", self.vL, 4, lane)
        p.valu("v_and_b32", t[13], 0x23, lane)
        p.valu("v_bfe_u32", t[14], lane, 2, 2)
        p.valu("v_lshl_add_u32", t[13], t[14], 3, t[13])
        p.valu("v_bfe_u32", t[14], lane, 4, 1)
        p.valu("v_lshl_add_u32", t[13], t[14], 2, t[13])
        p.valu("v_lshlrev_b32", self.vA[0], 4, t[13])
        p.valu("v_add_u32", self.vA[1], 0x10000, self.vA[0])
        p.valu("v_add_u32", self.vA[2], 0x20000, self.vA[0])
        p.salu("s_lshl_b32", sSTAMP, S(2), 3)
        p.salu("s_add_u32", sSTAMP, sSTAMP, sWAVE)
        p.salu("s_lshl_b32", sLNB, sSTAMP, 10)
        p.salu("s_add_u32", sLNB, sLNB, WS_LN)
        p.salu("s_mul_i32", sSTAMP, sSTAMP, 16 * o.get('stamps', 1))
        p.salu("s_add_u32", sSTAMP, sSTAMP, WS_STAMP)
        if o.get('stamps'):
            for i in range(4):
                p.valu("v_mov_b32", V(188 + i), S(68 + i))
            p.raw("s_mov_b64 exec, 1")
            p.buf_store("buffer_store_dwordx4", V(188, 4), self.vA[0], sWS, sSTAMP, 0)
            p.raw("s_mov_b64 exec, -1")
            self.nstamp += 1
        self.stamp(192)
        p.salu("s_mul_i32", sT3, sX0, 192)
        for ti in range(4):
            p.salu("s_add_u32", sT0, sY0, 8 * ti)
            p.salu("s_mul_i32", sT0, sT0, ROWB)
            p.salu("s_add_u32", sTILE[ti], sT0, sT3)
        p.salu("s_mul_i32", sW2B, sWAVE, 9216)
        p.salu("s_mov_b32", sK, KH * 0x10001)
        p.salu("s_mov_b32", sM, 0xFFF8FFF8)
        p.salu("s_mov_b32", sCNT, 400000)
        p.valu("v_lshrrev_b32", t[28], 5, lane)
        p.valu("v_lshlrev_b32", self.vW1r, 8, t[28])
        for sh, w, up in ((2, 2, 6), (4, 1, 5), (0, 1, 4), (1, 1, 3)):
            p.valu("v_bfe_u32", t[28], lane, sh, w)
            p.valu("v_lshl_add_u32", self.vW1r, t[28], up, self.vW1r)
        p.salu("s_and_b32", sT0, sWAVE, 3)
        p.salu("s_lshl_b32", sT0, sT0, 10)
        p.salu("s_add_u32", sT0, sT0, W1F)
        p.valu("v_add_u32", self.vW1r, sT0, self.vW1r)
        p.valu("v_add_u32", self.vW1w, sT0, self.vA[0])
        ad = [t[30], t[31]]
        for r in range(2):
            p.valu("v_mul_u32_u24", t[20], 683, di[r])
            p.valu("v_lshrrev_b32", t[20], 16, t[20])
            p.valu("v_mul_u32_u24", t[21], 96, t[20])
            p.valu("v_sub_u32", t[21], di[r], t[21])
            p.valu("v_mul_u32_u24", t[22], 11, t[20])
            p.valu("v_lshrrev_b32", t[22], 5, t[22])
            p.valu("v_mul_u32_u24", t[23], 3, t[22])
            p.valu("v_sub_u32", t[23], t[20], t[23])
            p.valu("v_mul_u32_u24", t[23], 12, t[23])
            p.valu("v_lshrrev_b32", t[24], 3, t[21])
            p.valu("v_add_u32", t[23], t[23], t[24])
            p.valu("v_mul_u32_u24", t[23], 192, t[23])
            p.valu("v_lshl_add_u32", t[23], t[22], 6, t[23])
            p.valu("v_and_b32", t[24], 7, t[21])
            p.valu("v_lshl_add_u32", t[23], t[24], 3, t[23])
            p.valu("v_add_u32", ad[r], DIAG, t[23])
        later = p.vm_seq - dv_tok
        if early:
            p.raw(f"s_waitcnt vmcnt({12 + later})")
            self.cond("s_cmp_eq_u32", sT0, sT0, "Lw7w", lambda: None)
            p.salu("s_sub_u32", sT0, sWAVE, 4)
            self.cond("s_cmp_lt_u32", sT0, 3, "Lw7x", lambda: p.raw(f"s_waitcnt vmcnt({6 + later})"))
        else:
            p.raw(f"s_waitcnt vmcnt({6 + later})")
            self.cond("s_cmp_lg_u32", sWAVE, 7, "Lw7w", lambda: p.raw("s_waitcnt vmcnt(0)"))
        for r in range(2):
            p.p_vm[dv[r].b] = None
        ch = [V(160, 2), V(162, 2)]
        for r in range(2):
            p.valu("v_and_b32", t[10], 1, di[r])
            p.valu("v_lshlrev_b32", t[10], 4, t[10])
            p.valu("v_lshlrev_b32", dv[r], t[10], dv[r])
            p.valu("v_and_b32", t[10], 2, di[r])
            p.valu("v_cmp_eq_u32", "vcc", 0, t[10])
            p.valu("v_cndmask_b32", ch[r].sub(0), 0, dv[r], "vcc")
            p.valu("v_sub_u32", ch[r].sub(1), dv[r], ch[r].sub(0))
            p.ds_write("ds_write_b64", ad[r], ch[r])
        if not early:
            self.cond("s_cmp_lt_u32", sWAVE, 4, "Lnow1a", lambda: [self.w1_dma(u) for u in range(6)])
        self.rows_dma(range(5, 9), "Lskipx1")
        p.raw("s_waitcnt vmcnt(10) lgkmcnt(0)")
        self.cond("s_cmp_ge_u32", sWAVE, 4, "Lwa", lambda: p.raw("s_waitcnt vmcnt(4)"))
        p.vm_done, p.lgkm_done = p.vm_seq, p.lgkm_seq
        p.barrier()
        self.stamp(192)

    def w1_dma(self, u):
        p = self.p
        p.salu("s_and_b32", sT0, sWAVE, 3)
        p.salu("s_add_u32", sT0, sT0, 4 * u)
        p.salu("s_mul_i32", sT1, sT0, 43)
        p.salu("s_lshr_b32", sT1, sT1, 8)
        p.salu("s_lshl_b32", sT2, sT0, 10)
        p.salu("s_add_u32", "m0", sT2, W1F)
        p.salu("s_mul_i32", sT3, sT1, 6)
        p.salu("s_sub_u32", sT0, sT0, sT3)
        p.salu("s_lshl_b32", sT0, sT0, 1)
        p.salu("s_sub_u32", sT2, sT0, 5)
        p.salu("s_cmp_ge_u32", sT0, 6)
        p.salu("s_cselect_b32", sT0, sT2, sT0)
        p.salu("s_mul_i32", sT0, sT0, 12288)
        p.salu("s_lshl_b32", sT1, sT1, 6)
        p.salu("s_add_u32", sT0, sT0, sT1)
        return p.dma(self.vW1g, sW1, sT0)

    def sentinels(self):
        p, lane = self.p, self.vLane
        t = [V(174 + i) for i in range(18)]
        sv = V(164, 4)

        def bias():
            p.salu("s_lshl_b32", sT1, sT0, 1)
            p.valu("v_mul_u32_u24", t[0], 192, lane)
            p.valu("v_lshlrev_b32", t[1], 1, lane)
            for i in range(6):
                p.salu("s_add_u32", sT2, sT1, 64 * 192 * i)
                p.raw(f"buffer_load_ushort {t[2 + i]}, {t[0]}, {sW2}, {sT2} offen")
                p.raw(f"buffer_load_ushort {t[8 + i]}, {t[1]}, {sBE}, 0 offen offset:{128 * i}")
            p.raw("s_waitcnt vmcnt(0)")
            for i in range(12):
                p.valu("v_lshlrev_b32", t[2 + i], 16, t[2 + i])
            p.valu("v_mul_f32", t[0], t[2], t[8])
            for i in range(1, 6):
                p.valu("v_fmac_f32", t[0], t[2 + i], t[8 + i], rmw=True)
            self.lane_sum64(t[0], t[1])
            p.salu("s_lshl_b32", sT1, sT0, 2)
            p.salu("s_add_u32", sT1, sT1, WS_TOT + 1536)
            p.raw(f"s_mov_b64 exec, {hex((1 << REP) - 1)}")
            p.raw(f"buffer_store_dword {t[0]}, {t[17]}, {sWS}, {sT1} offen sc1")
            p.raw("s_mov_b64 exec, -1")

        def body():
            for i in range(4):
                p.valu("v_mov_b32", sv.sub(i), -1)
            p.valu("v_lshlrev_b32", t[0], 12, lane)
            p.valu("v_add_u32", t[1], 64 * 4096, t[0])
            p.valu("v_cmp_gt_u32", "vcc", 32, lane)
            p.valu("v_mov_b32", t[2], OOB_V)
            p.valu("v_cndmask_b32", t[1], t[2], t[1], "vcc")
            p.salu("s_lshl_b32", sT0, S(2), 4)
            p.raw(f"buffer_store_dwordx4 {sv}, {t[0]}, {sWS}, {sT0} offen sc1")
            p.raw(f"buffer_store_dwordx4 {sv}, {t[1]}, {sWS}, {sT0} offen sc1")
            p.salu("s_add_u32", sT0, sT0, WS_TOT)
            p.salu("s_cmp_lt_u32", S(2), 96)
            p.salu("s_cselect_b32", sT0, sT0, OOB_S)
            p.valu("v_lshlrev_b32", t[17], 11, lane)
            p.raw(f"s_mov_b64 exec, {hex((1 << REP) - 1)}")
            p.raw(f"buffer_store_dwordx4 {sv}, {t[17]}, {sWS}, {sT0} offen sc1")
            p.raw("s_mov_b64 exec, -1")
            p.raw(f"s_getpc_b64 {sEX}")
            p.lines.append("Lpc:")
            p.salu("s_lshr_b32", sT0, S(2), 3)
            p.salu("s_and_b32", sT0, sT0, 15)
            p.salu("s_lshl_b32", sT0, sT0, 13)
            p.valu("v_lshlrev_b32", t[2], 7, lane)
            p.valu("v_add_u32", t[2], sT0, t[2])
            p.valu("v_min_u32", t[2], "Lend-Lpc", t[2])
            if self.o.get('pf', 1):
                p.raw(f"global_load_dword {self.tq[4]}, {t[2]}, {sEX}")
            p.salu("s_sub_u32", sT0, S(2), 96)
            p.salu("s_cmp_lt_u32", sT0, 96)
            p.raw("s_cbranch_scc0 Lnobias")
            bias()
            p.lines.append("Lnobias:")
            p.nop(2)
        self.cond("s_cmp_lg_u32", sWAVE, 7, "Lnosent", body)

    def init_counter(self):
        p = self.p

        def body():
            p.raw("s_waitcnt vmcnt(0)")
            p.raw(f"v_mov_b32 {self.tq[4]}, 1")
            p.raw("s_mov_b64 exec, 1")
            p.raw(f"buffer_atomic_add {self.tq[4]}, {self.vL}, {sDBG}, 0 offen")
            p.raw("s_mov_b64 exec, -1")
        self.cond("s_cmp_lg_u32", sWAVE, 7, "Lnoinit", body)

    def ln_stats(self):
        p, C, ls = self.p, self.CA, self.ls
        s2, q2 = ls[0], ls[1]
        ops = [lambda: p.valu("v_pk_add_f32", s2, C.sub(0, 2), C.sub(2, 2)),
               lambda: p.valu("v_pk_mul_f32", q2, C.sub(0, 2), C.sub(0, 2))]
        for i in range(1, 24):
            if i >= 2:
                ops.append(lambda i=i: p.valu("v_pk_add_f32", s2, s2, C.sub(2 * i, 2)))
            ops.append(lambda i=i: p.valu("v_pk_fma_f32", q2, C.sub(2 * i, 2), C.sub(2 * i, 2), q2))
        return ops

    def ln_scalar(self):
        p, ls = self.p, self.ls
        s, s1, q, q1, rs, off = [ls[i // 2].sub(i % 2) for i in range(6)]
        return [
            (4, lambda: p.valu("v_add_f32", s, s, s1)),
            (4, lambda: p.valu("v_add_f32", q, q, q1)),
            (4, lambda: p.swap32(s, q)),
            (4, lambda: p.valu("v_add_f32", s, s, q)),
            (4, lambda: p.valu("v_mul_f32", s, f2u(1.0 / 96), s)),
            (4, lambda: p.valu("v_mov_b32", q, s)),
            (4, lambda: p.swap32(s, q)),
            (4, lambda: p.valu("v_fma_f32", q, f"-{s}", s, q)),
            (4, lambda: p.valu("v_max_f32", q, 0, q)),
            (4, lambda: p.valu("v_add_f32", q, f2u(1e-5), q)),
            (8, lambda: p.valu("v_rsq_f32", q, q)),
            (4, lambda: p.valu("v_mul_f32", rs, f2u(GA), q)),
            (4, lambda: p.valu("v_mul_f32", off, s, rs)),
        ]

    def ln_norm(self):
        p, C, ro = self.p, self.CA, self.ls[2]
        return [lambda i=i: p.valu("v_pk_fma_f32", C.sub(2 * i, 2), C.sub(2 * i, 2), ro, ro,
                                   mods="op_sel:[0,0,1] op_sel_hi:[1,0,1] neg_lo:[0,0,1] neg_hi:[0,0,1]")
                for i in range(24)]

    def ln_pack(self, t):
        p, C = self.p, self.CA
        return [(4, lambda i=i: p.valu("v_cvt_pk_bf16_f32", self.LN[t].sub(i), C.sub(2 * i), C.sub(2 * i + 1)))
                for i in range(24)]

    def conv_items(self, ti, pre=None):
        p = self.p
        items = []
        order = (0, 1, 3, 2) if ti % 2 == 0 else (2, 3, 1, 0)
        for k, cl in enumerate(order):
            for dx in range(3):
                for cq in range(3):
                    cb = 4 * cq + cl
                    acc = self.CA.sub(4 * cb, 4)
                    hook = None
                    if cq == 0 and k:
                        hook = (lambda dx=dx, d=16 * (cl ^ order[k - 1]): p.valu("v_xor_b32", self.vB[dx], d, self.vB[dx]))
                    elif not items:
                        hook = pre
                    off = (dx * 12 + cb) * 192
                    ra = dict(parts=[("ds_read_b64", self.vC[0], off, 0, 2), ("ds_read_b64", self.vC[1], off, 2, 2)], ring=None, hook=None)
                    items.append(dict(reads=[ra, rd128(self.vB[dx], 64 * cq, self.rb, hook)], w=self.o.get('cw', 0.5),
                                      emit=(lambda a, b, acc=acc, dx=dx: p.mfma(acc, a, b, acc if dx else 0))))
        return items

    def gemm1_32(self, j, ln, pixel_lane, need):
        p, y = self.p, self.Y
        items = []
        for s6 in range(6):
            b = ln.sub(4 * s6, 4)
            if pixel_lane:
                e = (lambda w, b=b, s6=s6: p.mfma(y, w, b, y if s6 else 0))
            else:
                e = (lambda w, b=b, s6=s6: p.mfma(y, b, w, y if s6 else 0))
            items.append(dict(reads=[self.frag(W1F + (j * 6 + 3 * (s6 & 1) + (s6 >> 1)) * 1024)], emit=e, need=need))
        return items

    def period_fill(self, y, n, G=None, sq=None, first=False, tag=None, ph=1, fl=False):
        o, ge = self.o, self.ge
        a, d = ge.front(n, o.get('grp', 2), G is None)
        if fl:
            d = d[:len(d) // 2] + [(0, self.flush)] + d[len(d) // 2:] + [(0, self.flush)]
        t0, t1 = split_cost(a + ge.mid(n), o.get(f'ds{ph}', 96 if ph == 1 else 64))
        if G is not None:
            ba, bd = ge.back_pack(G, n)
            if tag:
                ba, bd = [x + (tag,) for x in ba], [x + (tag,) for x in bd]
            t1a, t1b = split_cost(t1, sum(x[0] for x in t1) - o.get(f'de{ph}', 32 if ph == 1 else 16))
            return ge.cvts(y, n) + merge(t0, d) + t1a + merge(t1b, bd) + ba
        ba, bd = ge.back_stat(sq, None, n, first, o.get('mix', 1))
        tl = t1 + ba
        t1a, t1b = split_cost(tl, sum(x[0] for x in tl) - o.get('des', 64))
        return ge.cvts(y, n) + merge(t0, d) + t1a + merge(t1b, bd)

    @staticmethod
    def mix_in(s, ops, lo=8):
        s['fill'] = s['fill'][:lo] + merge(s['fill'][lo:], ops)

    @staticmethod
    def spread(segs, s0, fns, per):
        for k, f in enumerate(fns):
            segs[s0 + k // per]['vm'].append(f)

    def ladder(self, segs, a, b, fr):
        for f, lv in zip(fr, range(len(fr) - 1, -1, -1)):
            h = a + f * (b - a)
            if h < len(segs):
                insert_at(segs, h, lambda lv=lv: self.setprio(lv))

    def swaps(self, a, b):
        return [(4, lambda i=i: self.p.swap16(a.sub(i), b.sub(i))) for i in range(4)]

    def ws_frag(self, f, fn):
        p = self.p
        if f == 0:
            return fn(sLNB)
        p.salu("s_add_u32", sT3, sLNB, f << 21)
        return fn(sT3)

    def spill_ln(self, ti):
        p = self.p
        return [lambda k=k: self.ws_frag(6 * ti + k, lambda so: p.buf_store(
            "buffer_store_dwordx4", self.LN[ti].sub(4 * k, 4), self.vL, sWS, so, flags=self.o.get('ssf', ''))) for k in range(6)]

    def touch_x(self, tiles, a, b):
        p, lane = self.p, self.vLane
        p.valu("v_and_b32", a, 31, lane)
        p.valu("v_min_u32", a, 23, a)
        p.valu("v_lshlrev_b32", a, 7, a)
        p.valu("v_lshrrev_b32", b, 5, lane)
        p.valu("v_mul_u32_u24", b, ROWB, b)
        p.valu("v_add_u32", a, a, b)
        p.salu("s_mov_b32", "m0", LDS_BYTES)
        p.nop(1)
        for ti in tiles:
            p.raw(f"buffer_load_dword {a}, {sX}, {sTILE[ti]} offen lds")
            p.vm_seq += 1

    def w2_addr(self, a, b):
        p, lane = self.p, self.vLane
        p.valu("v_lshrrev_b32", a, 2, lane)
        p.valu("v_mul_u32_u24", a, 192, a)
        p.valu("v_and_b32", b, 3, lane)
        p.valu("v_lshl_add_u32", a, b, 4, a)

    def w2_fetch(self, a, u):
        p = self.p
        p.salu("s_add_u32", "m0", sPRIV, u * 1024)
        p.salu("s_add_u32", sT0, sW2B, (u // 3) * 3072 + (u % 3) * 64)
        p.dma(a, sW2, sT0)

    def startup_routines(self):
        main = self.p
        self.vW1g, self.vW1r, self.vW1w = V(145), V(146), V(147)
        a, b = V(148), V(149)

        def w1_transform(us, fr):
            p = self.p
            p.valu("v_add_u32", a, 65536, self.vW1r)
            p.valu("v_add_u32", b, 65536, self.vW1w)
            for k, u in enumerate(us):
                for i in range(2):
                    p.ds_read("ds_read_b64_tr_b16", fr[k].sub(2 * i, 2), self.vW1r if u < 16 else a, (u % 16) * 4096 + i * 512)
            for k, u in enumerate(us):
                p.ds_write("ds_write_b128", self.vW1w if u < 16 else b, fr[k], (u % 16) * 4096)
            p.wait_all(vm=False)

        for name in ("Lconv0", "Lln0", "Lw1a", "Lw1i", "Lw1b"):
            self.p = p = Prog()
            p.lines.append(f"{name}:")
            if name == "Lw1a":
                p.raw("s_waitcnt vmcnt(0)")
                w1_transform(range(6), [V(72 + 4 * u, 4) for u in range(6)])
            elif name == "Lw1i":
                for u in range(6, 18):
                    self.w1_dma(u)
            elif name == "Lw1b":
                p.raw("s_waitcnt vmcnt(0)")
                w1_transform(range(6, 18), [V(72 + 4 * u, 4) for u in range(12)])
            elif name == "Lconv0":
                s = seg()
                s['mf'] = self.conv_items(0)
                s['cl'] = 1
                self.run([s], self.ring1)
                p.nop(12)
            else:
                for f in self.ln_stats():
                    f()
                for _, f in self.ln_scalar():
                    f()
                for f in self.ln_norm():
                    f()
                for _, f in self.ln_pack(0):
                    f()
                p.nop(2)
            p.raw(f"s_setpc_b64 {sRET}")
            main.lines += p.lines
        self.p = main

    def phase1(self):
        p, o, lane = self.p, self.o, self.vLane

        def call_if(older, names, tag):
            self.cond("s_cmp_lt_u32" if older else "s_cmp_ge_u32", sWAVE, 4, tag,
                      lambda: [p.raw(n if n.startswith("s_") else f"s_call_b64 {sRET}, {n}") for n in names], 0)

        p.raw("s_setprio 2")
        call_if(True, ["Lconv0", "Lln0", "s_waitcnt vmcnt(0)"], "Lsu0")
        call_if(False, ["Lw1a", "Lw1i"], "Lsu1")
        p.barrier()
        self.stamp(192)
        call_if(False, [f"s_setprio {o.get('sp', 3)}", "Lconv0", "s_barrier", "Lw1b", "s_barrier", "Lln0"], "Lsu2")
        self.sentinels()
        self.stamp(192)
        p.lds_age = o.get('age1', 24)
        NS = 50
        P = [seg() for _ in range(NS)]
        c0s = [o.get('c1', 6), o.get('cn', 4), o.get('cn', 4)]
        conv = {}

        def ready():
            assert self.nrow % 8 == 0 and self.nrow > self.nready, (self.nrow, self.nready)
            self.nready = self.nrow
            p.wait(vm=self.x_tok)
            p.barrier()

        def advance_rows():
            a, b = self.tq[0], self.tq[1]
            p.valu("v_add_u32", a, 8 * RP - W2R, self.vB[0])
            p.valu("v_subrev_u32", b, 10 * RP, a)
            p.valu("v_min_u32", a, a, b)
            p.valu("v_add_u32", a, W2R, a)
            p.valu("v_sub_u32", b, a, self.vB[0])
            for k in range(3):
                p.valu("v_add_u32", self.vB[k], b, self.vB[k])

        for ti in range(1, 4):
            s0, first = 12 * (ti - 1), c0s[ti - 1]
            for k, it in enumerate(self.conv_items(ti, pre=ready)):
                conv.setdefault(s0 + first + k * (10 - first) // 36, []).append(it)
        ndc, ndn, ndk = o.get('ndc', 4), o.get('ndn', 5), o.get('ndk', 5)
        for s in range(NS):
            S_ = P[s]
            e = s - 1
            if 0 <= e < 36:
                S_['fill'] = self.period_fill(regs(self.Y), ndc if s in conv else ndn, sq=self.SQ[e % 12], first=e < 12)
            elif 36 <= e < 48:
                S_['fill'] = self.period_fill(regs(self.Y), ndk, G=regs(self.S3[e - 36]), fl=e == 47)
            g1 = self.gemm1_32(s % 12, self.LN[s // 12], s >= 36, 8 if s else 0) if s < 48 else []
            ex = conv.get(s, [])
            if s - 2 >= 36:
                G, sq = self.S3[s - 38], self.SQ[s - 38]
                tr = [dict(reads=[], tag='tr' if q else None, w=0.5,
                           emit=(lambda q=q, G=G: p.mfma(self.D0, G.sub(4 * q, 4), self.idf[q], self.D0 if q else 0, 'f16'))) for q in range(2)]
                ops = [x + ('tr',) for x in self.swaps(G.sub(0, 4), G.sub(4, 4))]
                ops += [(4, lambda i=i, sq=sq: p.valu("v_fmac_f32", sq, self.D0.sub(i), self.D0.sub(i), rmw=True)) for i in range(16)]
                self.mix_in(S_, ops, 12)
                S_['mf'] = tr + g1
                S_['tail'] = o.get('t1', 24) if g1 else 10 ** 6
            elif ex:
                nf, nl = 1, 2
                mid = ex[nf:len(ex) - nl]
                m = []
                for k in range(6):
                    m.append(g1[k])
                    if k < 5:
                        m += mid[k * len(mid) // 5:(k + 1) * len(mid) // 5]
                S_['mf'] = ex[:nf] + m + ex[len(ex) - nl:]
                S_['cl'] = o.get('clc', 1)
            else:
                S_['mf'] = g1
                S_['head'], S_['tail'] = 32, o.get('t1', 24)
        p.salu("s_add_u32", sYB, sYB, 8)
        p.salu("s_mul_i32", sYB, sYB, ROWB)
        p.salu("s_cmp_eq_u32", sWAVE, 7)
        p.salu("s_cselect_b32", sXM, LDS_BYTES, sXM)
        f0 = o.get('f0', 1)
        P[f0]['end'] += [lambda: call_if(True, ["s_barrier"], "Lsu3"), advance_rows]
        P[2]['end'].append(lambda: call_if(True, ["s_barrier"], "Lsu4"))
        for ti in range(3):
            fns = [lambda r=r: self.row_dma_fast(r) for r in range(8 * ti + 9, 8 * ti + 17)]
            self.spread(P, f0 + 1 if ti == 0 else 12 * ti - 2, fns, o.get('per0', 4) if ti == 0 else o.get('pern', 3))
        for ti in range(1, 4):
            s0 = 12 * (ti - 1)
            P[s0 + 9]['tail'] = 32
            P[s0 + 9]['pb'] += self.ln_stats()
            P[s0 + 9]['end'] += [p.barrier] + ([advance_rows] if ti < 3 else [])
            self.mix_in(P[s0 + 10], self.ln_scalar())
            P[s0 + 10]['pb'] += self.ln_norm()
            self.mix_in(P[s0 + 11], self.ln_pack(ti))
        self.spread(P, o.get('sl0', 4), self.spill_ln(0), 1)
        self.spread(P, o.get('sl1', 14), self.spill_ln(1), 1)
        P[8]['end'].append(self.init_counter)
        u = self.vX
        P[33]['end'].append(lambda: self.w2_addr(u, self.tq[0]))
        self.spread(P, 34, [lambda k=k: self.w2_fetch(u, k) for k in range(7)], 2)
        self.mix_in(P[36], self.ident32())
        for k, ti in zip(ints(o.get('ts', '38')), range(4)):
            P[k]['end'].append(lambda ti=ti: self.touch_x([ti], self.tq[0], self.tq[1]))
        fr = flts(o.get('pf1', '0,0.5,0.85'))
        marks = [0, c0s[0] - 0.5, 10, 12 + c0s[1] - 0.5, 22, 24 + c0s[2] - 0.5, 34] + list(range(34 + o.get('lc', 4), 50, o.get('lc', 4))) + [50]
        for a, b in zip(marks, marks[1:]):
            self.ladder(P, a, b, fr)
        self.run(P, self.ring1)
        p.lds_age = 0
        p.raw("s_setprio 3")
        t = [V(128 + i) for i in range(16)]
        p.valu("v_and_b32", t[8], 0x33, lane)
        p.valu("v_bfe_u32", t[9], lane, 2, 1)
        p.valu("v_lshl_add_u32", t[8], t[9], 3, t[8])
        p.valu("v_bfe_u32", t[9], lane, 3, 1)
        p.valu("v_lshl_add_u32", t[8], t[9], 2, t[8])
        p.valu("v_lshl_add_u32", t[8], t[8], 2, sPRIV)
        for j in range(0, 12, 2):
            p.swap32(self.SQ[j], self.SQ[j + 1])
            p.valu("v_add_f32", self.SQ[j], self.SQ[j], self.SQ[j + 1])
            p.ds_write("ds_write_b32", t[8], self.SQ[j], TABO + j * 128)
        p.valu("v_mov_b32", t[0], CNT)
        p.valu("v_mov_b32", t[1], 1)
        p.wait_all(vm=False)
        p.raw("s_mov_b64 exec, 1")
        p.raw(f"ds_add_rtn_u32 {t[2]}, {t[0]}, {t[1]}")
        p.raw("s_mov_b64 exec, -1")
        p.raw("s_waitcnt lgkmcnt(0)")
        p.valu("v_readfirstlane_b32", sT0, t[2])

        def publish():
            pv = [V(168 + 8 * w, 8) for w in range(7)] + [V(120, 8)]
            p.valu("v_min_u32", t[3], 47, lane)
            p.valu("v_lshlrev_b32", t[4], 5, t[3])
            p.valu("v_add_u32", t[4], W2R + TABO, t[4])
            for w in range(8):
                for k in range(2):
                    p.ds_read("ds_read_b128", pv[w].sub(4 * k, 4), t[4], 9216 * w + 16 * k)
            p.valu("v_lshlrev_b32", t[6], 13, t[3])
            p.valu("v_add_u32", t[7], 4096, t[6])
            for st in (1, 2, 4):
                for w in range(0, 8, 2 * st):
                    for i in range(8):
                        p.valu("v_add_f32", pv[w].sub(i), pv[w].sub(i), pv[w + st].sub(i))
            for i in range(8):
                p.valu("v_min_u32", pv[1].sub(i), -2, pv[0].sub(i))
            p.salu("s_lshl_b32", sT0, S(2), 4)
            p.buf_store("buffer_store_dwordx4", pv[1].sub(0, 4), t[6], sWS, sT0, flags="sc1")
            p.buf_store("buffer_store_dwordx4", pv[1].sub(4, 4), t[7], sWS, sT0, flags="sc1")
            p.ds_write("ds_write_b32", t[0], t[1], 4)
            p.raw("s_waitcnt lgkmcnt(0)")
            p.nop(2)
        self.cond("s_cmp_lg_u32", sT0, 7, "Lnopub", publish)
        self.stamp(192)

    def ident32(self):
        p, lane = self.p, self.vLane
        a, b, c = self.tq[0], self.tq[1], self.tq[2]
        ops = [lambda: p.valu("v_and_b32", a, 1, lane),
               lambda: p.valu("v_lshlrev_b32", a, 4, a),
               lambda: p.valu("v_mov_b32", b, 0x3C00),
               lambda: p.valu("v_lshlrev_b32", a, a, b),
               lambda: p.valu("v_lshrrev_b32", b, 3, lane),
               lambda: p.valu("v_xor_b32", b, b, lane),
               lambda: p.valu("v_and_b32", b, 4, b),
               lambda: p.valu("v_bfe_u32", c, lane, 3, 2),
               lambda: p.valu("v_lshl_add_u32", b, b, 1, 0),
               lambda: p.valu("v_lshl_add_u32", b, c, 1, b),
               lambda: p.valu("v_bfe_u32", c, lane, 1, 1),
               lambda: p.valu("v_add_u32", b, b, c)]
        for i in range(8):
            ops.append(lambda i=i: (p.valu("v_cmp_eq_u32", "vcc", i, b), p.valu("v_cndmask_b32", self.idf[i // 4].sub(i % 4), 0, a, "vcc")))
        return [(4, f) for f in ops]

    def poll_regs(self):
        rv = [V(156, 4), V(160, 4), V(164, 4), V(240, 4)]
        tv = V(156, 6)
        gv = [V(244), V(245), V(246)]
        t = [V(247), V(255), V(162), V(163), V(164), V(165), V(166), V(167)]
        return rv, tv, gv, t

    def poll_loads(self, p, reducer):
        rv, tv, gv, t = self.poll_regs()
        if reducer:
            p.valu("v_lshlrev_b32", t[0], 4, self.vLane)
            p.salu("s_lshl_b32", sT1, S(2), 12)
            for i in range(4):
                p.buf_load("buffer_load_dwordx4", rv[i], t[0], sWS, sT1, 1024 * i, flags="sc1")
        else:
            p.valu("v_lshlrev_b32", t[0], 3, self.vLane)
            p.salu("s_and_b32", sT1, S(2), REP - 1)
            p.salu("s_lshl_b32", sT1, sT1, 11)
            p.salu("s_add_u32", sT1, sT1, WS_TOT)
            for i in range(3):
                p.buf_load("buffer_load_dwordx2", tv.sub(2 * i, 2), t[0], sWS, sT1, 512 * i, flags="sc1")

    def poll_routine(self):
        main, self.p = self.p, Prog()
        p = self.p
        rv, tv, gv, t = self.poll_regs()
        ret = f"s_setpc_b64 {sRET}"
        p.lines.append("Lpoll:")
        p.raw("s_waitcnt vmcnt(0)")
        p.salu("s_cmp_eq_u32", sROLE, 2)
        p.raw("s_cbranch_scc1 LpollC")
        allr = [rv[i].sub(k) for i in range(4) for k in range(4)]
        p.valu("v_max_u32", t[1], allr[0], allr[1])
        for i in range(2, 16, 2):
            p.valu("v_max3_u32", t[1], t[1], allr[i], allr[i + 1])
        p.valu("v_cmp_eq_u32", "vcc", -1, t[1])
        p.nop(5)
        p.raw("s_cbranch_vccz LpollR")
        self.poll_loads(p, True)
        p.raw(ret)
        self.p = p2 = Prog()
        p2.lines.append("LpollR:")
        p2.raw("s_setprio 3")
        for k in range(4):
            p2.valu("v_add_f32", rv[0].sub(k), rv[0].sub(k), rv[1].sub(k))
            p2.valu("v_add_f32", rv[3].sub(k), rv[2].sub(k), rv[3].sub(k))
            p2.valu("v_add_f32", rv[3].sub(k), rv[0].sub(k), rv[3].sub(k))
        for k in range(4):
            self.lane_sum64(rv[3].sub(k), t[1])
            p2.valu("v_min_u32", rv[3].sub(k), -2, rv[3].sub(k))
        p2.salu("s_lshl_b32", sT1, S(2), 4)
        p2.salu("s_add_u32", sT1, sT1, WS_TOT)
        p2.valu("v_lshlrev_b32", t[1], 11, self.vLane)
        p2.raw(f"s_mov_b64 exec, {hex((1 << REP) - 1)}")
        p2.buf_store("buffer_store_dwordx4", rv[3], t[1], sWS, sT1, flags="sc1")
        p2.raw("s_mov_b64 exec, -1")
        p2.salu("s_mov_b32", sROLE, 2)
        self.poll_loads(p2, False)
        p2.raw(ret)
        self.p = p3 = Prog()
        p3.lines.append("LpollC:")
        p3.valu("v_max3_u32", t[1], tv.sub(0), tv.sub(1), tv.sub(2))
        p3.valu("v_max3_u32", t[1], t[1], tv.sub(3), tv.sub(4))
        p3.valu("v_max_u32", t[1], t[1], tv.sub(5))
        p3.valu("v_cmp_eq_u32", "vcc", -1, t[1])
        p3.nop(5)
        p3.raw("s_cbranch_vccz LpollS")
        self.poll_loads(p3, False)
        p3.raw(ret)
        self.p = p4 = Prog()
        p4.lines.append("LpollS:")
        p4.raw("s_setprio 3")
        p4.salu("s_mov_b32", sT0, f2u(1.0 / (GA * GA)))
        p4.valu("v_mov_b32", t[2], f2u(1e-6))
        for i in range(6):
            p4.valu("v_fma_f32", tv.sub(i), tv.sub(i), sT0, t[2])
        for i in range(6):
            p4.valu("v_sqrt_f32", tv.sub(i), tv.sub(i))
        p4.valu("v_add_f32", t[3], tv.sub(0), tv.sub(1))
        for i in range(2, 6):
            p4.valu("v_add_f32", t[3], t[3], tv.sub(i))
        self.lane_sum64(t[3], t[1])
        p4.salu("s_mov_b32", sT0, f2u(1.0 / 384))
        p4.valu("v_fma_f32", t[3], t[3], sT0, t[2])
        p4.valu("v_rcp_f32", t[3], t[3])
        p4.valu("v_mov_b32", t[2], f2u(1.0 / GA))
        p4.valu("v_mul_f32", t[3], t[3], t[2])
        for i in range(3):
            p4.valu("v_lshlrev_b32", t[4], 16, gv[i])
            p4.valu("v_and_b32", t[5], 0xFFFF0000, gv[i])
            p4.valu("v_mul_f32", tv.sub(2 * i), tv.sub(2 * i), t[3])
            p4.valu("v_mul_f32", tv.sub(2 * i + 1), tv.sub(2 * i + 1), t[3])
            p4.valu("v_fma_f32", t[4], t[4], tv.sub(2 * i), t[2])
            p4.valu("v_fma_f32", t[5], t[5], tv.sub(2 * i + 1), t[2])
            p4.valu("v_cvt_pk_f16_f32", gv[i], t[4], t[5])
        p4.salu("s_mov_b32", sROLE, 0)
        p4.raw(ret)
        self.p = main
        for q in (p, p2, p3, p4):
            main.lines += q.lines

    def poll_point(self, k):
        p = self.p
        self.cond("s_cmp_eq_u32", sROLE, 0, f"Lpp{k}", lambda: (p.raw(f"s_call_b64 {sRET}, Lpoll"), p.raw(f"s_setprio {self.prio}")))

    def gap(self):
        p, o, lane = self.p, self.o, self.vLane
        rv, tv, gv, t = self.poll_regs()
        wa = self.tq[1]
        p.valu("v_mov_b32", wa, self.vX)
        p.salu("s_mov_b32", sROLE, 0)

        def role():
            p.valu("v_lshlrev_b32", t[1], 2, lane)
            for i in range(3):
                p.buf_load("buffer_load_dword", gv[i], t[1], sGA, 0, 256 * i)
            p.valu("v_mov_b32", t[2], 0)
            p.label("Lpi")
            p.buf_load("buffer_load_dword", t[3], t[2], sDBG, flags="sc1")
            p.valu("v_readfirstlane_b32", sT0, t[3])
            self.spin_guard("Lpix")
            p.salu("s_cmp_lt_u32", sT0, 256)
            p.branch("s_cbranch_scc1", "Lpi")
            p.label("Lpix")
            p.valu("v_min_u32", t[0], 47, lane)
            p.valu("v_lshlrev_b32", t[0], 3, t[0])
            p.salu("s_and_b32", sT1, S(2), REP - 1)
            p.salu("s_lshl_b32", sT1, sT1, 11)
            p.salu("s_add_u32", sT1, sT1, WS_TOT + 1536)
            p.buf_load("buffer_load_dwordx2", V(166, 2), t[0], sWS, sT1, flags="sc1")
            p.valu("v_add_u32", t[1], BT0, t[0])
            p.valu("v_add_u32", t[0], BT1 - 256, t[0])
            p.valu("v_cmp_gt_u32", "vcc", 32, lane)
            p.valu("v_cndmask_b32", t[0], t[0], t[1], "vcc")
            p.ds_write("ds_write_b64", t[0], V(166, 2))
            p.wait_all()
            p.salu("s_cmp_lt_u32", S(2), 96)
            p.salu("s_cselect_b32", sROLE, 1, 2)
            for r in rv:
                for i in range(4):
                    p.valu("v_mov_b32", r.sub(i), -1)
            p.raw(f"s_call_b64 {sRET}, Lpoll")
        self.cond("s_cmp_lg_u32", sWAVE, 0, "Lnorole", role)
        self.setprio(0)
        p.lds_age = o.get('age1', 24)
        NE = len(self.J2)
        P = [seg() for _ in range(NE + 2)]
        ln = self.LN[2]
        for s, S_ in enumerate(P):
            if 0 <= s - 1 < NE:
                S_['fill'] = self.period_fill(regs(self.Y), o.get('ndg', 5), G=regs(self.S2[self.J2[s - 1]]), fl=s == NE)
            if s < NE:
                S_['mf'] = self.gemm1_32(self.J2[s], ln, True, 8 if s else 0)
                S_['head'], S_['tail'] = 32, o.get('t1', 24)
            if 0 <= s - 2 < NE:
                G = self.S2[self.J2[s - 2]]
                self.mix_in(S_, self.swaps(G.sub(0, 4), G.sub(4, 4)))
            S_['end'].append(lambda s=s: self.poll_point(s))
            if o.get('pp2', 0) and 1 <= s <= NE:
                insert_at(P, s + 0.5, lambda s=s: (self.flush(), self.poll_point(100 + s)))
        self.mix_in(P[NE], [x for u in range(3) for x in self.swaps(ln.sub(8 * u, 4), ln.sub(8 * u + 4, 4))])
        ws_ = max(0, NE - o.get('w2b', 3))
        P[ws_]['end'] += [lambda: self.lds_spin(self.tq[2], self.tq[3], 4, 1, "w2"), lambda: self.w2_fetch(wa, 7), lambda: self.w2_fetch(wa, 8)]
        for a in range(0, NE + 2, 3):
            self.ladder(P, a, a + 3, flts(o.get('pfg', '0,0.45,0.8')))
        self.run(P, self.ring2)
        p.lds_age = 0
        self.stamp(224)
        p.raw("s_setprio 2")
        fr = [V(120 + 4 * u, 4) for u in range(9)]
        u = [V(224 + i) for i in range(4)]
        p.valu("v_lshrrev_b32", u[1], 5, lane)
        p.valu("v_lshl_add_u32", u[0], u[1], 9, sPRIV)
        p.valu("v_lshl_add_u32", u[2], u[1], 4, sPRIV)
        p.valu("v_and_b32", u[1], 15, lane)
        p.valu("v_lshl_add_u32", u[0], u[1], 4, u[0])
        p.valu("v_bfe_u32", u[1], lane, 4, 1)
        p.valu("v_lshl_add_u32", u[0], u[1], 3, u[0])
        p.raw("s_waitcnt vmcnt(0)")
        p.vm_done = p.vm_seq
        for k in range(9):
            for i in range(2):
                p.ds_read("ds_read_b64_tr_b16", fr[k].sub(2 * i, 2), u[0], k * 1024 + i * 256)
        g, n = u[1], u[3]
        p.valu("v_lshrrev_b32", g, 4, lane)
        p.valu("v_and_b32", n, 15, lane)
        p.valu("v_mul_u32_u24", self.vG, 192, n)
        p.valu("v_lshl_add_u32", self.vG, g, 4, self.vG)
        p.valu("v_lshlrev_b32", self.vBias, 5, g)
        p.valu("v_and_b32", self.vR, 0x2F, lane)
        p.valu("v_lshlrev_b32", self.vR, 4, self.vR)
        p.valu("v_and_b32", g, 1, g)
        p.valu("v_mul_u32_u24", n, 3072, g)
        p.valu("v_add_u32", self.vA[0], n, self.vR)
        p.valu("v_add_u32", self.vA[1], 0x10000, self.vA[0])
        p.valu("v_add_u32", self.vA[2], 0x20000, self.vA[0])
        p.valu("v_lshl_add_u32", self.vR, g, 21, self.vR)
        p.valu("v_mov_b32", u[1], CNT)
        p.valu("v_mov_b32", u[3], 1)
        p.wait_all(vm=False)
        p.raw("s_mov_b64 exec, 1")
        p.raw(f"ds_add_u32 {u[1]}, {u[3]} offset:8")
        p.raw("s_mov_b64 exec, -1")
        p.lgkm_seq += 1
        w = [V(228 + i) for i in range(4)]
        for k in range(36):
            f, a, b = V(120 + k), w[2 * (k % 2)], w[2 * (k % 2) + 1]
            p.valu("v_lshlrev_b32", a, 16, f)
            p.valu("v_and_b32", b, 0xFFFF0000, f)
            p.valu("v_cvt_pk_f16_f32", f, a, b)
            if k % 12 == 11:
                self.prio = 2
                self.poll_point(200 + k)
        p.valu("v_lshl_add_u32", u[0], lane, 4, sPRIV)

        def finish():
            p.lines.append("Lspin:")
            p.salu("s_cmp_eq_u32", sROLE, 0)
            p.raw("s_cbranch_scc1 Lspinx")
            self.spin_guard("Lspinx")
            p.raw(f"s_call_b64 {sRET}, Lpoll")
            p.raw("s_branch Lspin")
            p.lines.append("Lspinx:")
            for i in range(3):
                p.valu("v_add_u32", t[2 + i], 64 * i, lane)
                p.valu("v_mul_u32_u24", t[5], 2731, t[2 + i])
                p.valu("v_lshrrev_b32", t[5], 16, t[5])
                p.valu("v_mul_u32_u24", t[5], 9216 - 96, t[5])
                p.valu("v_lshl_add_u32", t[2 + i], t[2 + i], 2, t[5])
                p.valu("v_add_u32", t[2 + i], W2R, t[2 + i])
            self.lds_spin(t[5], t[6], 8, 8, "rr")
            for i in range(3):
                p.ds_write("ds_write_b32", t[2 + i], gv[i])
        self.cond("s_cmp_lg_u32", sWAVE, 0, "Lnofin", finish)
        p.raw("s_waitcnt lgkmcnt(0)")
        p.lgkm_done = p.lgkm_seq
        self.stamp(228)
        p.barrier()
        self.stamp(228)
        sc = [V(228, 4), V(232, 4), V(236, 4)]
        for k in range(3):
            p.ds_read("ds_read_b128", sc[k], u[2], 32 * k)
        self.early_loads()
        p.wait_all(vm=False)
        for k in range(9):
            for i in range(4):
                p.valu("v_pk_mul_f16", fr[k].sub(i), fr[k].sub(i), sc[k // 3].sub(i))
            p.ds_write("ds_write_b128", u[0], fr[k], k * 1024)
        p.wait_all(vm=False)
        p.barrier()
        self.stamp(228)

    def load_x1(self, dst, ti, k):
        p = self.p
        if k % 2:
            p.salu("s_add_u32", sT3, sTILE[ti], ROWB)
        p.buf_load("buffer_load_dwordx4", dst, self.vG, sX, sT3 if k % 2 else sTILE[ti], 64 * (k // 2), flags=self.o.get('xlf', ''))

    def reload_ln(self, ti, dst):
        p = self.p
        return [lambda k=k: self.ws_frag(6 * ti + (k & ~1), lambda so: p.buf_load(
            "buffer_load_dwordx4", dst[k], self.vR, sWS, so, 256 * (k & 1), flags=self.o.get('rlf', ''))) for k in range(6)]

    def early_loads(self):
        self.load_x1(V(240, 4), 3, 0)
        self.load_x1(V(244, 4), 3, 1)

    def gemm1_16(self, j, ln, y, need):
        p = self.p
        return [dict(reads=[self.frag(W1F + (j * 6 + u) * 1024 + 256 * b)], need=need,
                     emit=[(lambda w, u=u, b=b, r=r: p.mfma(y[2 * r + b], w, ln[2 * u + r], y[2 * r + b] if u else 0)) for r in range(2)])
                for u in range(3) for b in range(2)]

    def gemm2_16(self, j, users, tag=None):
        p = self.p
        items = []
        for T in range(3):
            for b in range(2):
                reads = [self.frag(W2R + (j * 6 + T) * 1024 + 256 * b)]
                if any(f for _, _, f in users):
                    reads.append(rd128(self.vBias, (BT0 + 128 * T if T < 2 else BT1) + 16 * b))
                em = []
                for acc, G, f in users:
                    for r in range(2):
                        d = acc[2 * T + r].sub(4 * b, 4)
                        em.append(lambda w, c=None, d=d, G=G, r=r, f=f: p.mfma(d, w, G.sub(4 * r, 4), c if f else d, 'f16'))
                items.append(dict(reads=reads, emit=em, tag=tag if (T, b) == (2, 1) else None))
        return items

    def resid_item(self, acc, k, x):
        p = self.p
        return dict(reads=[], emit=[(lambda b=b: p.mfma(acc[k].sub(4 * b, 4), self.id16.sub(2 - 2 * b, 4), x, acc[k].sub(4 * b, 4))) for b in range(2)])

    def ident16(self):
        p, lane, I = self.p, self.vLane, self.id16
        a, b = I.sub(0), I.sub(1)
        ops = [lambda: p.valu("v_and_b32", a, 1, lane),
               lambda: p.valu("v_lshlrev_b32", a, 4, a),
               lambda: p.valu("v_mov_b32", b, 0x3F80),
               lambda: p.valu("v_lshlrev_b32", a, a, b),
               lambda: p.valu("v_lshrrev_b32", b, 2, lane),
               lambda: p.valu("v_xor_b32", b, b, lane),
               lambda: p.valu("v_and_b32", b, 12, b),
               lambda: p.valu("v_and_b32", I.sub(4), 2, lane),
               lambda: p.valu("v_or_b32", b, b, I.sub(4)),
               lambda: (p.valu("v_cmp_eq_u32", "vcc", 0, b), p.valu("v_cndmask_b32", I.sub(2), 0, a, "vcc")),
               lambda: (p.valu("v_cmp_eq_u32", "vcc", 2, b), p.valu("v_cndmask_b32", I.sub(3), 0, a, "vcc"))]
        ops += [lambda i=i: p.valu("v_mov_b32", I.sub(i), 0) for i in (0, 1, 4, 5)]
        return [(4, f) for f in ops]

    def out_ops(self, acc, ti, k):
        p = self.p
        a = acc[k]

        def st():
            if k % 2:
                p.salu("s_add_u32", sT3, sTILE[ti], ROWB)
            p.buf_store("buffer_store_dwordx4", a.sub(0, 4), self.vG, sOUT, sT3 if k % 2 else sTILE[ti], 64 * (k // 2), flags=self.o.get('osf', 'sc1'))
        return [(4, lambda i=i: p.valu("v_cvt_pk_bf16_f32", a.sub(i), a.sub(2 * i), a.sub(2 * i + 1))) for i in range(4)] + [(0, lambda: self.gq.append(st))]

    def phase2(self):
        p, o = self.p, self.o
        S3, S2, J2 = self.S3, self.S2, self.J2
        assert len(J2) == 7
        C2_ = [j for j in range(12) if j not in J2]
        half = lambda v: [v.sub(0, 4), v.sub(4, 4)]
        A = [V(120 + 8 * i, 8) for i in range(6)]
        o1 = C2_ + J2[:1]
        B = [S3[j] for j in o1]
        f2 = [S3[j] for j in J2[1:4]] + [S2[j] for j in J2[1:4]]
        f3 = [S3[j] for j in J2[4:7]] + [S2[j] for j in J2[4:7]]
        R0 = half(f2[0]) + half(f2[3]) + half(f2[1])
        self.id16 = f2[4].sub(0, 6)
        Y = half(f2[2]) + half(f2[5])
        W = regs(f3[0], f3[3], f3[1].sub(0, 4))
        G = f3[4]
        ring3 = self.ring2 + half(f3[2])
        xs = [V(240, 4), V(244, 4), f3[1].sub(4, 4)] + half(f3[5])
        R1 = [self.LN[2].sub(4 * k, 4) for k in range(6)]
        self.ge = Gelu(self, W, sK, sM, 0)
        seq = [(2, j) for j in C2_] + [(0, j) for j in [J2[0]] + [j for j in range(12) if j != J2[0]]] + [(1, j) for j in range(12)]
        NE = len(seq)
        pre = [seg() for _ in range(7)]
        for k, j in enumerate(o1):
            pre[0]['mf'] += self.gemm2_16(j, [(A, S3[j], k == 0)])
        for k, j in enumerate(J2[1:]):
            pre[1 + k]['mf'] += self.gemm2_16(j, [(A, S3[j], False), (B, S2[j], k == 0)])
        rl = self.reload_ln(0, R0)
        pre[2]['vm'] += rl[:4]
        pre[3]['vm'] += rl[4:]
        pre[3]['fill'] += self.ident16()
        g1 = self.gemm1_16(seq[0][1], R1, Y, 0)
        for k in range(2):
            m = pre[4 + k]['mf']
            pre[4 + k]['mf'] = [x for i in range(3) for x in (m[2 * i], g1[3 * k + i], m[2 * i + 1])]
        NP = NE + 2
        P = [seg() for _ in range(NP)]
        P[0] = pre.pop()
        for s in pre + P:
            s['cl'] = 1
        acc = {2: B, 0: A, 1: B, 3: A}
        lns = {2: R1, 0: R0, 1: R1}
        nds = ints(o.get('nd2', '5'))
        yl = regs(*Y)
        ex = [[] for _ in range(NP)]
        for s in range(NP):
            S_ = P[s]
            a = self.gemm1_16(seq[s + 1][1], lns[seq[s + 1][0]], Y, 8) if s + 1 < NE else []
            b = list(S_['mf'])
            if 1 <= s <= NE:
                ti, j = seq[s - 1]
                users = [(acc[ti], G, ti != 2 and seq[s - 2][0] != ti)]
                if (ti, j) == (0, J2[0]):
                    users.append((B, S2[j], False))
                b = self.gemm2_16(j, users, 'g')
            if s < NE:
                S_['fill'] = self.period_fill(yl, nds[s % len(nds)], G=regs(G), tag='g' if s else None, ph=2)
            S_['ab'] = (a, b)
            S_['tail'] = o.get('t2', 32)
        n2 = len(C2_)
        allseg = pre + P
        base = len(pre)
        lead, minl = o.get('lead', 3), o.get('minl', 2)
        avail = {0: None, 1: None, 2: 0, 3: 1, 4: 1}
        done = {}
        want = [(-2, 3, 0), (-2, 3, 1)] + [(0, 3, k) for k in range(2, 6)]
        for ti, r0 in ((2, o.get('r2', 5)), (0, o.get('r0', 11)), (1, o.get('r1', 22))):
            want += [(r0 + k, ti, k) for k in range(6)]
        for i, (s, ti, k) in enumerate(want):
            if i < 2:
                bi = i
            else:
                bi = min(avail, key=lambda b_: (avail[b_], b_))
                at = max(avail[bi], s - lead)
                s = max(s, at + minl)
                allseg[base + at]['vm'].append(lambda buf=xs[bi], ti=ti, k=k: self.load_x1(buf, ti, k))
            it = self.resid_item(acc[ti], k, xs[bi])
            (allseg[base + s]['mf'] if s < 0 else ex[s]).append(it)
            avail[bi] = s + 1
            done[(ti, k)] = s
        first = {3: -9, 2: -9, 0: n2 + 1, 1: n2 + 13}
        assert all(done[(ti, k)] > first[ti] for ti, k in done), done
        last = {3: 0, 2: n2 + 1, 0: n2 + 12, 1: NE}
        free = {3: n2, 2: n2 + 12, 0: NP - 1, 1: NP - 1}
        for ti, o0, st in ((3, o.get('o3', 1), o.get('o3s', 0.67)), (2, o.get('o2', 8), o.get('o2s', 1.4)), (0, o.get('o0', 18), o.get('o0s', 1.5)), (1, NP - 1, 0)):
            for k in range(6):
                s = max(int(o0 + k * st), done[(ti, k)] + 1, last[ti] + 1)
                assert s <= free[ti], (ti, k, s)
                if s < NE:
                    f = P[s]['fill']
                    cut = next(i for i, x in enumerate(f) if len(x) > 2)
                    P[s]['fill'] = f[:8] + merge(f[8:cut - 4], self.out_ops(acc[ti], ti, k)) + f[cut - 4:]
                else:
                    P[s]['fill'] += self.out_ops(acc[ti], ti, k)[:4] + [(0, self.out_ops(acc[ti], ti, k)[4][1]), (0, self.flush)]
        self.spread(P, o.get('rl1', n2 + 2), self.reload_ln(1, R1), 1)
        for s in range(NP):
            a, b = P[s].pop('ab')
            src = {'a': a, 'b': b, 'x': ex[s]}
            P[s]['mf'] = [src[c].pop(0) for c in o.get('ord', 'bbabxababbxaaa' + 'x' * 6) if src[c]]
            assert not any(src.values())
            if s >= 1:
                P[s]['ring'] = ring3
        n_pre = sum(len(s['mf']) for s in pre + P[:1])
        for s in P[1:]:
            s['free_from'] = {v.b: n_pre - 1 for v in half(f3[2])}
        lc = o.get('lc2', 3)
        for a in range(o.get('l2a', 0), NP - o.get('l2e', 4), lc):
            self.ladder(P, a, a + lc, flts(o.get('pf2', '0,0.4,0.7,0.9')))
        for k in ints(o.get('ssp', '0,3,6,10,14,18,22,26')):
            P[k]['end'].append(self.sstamp)
        p.raw(f"s_setprio {o.get('pp', 3)}")
        p.lds_age = o.get('age2', 24)
        self.run(allseg, self.ring2)
        self.stamp(96)
        self.sstamp_flush(100)

    def build(self):
        self.alloc()
        self.p.raw("s_branch Lmain")
        self.startup_routines()
        self.p.lines.append("Lmain:")
        self.prologue()
        self.phase1()
        self.gap()
        self.phase2()
        self.p.raw("s_endpgm")
        self.poll_routine()
        self.p.lines.append("Lend:")
        self.p.raw("s_endpgm")
        return self.p


HEADER = open('standalone__modern_conv_block_convnext_v2__vision.s.ref').read().split('; Override launch')[0]


def wrap(p):
    return f"""{HEADER}; Generated by gen/gen2.py (hand-written generator; see gen/asmgen.py, gen/engine.py, gen/gelu.py)
; @launch grid=(256,1,1) block=(512,1,1) lds={LDS_BYTES}
.amdgcn_target "amdgcn-amd-amdhsa--gfx950"
.text
.globl {NAME}
.p2align 8
.type {NAME},@function
{NAME}:
{p.text()}
.section .rodata,"a"
.p2align 6
.amdhsa_kernel {NAME}
  .amdhsa_next_free_vgpr 256
  .amdhsa_next_free_sgpr 102
  .amdhsa_accum_offset 256
  .amdhsa_group_segment_fixed_size 0
  .amdhsa_kernarg_size 72
  .amdhsa_user_sgpr_count 2
  .amdhsa_user_sgpr_kernarg_segment_ptr 1
  .amdhsa_system_sgpr_workgroup_id_x 1
.end_amdhsa_kernel
"""


def generate(out, args):
    opt = {}
    for a in args:
        k, v = a.split('=')
        try:
            opt[k] = int(v)
        except ValueError:
            try:
                opt[k] = float(v)
            except ValueError:
                opt[k] = v
    g = Gen(opt)
    p = g.build()
    from align import align_dp
    al = align_dp(p.lines)
    open(out, 'w').write(wrap(p))
    print(out, 'align', al, 'instructions', sum(p.stats.values()), 'stamps', g.nstamp,
          {k: v for k, v in p.stats.items() if k in ('s_nop', 's_waitcnt', 'ds_read_b128') or 'mfma' in k})


if __name__ == '__main__':
    generate(sys.argv[1], sys.argv[2:])
```

```python
import math
import struct
import sys

from gelu import *

NAME = 'standalone__modern_conv_block_convnext_v2__vision_kernel'


def f2u(x):
    return struct.unpack('<I', struct.pack('<f', x))[0]


C2 = -2 * math.sqrt(2 / math.pi) * math.log2(math.e)
C1 = C2 * 0.044715
KH = 0x44EA
GK = 4.9140625
GA = C2 / GK
GC = C1 / GA ** 3

H0, H1 = 0x1F00, 0x3F00
BT0, BT1 = H0, H1
CNT = H1 + 128
W1F = 16384
W2R = 90112
RP = 6656
DIAG = W2R + 10 * RP
TABO = 7168
LDS_BYTES = 163840
WS_TOT = 96 * 256 * 16
WS_STAMP = 1 << 20
WS_LN = 4 << 20
WS_BYTES = 80 << 20
OOB_V = 0x80000000
OOB_S = 0x40000000
X_BYTES = 512 * 512 * 96 * 2
ROWB = 512 * 192
REP = 8

sX, sOUT, sW1, sW2, sDW, sGA, sBE, sWS, sDBG = [S(4 + 4 * i, 4) for i in range(9)]
sWAVE, sX0, sY0, sT0, sT1, sT2, sT3 = [S(40 + i) for i in range(7)]
sK, sM = S(48), S(49)
sYB, sXM = S(66), S(67)
sTILE = [S(68 + i) for i in range(4)]
sPRIV = S(72)
sSTAMP = S(73)
sEX = S(74, 2)
sCNT = S(76)
sROLE = S(77)
sRET = S(78, 2)
sLNB, sW2B = S(80), S(82)
sLD = S(80, 16)
sTM = S(96, 2)
sRT = S(98, 2)


def ints(s):
    return [int(x) for x in str(s).split(',') if x not in ('', 'n')]


def flts(s):
    return [float(x) for x in str(s).split(',') if x not in ('', 'n')]


class Gen(Engine):
    def __init__(self, opt):
        super().__init__(opt)
        self.nstamp = 0
        self.ss = []
        self.nrow = self.nready = 0

    def stamp(self, tb):
        if not self.o.get('stamps'):
            return
        p = self.p
        t = V(tb, 4)
        p.raw(f"s_memtime {sTM}")
        p.raw(f"s_memrealtime {sRT}")
        p.raw("s_waitcnt lgkmcnt(0)")
        p.lgkm_done = p.lgkm_seq
        for i in range(4):
            p.valu("v_mov_b32", t.sub(i), S(sTM.b + i))
        p.raw("s_mov_b64 exec, 1")
        p.buf_store("buffer_store_dwordx4", t, self.vA[0], sWS, sSTAMP, 16 * self.nstamp)
        p.raw("s_mov_b64 exec, -1")
        p.nop(2)
        self.nstamp += 1

    def sstamp(self, where='p2'):
        if not self.o.get('stamps') or self.o.get('fine', 'p2') != where:
            return
        p = self.p
        k = len(self.ss)
        self.ss.append(S((84, 86, 88, 90, 92, 94, 50, 52, 54, 56, 58, 60, 62, 64)[k], 2))
        p.raw(f"s_memtime {self.ss[-1]}")
        p.raw("s_waitcnt lgkmcnt(0)")
        p.lgkm_done = p.lgkm_seq

    def sstamp_flush(self, tb):
        p = self.p
        t = V(tb, 4)
        for r in self.ss:
            p.valu("v_mov_b32", t.sub(0), r.sub(0))
            p.valu("v_mov_b32", t.sub(1), r.sub(1))
            p.valu("v_mov_b32", t.sub(2), sRT.sub(0))
            p.valu("v_mov_b32", t.sub(3), sRT.sub(1))
            p.raw("s_mov_b64 exec, 1")
            p.buf_store("buffer_store_dwordx4", t, self.vA[0], sWS, sSTAMP, 16 * self.nstamp)
            p.raw("s_mov_b64 exec, -1")
            p.nop(2)
            self.nstamp += 1

    def frag(self, byte, ring=None):
        return rd128(self.vA[byte >> 16], byte & 0xFFFF, ring)

    def srd(self, d, ptr, nbytes):
        p = self.p
        p.salu("s_mov_b32", d.sub(0), ptr.sub(0))
        p.salu("s_and_b32", d.sub(1), ptr.sub(1), 0xFFFF)
        p.salu("s_mov_b32", d.sub(2), nbytes)
        p.salu("s_mov_b32", d.sub(3), 0x20000)

    def row_off(self, dst, base, delta):
        p = self.p
        p.salu("s_add_i32", sT0, base, delta)
        p.salu("s_mul_i32", sT1, sT0, ROWB)
        p.salu("s_cmp_lt_u32", sT0, 512)
        p.salu("s_cselect_b32", dst, sT1, OOB_S)

    def lane_sum64(self, v, t):
        p = self.p
        for r in (8, 4, 2, 1):
            p.valu("v_add_f32_dpp", v, v, v, mods=f"row_ror:{r} row_mask:0xf bank_mask:0xf")
        p.valu("v_mov_b32", t, v)
        p.swap16(v, t)
        p.valu("v_add_f32", v, v, t)
        p.valu("v_mov_b32", t, v)
        p.swap32(v, t)
        p.valu("v_add_f32", v, v, t)

    def cond(self, cmp, a, b, label, body, skip_on=1):
        p = self.p
        p.salu(cmp, a, b)
        p.raw(f"s_cbranch_scc{skip_on} {label}")
        p.cond_begin()
        body()
        tok = p.cond_end()
        p.lines.append(f"{label}:")
        return tok

    def spin_guard(self, exit_label):
        p = self.p
        p.salu("s_cmp_eq_u32", sCNT, 0)
        p.salu("s_cbranch_scc1", exit_label)
        p.salu("s_sub_u32", sCNT, sCNT, 1)

    def lds_spin(self, a, t, off, target, tag):
        p = self.p
        p.valu("v_mov_b32", a, CNT)
        p._mem_issue([a.b], [t.b])
        p.lines.append(f"L{tag}w:")
        p.raw(f"ds_read_b32 {t}, {a} offset:{off}")
        p.raw("s_waitcnt lgkmcnt(0)")
        p.lgkm_done = p.lgkm_seq
        p.raw(f"v_readfirstlane_b32 {sT0}, {t}")
        self.spin_guard(f"L{tag}x")
        p.raw(f"s_cmp_lt_u32 {sT0}, {target}")
        p.raw(f"s_cbranch_scc0 L{tag}x")
        p.raw("s_sleep 2")
        p.raw(f"s_branch L{tag}w")
        p.lines.append(f"L{tag}x:")

    def alloc(self):
        o = self.o
        self.S3 = [V(8 * i, 8) for i in range(12)]
        self.CA = V(0, 48)
        self.LN = [V(48, 24), V(72, 24), V(96, 24), V(168, 24)]
        self.Y = V(120, 16)
        self.W = regs(V(136, 20))
        self.SQ = [V(156 + i) for i in range(12)]
        self.ls = [V(168, 2), V(170, 2), V(172, 2)]
        self.rb = [V(192 + 4 * i, 4) for i in range(6)]
        self.D0 = V(192, 16)
        self.idf = [V(208, 4), V(212, 4)]
        self.ring2 = [V(224 + 4 * i, 4) for i in range(4)]
        self.ring1 = self.ring2 + [V(216, 4), V(220, 4)]
        self.vX, self.vL = V(240), V(241)
        self.vB = [V(242), V(243), V(244)]
        self.vC = [V(245), V(246)]
        self.tq = [V(247), V(252), V(253), V(254), V(255)]
        self.vA = [V(248), V(249), V(250)]
        self.vLane = V(251)
        self.vG, self.vR, self.vBias = V(252), V(253), V(254)
        self.J2 = ints(o.get('j2', '5,6,7,8,9,10,11'))
        self.S2 = {j: V(168 + 8 * k, 8) for k, j in enumerate(self.J2)}
        assert len(self.J2) <= 7
        self.ge = Gelu(self, self.W, sK, sM, 0)

    def rows_dma(self, rows, label):
        p = self.p

        def body():
            for r in rows:
                self.row_off(sT2, sYB, r)
                p.salu("s_add_u32", "m0", sXM, ((r + 1) % 10) * RP)
                p.dma(self.vX, sX, sT2, flags='nt' if r < self.o.get('ntrows', 9) else '')
        self.x_tok = self.cond("s_cmp_eq_u32", sWAVE, 7, label, body)

    def row_dma_fast(self, r):
        p = self.p
        p.salu("s_add_u32", "m0", sXM, ((r + 1) % 10) * RP)
        p.salu("s_add_u32", sYB, sYB, ROWB)
        self.nrow += 1
        self.x_tok = p.dma(self.vX, sX, sYB, flags='nt' if r < self.o.get('ntrows', 9) else '')

    def gelu_table(self, tid):
        p = self.p
        y = [V(0 + i) for i in range(8)]
        t = [V(8 + i) for i in range(8)]
        r = [V(16 + i) for i in range(8)]
        a, b = V(24), V(25)
        pn, pp = V(28, 4), V(32, 4)
        p.valu("v_lshlrev_b32", a, 6, tid)
        p.salu("s_mov_b32", sT0, f2u(GC))
        p.valu("v_mov_b32", b, f2u(GK))
        for i in range(8):
            p.valu("v_add_u32", y[i], 0x8004 + 8 * i, a)
        for i in range(8):
            p.valu("v_cvt_f32_f16", y[i], y[i])
        for i in range(8):
            p.valu("v_mul_f32", t[i], y[i], y[i])
        for i in range(8):
            p.valu("v_fma_f32", t[i], t[i], sT0, b)
        for i in range(8):
            p.valu("v_mul_f32", t[i], y[i], t[i])
        for i in range(8):
            p.valu("v_exp_f32", t[i], t[i])
        for i in range(8):
            p.valu("v_add_f32", r[i], "1.0", t[i])
        for i in range(8):
            p.valu("v_rcp_f32", r[i], r[i])
        for i in range(8):
            p.valu("v_mul_f32", y[i], y[i], r[i])
        for i in range(8):
            p.valu("v_mul_f32", t[i], t[i], y[i])
        for i in range(4):
            p.valu("v_cvt_pk_f16_f32", pn.sub(i), y[2 * i], y[2 * i + 1])
            p.valu("v_cvt_pk_f16_f32", pp.sub(i), f"-{t[2 * i]}", f"-{t[2 * i + 1]}")
        p.valu("v_lshlrev_b32", a, 4, tid)
        p.valu("v_mov_b32", b, LDS_BYTES)
        p.salu("s_movk_i32", sT0, 496)
        p.valu("v_cmp_gt_u32", "vcc", sT0, tid)
        p.valu("v_cndmask_b32", a, b, a, "vcc")
        p.ds_write("ds_write_b128", a, pp)
        p.ds_write("ds_write_b128", a, pn, 8192)

    def prologue(self):
        p, o = self.p, self.o
        p.salu("s_cmp_ge_u32", S(2), 256)
        p.raw("s_cbranch_scc1 Lend")
        p.raw(f"s_load_dwordx16 {sLD}, s[0:1], 0")
        p.raw(f"s_load_dwordx2 {sTM}, s[0:1], 64")
        if o.get('stamps'):
            p.raw("s_memtime s[68:69]")
            p.raw("s_memrealtime s[70:71]")
        lane = self.vLane
        tid = V(199)
        t = [V(120 + i) for i in range(40)]
        p.valu("v_mov_b32", tid, V(0))
        p.valu("v_and_b32", lane, 63, V(0))
        p.valu("v_lshrrev_b32", t[0], 6, V(0))
        p.valu("v_readfirstlane_b32", sWAVE, t[0])
        p.salu("s_and_b32", sT0, S(2), 7)
        p.salu("s_lshr_b32", sT1, S(2), 3)
        p.salu("s_and_b32", sX0, sT0, 3)
        p.salu("s_lshl_b32", sX0, sX0, 2)
        p.salu("s_and_b32", sT2, sT1, 3)
        p.salu("s_add_u32", sX0, sX0, sT2)
        p.salu("s_lshr_b32", sY0, sT0, 2)
        p.salu("s_lshl_b32", sY0, sY0, 3)
        p.salu("s_lshr_b32", sT2, sT1, 2)
        p.salu("s_add_u32", sY0, sY0, sT2)
        p.salu("s_lshl_b32", sX0, sX0, 5)
        p.salu("s_lshl_b32", sY0, sY0, 5)
        p.salu("s_lshl_b32", sXM, sWAVE, 6)
        p.salu("s_cmp_eq_u32", sWAVE, 6)
        p.salu("s_cselect_b32", sXM, 352, sXM)
        p.valu("v_add_u32", t[5], sXM, lane)
        p.valu("v_mul_u32_u24", t[1], 5462, t[5])
        p.valu("v_lshrrev_b32", t[1], 16, t[1])
        p.valu("v_mul_u32_u24", t[2], 12, t[1])
        p.valu("v_sub_u32", t[2], t[5], t[2])
        p.valu("v_bfe_u32", t[3], t[1], 2, 2)
        p.valu("v_xor_b32", t[2], t[2], t[3])
        p.valu("v_add_u32", t[3], sX0, t[1])
        p.valu("v_subrev_u32", t[3], 1, t[3])
        p.valu("v_mul_u32_u24", t[4], 192, t[3])
        p.valu("v_lshl_add_u32", t[4], t[2], 4, t[4])
        p.valu("v_mov_b32", self.vX, OOB_V)
        p.salu("s_movk_i32", sT0, 512)
        p.valu("v_cmp_gt_u32", "vcc", sT0, t[3])
        p.valu("v_cndmask_b32", t[4], self.vX, t[4], "vcc")
        p.valu("v_cmp_gt_u32", "vcc", 34, t[1])
        p.valu("v_cndmask_b32", self.vX, self.vX, t[4], "vcc")
        dv = [t[6], t[7]]
        di = [t[8], t[9]]
        p.valu("v_mov_b32", di[0], tid)
        p.valu("v_add_u32", di[1], 512, tid)
        p.valu("v_min_u32", di[1], 863, di[1])
        for r in range(2):
            p.valu("v_lshlrev_b32", t[10 + r], 1, di[r])
        p.salu("s_mov_b32", sYB, sY0)
        p.salu("s_lshl_b32", sXM, sXM, 4)
        p.salu("s_add_u32", sXM, sXM, W2R)
        p.raw("s_waitcnt lgkmcnt(0)")
        self.srd(sX, sLD.sub(0, 2), X_BYTES)
        self.srd(sDW, sLD.sub(2, 2), 1728)
        for r in range(2):
            dv_tok = p.buf_load("buffer_load_ushort", dv[r], t[10 + r], sDW)
        self.rows_dma(range(-1, 5), "Lskipx0")
        self.srd(sW1, sLD.sub(4, 2), 73728)
        p.valu("v_lshrrev_b32", self.vW1g, 2, lane)
        p.valu("v_mul_u32_u24", self.vW1g, 768, self.vW1g)
        p.valu("v_and_b32", t[5], 3, lane)
        p.valu("v_lshl_add_u32", self.vW1g, t[5], 4, self.vW1g)
        self.srd(sW2, sLD.sub(6, 2), 73728)
        self.srd(sGA, sLD.sub(8, 2), 768)
        self.srd(sBE, sLD.sub(10, 2), 768)
        self.srd(sOUT, sLD.sub(12, 2), X_BYTES)
        self.srd(sDBG, sLD.sub(14, 2), 256)
        self.srd(sWS, sTM, WS_BYTES)
        early = o.get('w1e', 0)
        if early:
            self.cond("s_cmp_lt_u32", sWAVE, 4, "Lnow1a", lambda: [self.w1_dma(u) for u in range(6)])
        self.gelu_table(tid)
        p.salu("s_and_b32", sT0, sWAVE, 1)
        p.salu("s_lshl_b32", sT3, sT0, 4)
        p.salu("s_add_u32", sX0, sX0, sT3)
        p.salu("s_and_b32", sT0, sWAVE, 6)
        p.salu("s_add_u32", sY0, sY0, sT0)
        p.salu("s_mul_i32", sT2, sT0, RP)
        p.salu("s_add_u32", sT2, sT2, W2R)
        m, g = t[11], t[12]
        p.valu("v_and_b32", m, 15, lane)
        p.valu("v_lshrrev_b32", g, 4, lane)
        p.valu("v_mul_u32_u24", t[2], RP, g)
        p.valu("v_add_u32", t[2], sT2, t[2])
        p.valu("v_add_u32", t[1], sT3, m)
        for dx in range(3):
            if dx:
                p.valu("v_add_u32", t[1], 1, t[1])
            p.valu("v_mul_u32_u24", t[3], 192, t[1])
            p.valu("v_bfe_u32", t[4], t[1], 2, 2)
            p.valu("v_lshl_add_u32", t[3], t[4], 4, t[3])
            p.valu("v_add_u32", self.vB[dx], t[2], t[3])
        p.salu("s_mul_i32", sPRIV, sWAVE, 9216)
        p.salu("s_add_u32", sPRIV, sPRIV, W2R)
        z = V(160, 4)
        for i in range(4):
            p.valu("v_mov_b32", z.sub(i), 0)
        p.valu("v_mov_b32", t[20], CNT)
        p.ds_write("ds_write_b128", t[20], z)
        p.valu("v_bfe_u32", t[13], m, 2, 1)
        p.valu("v_sub_u32", t[13], g, t[13])
        p.valu("v_lshrrev_b32", t[14], 3, m)
        p.valu("v_and_b32", t[15], 3, m)
        p.valu("v_lshl_add_u32", t[15], t[14], 2, t[15])
        p.valu("v_lshlrev_b32", t[16], 6, t[13])
        p.valu("v_lshl_add_u32", t[16], t[15], 3, t[16])
        p.valu("v_add_u32", t[16], DIAG, t[16])
        p.valu("v_mov_b32", t[17], LDS_BYTES)
        p.valu("v_cmp_gt_u32", "vcc", 3, t[13])
        p.valu("v_cndmask_b32", t[16], t[17], t[16], "vcc")
        p.valu("v_cmp_eq_u32", "vcc", 0, t[14])
        p.valu("v_cndmask_b32", self.vC[0], t[17], t[16], "vcc")
        p.valu("v_cndmask_b32", self.vC[1], t[16], t[17], "vcc")
        p.valu("v_lshlrev_b32", self.vL, 4, lane)
        p.valu("v_and_b32", t[13], 0x23, lane)
        p.valu("v_bfe_u32", t[14], lane, 2, 2)
        p.valu("v_lshl_add_u32", t[13], t[14], 3, t[13])
        p.valu("v_bfe_u32", t[14], lane, 4, 1)
        p.valu("v_lshl_add_u32", t[13], t[14], 2, t[13])
        p.valu("v_lshlrev_b32", self.vA[0], 4, t[13])
        p.valu("v_add_u32", self.vA[1], 0x10000, self.vA[0])
        p.valu("v_add_u32", self.vA[2], 0x20000, self.vA[0])
        p.salu("s_lshl_b32", sSTAMP, S(2), 3)
        p.salu("s_add_u32", sSTAMP, sSTAMP, sWAVE)
        p.salu("s_lshl_b32", sLNB, sSTAMP, 10)
        p.salu("s_add_u32", sLNB, sLNB, WS_LN)
        p.salu("s_mul_i32", sSTAMP, sSTAMP, 16 * o.get('stamps', 1))
        p.salu("s_add_u32", sSTAMP, sSTAMP, WS_STAMP)
        if o.get('stamps'):
            for i in range(4):
                p.valu("v_mov_b32", V(188 + i), S(68 + i))
            p.raw("s_mov_b64 exec, 1")
            p.buf_store("buffer_store_dwordx4", V(188, 4), self.vA[0], sWS, sSTAMP, 0)
            p.raw("s_mov_b64 exec, -1")
            self.nstamp += 1
        self.stamp(192)
        p.salu("s_mul_i32", sT3, sX0, 192)
        for ti in range(4):
            p.salu("s_add_u32", sT0, sY0, 8 * ti)
            p.salu("s_mul_i32", sT0, sT0, ROWB)
            p.salu("s_add_u32", sTILE[ti], sT0, sT3)
        p.salu("s_mul_i32", sW2B, sWAVE, 9216)
        p.salu("s_mov_b32", sK, KH * 0x10001)
        p.salu("s_mov_b32", sM, 0xFFF8FFF8)
        p.salu("s_mov_b32", sCNT, 400000)
        p.valu("v_lshrrev_b32", t[28], 5, lane)
        p.valu("v_lshlrev_b32", self.vW1r, 8, t[28])
        for sh, w, up in ((2, 2, 6), (4, 1, 5), (0, 1, 4), (1, 1, 3)):
            p.valu("v_bfe_u32", t[28], lane, sh, w)
            p.valu("v_lshl_add_u32", self.vW1r, t[28], up, self.vW1r)
        p.salu("s_and_b32", sT0, sWAVE, 3)
        p.salu("s_lshl_b32", sT0, sT0, 10)
        p.salu("s_add_u32", sT0, sT0, W1F)
        p.valu("v_add_u32", self.vW1r, sT0, self.vW1r)
        p.valu("v_add_u32", self.vW1w, sT0, self.vA[0])
        ad = [t[30], t[31]]
        for r in range(2):
            p.valu("v_mul_u32_u24", t[20], 683, di[r])
            p.valu("v_lshrrev_b32", t[20], 16, t[20])
            p.valu("v_mul_u32_u24", t[21], 96, t[20])
            p.valu("v_sub_u32", t[21], di[r], t[21])
            p.valu("v_mul_u32_u24", t[22], 11, t[20])
            p.valu("v_lshrrev_b32", t[22], 5, t[22])
            p.valu("v_mul_u32_u24", t[23], 3, t[22])
            p.valu("v_sub_u32", t[23], t[20], t[23])
            p.valu("v_mul_u32_u24", t[23], 12, t[23])
            p.valu("v_lshrrev_b32", t[24], 3, t[21])
            p.valu("v_add_u32", t[23], t[23], t[24])
            p.valu("v_mul_u32_u24", t[23], 192, t[23])
            p.valu("v_lshl_add_u32", t[23], t[22], 6, t[23])
            p.valu("v_and_b32", t[24], 7, t[21])
            p.valu("v_lshl_add_u32", t[23], t[24], 3, t[23])
            p.valu("v_add_u32", ad[r], DIAG, t[23])
        later = p.vm_seq - dv_tok
        if early:
            p.raw(f"s_waitcnt vmcnt({12 + later})")
            self.cond("s_cmp_eq_u32", sT0, sT0, "Lw7w", lambda: None)
            p.salu("s_sub_u32", sT0, sWAVE, 4)
            self.cond("s_cmp_lt_u32", sT0, 3, "Lw7x", lambda: p.raw(f"s_waitcnt vmcnt({6 + later})"))
        else:
            p.raw(f"s_waitcnt vmcnt({6 + later})")
            self.cond("s_cmp_lg_u32", sWAVE, 7, "Lw7w", lambda: p.raw("s_waitcnt vmcnt(0)"))
        for r in range(2):
            p.p_vm[dv[r].b] = None
        ch = [V(160, 2), V(162, 2)]
        for r in range(2):
            p.valu("v_and_b32", t[10], 1, di[r])
            p.valu("v_lshlrev_b32", t[10], 4, t[10])
            p.valu("v_lshlrev_b32", dv[r], t[10], dv[r])
            p.valu("v_and_b32", t[10], 2, di[r])
            p.valu("v_cmp_eq_u32", "vcc", 0, t[10])
            p.valu("v_cndmask_b32", ch[r].sub(0), 0, dv[r], "vcc")
            p.valu("v_sub_u32", ch[r].sub(1), dv[r], ch[r].sub(0))
            p.ds_write("ds_write_b64", ad[r], ch[r])
        if not early:
            self.cond("s_cmp_lt_u32", sWAVE, 4, "Lnow1a", lambda: [self.w1_dma(u) for u in range(6)])
        self.rows_dma(range(5, 9), "Lskipx1")
        p.raw("s_waitcnt vmcnt(10) lgkmcnt(0)")
        self.cond("s_cmp_ge_u32", sWAVE, 4, "Lwa", lambda: p.raw("s_waitcnt vmcnt(4)"))
        p.vm_done, p.lgkm_done = p.vm_seq, p.lgkm_seq
        p.barrier()
        self.stamp(192)

    def w1_dma(self, u):
        p = self.p
        p.salu("s_and_b32", sT0, sWAVE, 3)
        p.salu("s_add_u32", sT0, sT0, 4 * u)
        p.salu("s_mul_i32", sT1, sT0, 43)
        p.salu("s_lshr_b32", sT1, sT1, 8)
        p.salu("s_lshl_b32", sT2, sT0, 10)
        p.salu("s_add_u32", "m0", sT2, W1F)
        p.salu("s_mul_i32", sT3, sT1, 6)
        p.salu("s_sub_u32", sT0, sT0, sT3)
        p.salu("s_lshl_b32", sT0, sT0, 1)
        p.salu("s_sub_u32", sT2, sT0, 5)
        p.salu("s_cmp_ge_u32", sT0, 6)
        p.salu("s_cselect_b32", sT0, sT2, sT0)
        p.salu("s_mul_i32", sT0, sT0, 12288)
        p.salu("s_lshl_b32", sT1, sT1, 6)
        p.salu("s_add_u32", sT0, sT0, sT1)
        return p.dma(self.vW1g, sW1, sT0)

    def sentinels(self):
        p, lane = self.p, self.vLane
        t = [V(174 + i) for i in range(18)]
        sv = V(164, 4)

        def bias():
            p.salu("s_lshl_b32", sT1, sT0, 1)
            p.valu("v_mul_u32_u24", t[0], 192, lane)
            p.valu("v_lshlrev_b32", t[1], 1, lane)
            for i in range(6):
                p.salu("s_add_u32", sT2, sT1, 64 * 192 * i)
                p.raw(f"buffer_load_ushort {t[2 + i]}, {t[0]}, {sW2}, {sT2} offen")
                p.raw(f"buffer_load_ushort {t[8 + i]}, {t[1]}, {sBE}, 0 offen offset:{128 * i}")

        def body():
            for i in range(4):
                p.valu("v_mov_b32", sv.sub(i), -1)
            p.valu("v_lshlrev_b32", t[0], 12, lane)
            p.valu("v_add_u32", t[1], 64 * 4096, t[0])
            p.valu("v_cmp_gt_u32", "vcc", 32, lane)
            p.valu("v_mov_b32", t[2], OOB_V)
            p.valu("v_cndmask_b32", t[1], t[2], t[1], "vcc")
            p.salu("s_lshl_b32", sT0, S(2), 4)
            p.raw(f"buffer_store_dwordx4 {sv}, {t[0]}, {sWS}, {sT0} offen sc1")
            p.raw(f"buffer_store_dwordx4 {sv}, {t[1]}, {sWS}, {sT0} offen sc1")
            p.salu("s_add_u32", sT0, sT0, WS_TOT)
            p.salu("s_cmp_lt_u32", S(2), 96)
            p.salu("s_cselect_b32", sT0, sT0, OOB_S)
            p.valu("v_lshlrev_b32", t[17], 11, lane)
            p.raw(f"s_mov_b64 exec, {hex((1 << REP) - 1)}")
            p.raw(f"buffer_store_dwordx4 {sv}, {t[17]}, {sWS}, {sT0} offen sc1")
            p.raw("s_mov_b64 exec, -1")
            p.raw(f"s_getpc_b64 {sEX}")
            p.lines.append("Lpc:")
            p.salu("s_lshr_b32", sT0, S(2), 3)
            p.salu("s_and_b32", sT0, sT0, 15)
            p.salu("s_lshl_b32", sT0, sT0, 13)
            p.valu("v_lshlrev_b32", t[2], 7, lane)
            p.valu("v_add_u32", t[2], sT0, t[2])
            p.valu("v_min_u32", t[2], "Lend-Lpc", t[2])
            if self.o.get('pf', 1):
                p.raw(f"global_load_dword {self.tq[4]}, {t[2]}, {sEX}")
            p.salu("s_sub_u32", sT0, S(2), 96)
            p.salu("s_cmp_lt_u32", sT0, 96)
            p.raw("s_cbranch_scc0 Lnobias")
            bias()
            p.lines.append("Lnobias:")
            p.nop(2)
        self.cond("s_cmp_lg_u32", sWAVE, 7, "Lnosent", body)
        self.sent_tok = p.vm_seq

    def bias_finish(self):
        p = self.p
        t = [V(174 + i) for i in range(18)]

        def body():
            p.salu("s_sub_u32", sT0, S(2), 96)
            p.salu("s_cmp_lt_u32", sT0, 96)
            p.raw("s_cbranch_scc0 Lnobias2")
            p.raw(f"s_waitcnt vmcnt({p.vm_seq - self.sent_tok})")
            for i in range(12):
                p.valu("v_lshlrev_b32", t[2 + i], 16, t[2 + i])
            p.valu("v_mul_f32", t[0], t[2], t[8])
            for i in range(1, 6):
                p.valu("v_fmac_f32", t[0], t[2 + i], t[8 + i], rmw=True)
            self.lane_sum64(t[0], t[1])
            p.salu("s_lshl_b32", sT1, sT0, 2)
            p.salu("s_add_u32", sT1, sT1, WS_TOT + 1536)
            p.raw(f"s_mov_b64 exec, {hex((1 << REP) - 1)}")
            p.raw(f"buffer_store_dword {t[0]}, {t[17]}, {sWS}, {sT1} offen sc1")
            p.raw("s_mov_b64 exec, -1")
        self.cond("s_cmp_lg_u32", sWAVE, 7, "Lnobias2", body)
        self.sent_tok = p.vm_seq

    def init_counter(self):
        p = self.p

        def body():
            p.raw(f"s_waitcnt vmcnt({p.vm_seq - self.sent_tok})")
            p.raw(f"v_mov_b32 {self.tq[4]}, 1")
            p.raw("s_mov_b64 exec, 1")
            p.raw(f"buffer_atomic_add {self.tq[4]}, {self.vL}, {sDBG}, 0 offen")
            p.raw("s_mov_b64 exec, -1")
        self.cond("s_cmp_lg_u32", sWAVE, 7, "Lnoinit", body)

    def ln_stats(self):
        p, C, ls = self.p, self.CA, self.ls
        s2, q2 = ls[0], ls[1]
        ops = [lambda: p.valu("v_pk_add_f32", s2, C.sub(0, 2), C.sub(2, 2)),
               lambda: p.valu("v_pk_mul_f32", q2, C.sub(0, 2), C.sub(0, 2))]
        for i in range(1, 24):
            if i >= 2:
                ops.append(lambda i=i: p.valu("v_pk_add_f32", s2, s2, C.sub(2 * i, 2)))
            ops.append(lambda i=i: p.valu("v_pk_fma_f32", q2, C.sub(2 * i, 2), C.sub(2 * i, 2), q2))
        return ops

    def ln_scalar(self):
        p, ls = self.p, self.ls
        s, s1, q, q1, rs, off = [ls[i // 2].sub(i % 2) for i in range(6)]
        return [
            (4, lambda: p.valu("v_add_f32", s, s, s1)),
            (4, lambda: p.valu("v_add_f32", q, q, q1)),
            (4, lambda: p.swap32(s, q)),
            (4, lambda: p.valu("v_add_f32", s, s, q)),
            (4, lambda: p.valu("v_mul_f32", s, f2u(1.0 / 96), s)),
            (4, lambda: p.valu("v_mov_b32", q, s)),
            (4, lambda: p.swap32(s, q)),
            (4, lambda: p.valu("v_fma_f32", q, f"-{s}", s, q)),
            (4, lambda: p.valu("v_max_f32", q, 0, q)),
            (4, lambda: p.valu("v_add_f32", q, f2u(1e-5), q)),
            (8, lambda: p.valu("v_rsq_f32", q, q)),
            (4, lambda: p.valu("v_mul_f32", rs, f2u(GA), q)),
            (4, lambda: p.valu("v_mul_f32", off, s, rs)),
        ]

    def ln_norm(self):
        p, C, ro = self.p, self.CA, self.ls[2]
        return [lambda i=i: p.valu("v_pk_fma_f32", C.sub(2 * i, 2), C.sub(2 * i, 2), ro, ro,
                                   mods="op_sel:[0,0,1] op_sel_hi:[1,0,1] neg_lo:[0,0,1] neg_hi:[0,0,1]")
                for i in range(24)]

    def ln_pack(self, t):
        p, C = self.p, self.CA
        return [(4, lambda i=i: p.valu("v_cvt_pk_bf16_f32", self.LN[t].sub(i), C.sub(2 * i), C.sub(2 * i + 1)))
                for i in range(24)]

    def conv_items(self, ti, pre=None):
        p = self.p
        items = []
        order = (0, 1, 3, 2) if ti % 2 == 0 else (2, 3, 1, 0)
        for k, cl in enumerate(order):
            for dx in range(3):
                for cq in range(3):
                    cb = 4 * cq + cl
                    acc = self.CA.sub(4 * cb, 4)
                    hook = None
                    if cq == 0 and k:
                        hook = (lambda dx=dx, d=16 * (cl ^ order[k - 1]): p.valu("v_xor_b32", self.vB[dx], d, self.vB[dx]))
                    elif not items:
                        hook = pre
                    off = (dx * 12 + cb) * 192
                    ra = dict(parts=[("ds_read_b64", self.vC[0], off, 0, 2), ("ds_read_b64", self.vC[1], off, 2, 2)], ring=None, hook=None)
                    items.append(dict(reads=[ra, rd128(self.vB[dx], 64 * cq, self.rb, hook)], w=self.o.get('cw', 0.5),
                                      emit=(lambda a, b, acc=acc, dx=dx: p.mfma(acc, a, b, acc if dx else 0))))
        return items

    def gemm1_32(self, j, ln, pixel_lane, need):
        p, y = self.p, self.Y
        items = []
        for s6 in range(6):
            b = ln.sub(4 * s6, 4)
            if pixel_lane:
                e = (lambda w, b=b, s6=s6: p.mfma(y, w, b, y if s6 else 0))
            else:
                e = (lambda w, b=b, s6=s6: p.mfma(y, b, w, y if s6 else 0))
            items.append(dict(reads=[self.frag(W1F + (j * 6 + 3 * (s6 & 1) + (s6 >> 1)) * 1024)], emit=e, need=need))
        return items

    def period_fill(self, y, n, G=None, sq=None, first=False, tag=None, ph=1, fl=False):
        o, ge = self.o, self.ge
        a, d = ge.front(n, o.get('grp', 2), G is None)
        if fl:
            d = d[:len(d) // 2] + [(0, self.flush)] + d[len(d) // 2:] + [(0, self.flush)]
        t0, t1 = split_cost(a + ge.mid(n), o.get(f'ds{ph}', 96 if ph == 1 else 64))
        if G is not None:
            ba, bd = ge.back_pack(G, n)
            if tag:
                ba, bd = [x + (tag,) for x in ba], [x + (tag,) for x in bd]
            t1a, t1b = split_cost(t1, sum(x[0] for x in t1) - o.get(f'de{ph}', 32 if ph == 1 else 16))
            return ge.cvts(y, n) + merge(t0, d) + t1a + merge(t1b, bd) + ba
        ba, bd = ge.back_stat(sq, None, n, first, o.get('mix', 1))
        tl = t1 + ba
        t1a, t1b = split_cost(tl, sum(x[0] for x in tl) - o.get('des', 64))
        return ge.cvts(y, n) + merge(t0, d) + t1a + merge(t1b, bd)

    @staticmethod
    def mix_in(s, ops, lo=8):
        s['fill'] = s['fill'][:lo] + merge(s['fill'][lo:], ops)

    @staticmethod
    def spread(segs, s0, fns, per):
        for k, f in enumerate(fns):
            segs[s0 + k // per]['vm'].append(f)

    def ladder(self, segs, a, b, fr):
        for f, lv in zip(fr, range(len(fr) - 1, -1, -1)):
            h = a + f * (b - a)
            if h < len(segs):
                insert_at(segs, h, lambda lv=lv: self.setprio(lv))

    def swaps(self, a, b):
        return [(4, lambda i=i: self.p.swap16(a.sub(i), b.sub(i))) for i in range(4)]

    def ws_frag(self, f, fn):
        p = self.p
        if f == 0:
            return fn(sLNB)
        p.salu("s_add_u32", sT3, sLNB, f << 21)
        return fn(sT3)

    def spill_ln(self, ti):
        p = self.p
        return [lambda k=k: self.ws_frag(6 * ti + k, lambda so: p.buf_store(
            "buffer_store_dwordx4", self.LN[ti].sub(4 * k, 4), self.vL, sWS, so, flags=self.o.get('ssf', ''))) for k in range(6)]

    def touch_x(self, tiles, a, b):
        p, lane = self.p, self.vLane
        p.valu("v_and_b32", a, 31, lane)
        p.valu("v_min_u32", a, 23, a)
        p.valu("v_lshlrev_b32", a, 7, a)
        p.valu("v_lshrrev_b32", b, 5, lane)
        p.valu("v_mul_u32_u24", b, ROWB, b)
        p.valu("v_add_u32", a, a, b)
        p.salu("s_mov_b32", "m0", LDS_BYTES)
        p.nop(1)
        for ti in tiles:
            p.raw(f"buffer_load_dword {a}, {sX}, {sTILE[ti]} offen lds")
            p.vm_seq += 1

    def w2_addr(self, a, b):
        p, lane = self.p, self.vLane
        p.valu("v_lshrrev_b32", a, 2, lane)
        p.valu("v_mul_u32_u24", a, 192, a)
        p.valu("v_and_b32", b, 3, lane)
        p.valu("v_lshl_add_u32", a, b, 4, a)

    def w2_fetch(self, a, u):
        p = self.p
        p.salu("s_add_u32", "m0", sPRIV, u * 1024)
        p.salu("s_add_u32", sT0, sW2B, (u // 3) * 3072 + (u % 3) * 64)
        p.dma(a, sW2, sT0)

    def startup_routines(self):
        main = self.p
        self.vW1g, self.vW1r, self.vW1w = V(145), V(146), V(147)
        a, b = V(148), V(149)

        def w1_transform(us, fr):
            p = self.p
            p.valu("v_add_u32", a, 65536, self.vW1r)
            p.valu("v_add_u32", b, 65536, self.vW1w)
            for k, u in enumerate(us):
                for i in range(2):
                    p.ds_read("ds_read_b64_tr_b16", fr[k].sub(2 * i, 2), self.vW1r if u < 16 else a, (u % 16) * 4096 + i * 512)
            for k, u in enumerate(us):
                p.ds_write("ds_write_b128", self.vW1w if u < 16 else b, fr[k], (u % 16) * 4096)
            p.wait_all(vm=False)

        for name in ("Lconv0", "Lln0", "Lw1a", "Lw1i", "Lw1b"):
            self.p = p = Prog()
            p.lines.append(f"{name}:")
            if name == "Lw1a":
                p.raw("s_waitcnt vmcnt(0)")
                w1_transform(range(6), [V(72 + 4 * u, 4) for u in range(6)])
            elif name == "Lw1i":
                for u in range(6, 18):
                    self.w1_dma(u)
            elif name == "Lw1b":
                p.raw("s_waitcnt vmcnt(0)")
                w1_transform(range(6, 18), [V(72 + 4 * u, 4) for u in range(12)])
            elif name == "Lconv0":
                s = seg()
                s['mf'] = self.conv_items(0)
                s['cl'] = 1
                self.run([s], self.ring1)
                p.nop(12)
            else:
                for f in self.ln_stats():
                    f()
                for _, f in self.ln_scalar():
                    f()
                for f in self.ln_norm():
                    f()
                for _, f in self.ln_pack(0):
                    f()
                p.nop(2)
            p.raw(f"s_setpc_b64 {sRET}")
            main.lines += p.lines
        self.p = main

    def phase1(self):
        p, o, lane = self.p, self.o, self.vLane

        def call_if(older, names, tag):
            self.cond("s_cmp_lt_u32" if older else "s_cmp_ge_u32", sWAVE, 4, tag,
                      lambda: [p.raw(n if n.startswith("s_") else f"s_call_b64 {sRET}, {n}") for n in names], 0)

        p.raw("s_setprio 2")
        call_if(True, ["Lconv0", "Lln0", "s_waitcnt vmcnt(0)"], "Lsu0")
        call_if(False, ["Lw1a", "Lw1i"], "Lsu1")
        p.barrier()
        self.stamp(192)
        call_if(False, [f"s_setprio {o.get('sp', 3)}", "Lconv0", "s_barrier", "Lw1b", "s_barrier", "Lln0"], "Lsu2")
        self.sentinels()
        self.stamp(192)
        p.lds_age = o.get('age1', 24)
        NS = 50
        P = [seg() for _ in range(NS)]
        c0s = [o.get('c1', 6), o.get('cn', 4), o.get('cn', 4)]
        conv = {}

        def ready():
            assert self.nrow % 8 == 0 and self.nrow > self.nready, (self.nrow, self.nready)
            self.nready = self.nrow
            p.wait(vm=self.x_tok)
            p.barrier()

        def advance_rows():
            a, b = self.tq[0], self.tq[1]
            p.valu("v_add_u32", a, 8 * RP - W2R, self.vB[0])
            p.valu("v_subrev_u32", b, 10 * RP, a)
            p.valu("v_min_u32", a, a, b)
            p.valu("v_add_u32", a, W2R, a)
            p.valu("v_sub_u32", b, a, self.vB[0])
            for k in range(3):
                p.valu("v_add_u32", self.vB[k], b, self.vB[k])

        for ti in range(1, 4):
            s0, first = 12 * (ti - 1), c0s[ti - 1]
            for k, it in enumerate(self.conv_items(ti, pre=ready)):
                conv.setdefault(s0 + first + k * (10 - first) // 36, []).append(it)
        ndc, ndn, ndk = o.get('ndc', 4), o.get('ndn', 5), o.get('ndk', 5)
        for s in range(NS):
            S_ = P[s]
            e = s - 1
            if 0 <= e < 36:
                S_['fill'] = self.period_fill(regs(self.Y), ndc if s in conv else ndn, sq=self.SQ[e % 12], first=e < 12)
            elif 36 <= e < 48:
                S_['fill'] = self.period_fill(regs(self.Y), ndk, G=regs(self.S3[e - 36]), fl=e == 47)
            g1 = self.gemm1_32(s % 12, self.LN[s // 12], s >= 36, 8 if s else 0) if s < 48 else []
            ex = conv.get(s, [])
            if s - 2 >= 36:
                G, sq = self.S3[s - 38], self.SQ[s - 38]
                tr = [dict(reads=[], tag='tr' if q else None, w=0.5,
                           emit=(lambda q=q, G=G: p.mfma(self.D0, G.sub(4 * q, 4), self.idf[q], self.D0 if q else 0, 'f16'))) for q in range(2)]
                ops = [x + ('tr',) for x in self.swaps(G.sub(0, 4), G.sub(4, 4))]
                ops += [(4, lambda i=i, sq=sq: p.valu("v_fmac_f32", sq, self.D0.sub(i), self.D0.sub(i), rmw=True)) for i in range(16)]
                self.mix_in(S_, ops, 12)
                S_['mf'] = tr + g1
                S_['tail'] = o.get('t1', 24) if g1 else 10 ** 6
            elif ex:
                nf, nl = 1, 2
                mid = ex[nf:len(ex) - nl]
                m = []
                for k in range(6):
                    m.append(g1[k])
                    if k < 5:
                        m += mid[k * len(mid) // 5:(k + 1) * len(mid) // 5]
                S_['mf'] = ex[:nf] + m + ex[len(ex) - nl:]
                S_['cl'] = o.get('clc', 1)
            else:
                S_['mf'] = g1
                S_['head'], S_['tail'] = 32, o.get('t1', 24)
        p.salu("s_add_u32", sYB, sYB, 8)
        p.salu("s_mul_i32", sYB, sYB, ROWB)
        p.salu("s_cmp_eq_u32", sWAVE, 7)
        p.salu("s_cselect_b32", sXM, LDS_BYTES, sXM)
        f0 = o.get('f0', 1)
        P[f0]['end'] += [lambda: call_if(True, ["s_barrier"], "Lsu3"), advance_rows]
        P[2]['end'].append(lambda: call_if(True, ["s_barrier"], "Lsu4"))
        for ti in range(3):
            fns = [lambda r=r: self.row_dma_fast(r) for r in range(8 * ti + 9, 8 * ti + 17)]
            self.spread(P, f0 + 1 if ti == 0 else 12 * ti - 2, fns, o.get('per0', 4) if ti == 0 else o.get('pern', 3))
        for ti in range(1, 4):
            s0 = 12 * (ti - 1)
            P[s0 + 9]['tail'] = 32
            P[s0 + 9]['pb'] += self.ln_stats()
            P[s0 + 9]['end'] += [p.barrier] + ([advance_rows] if ti < 3 else [])
            self.mix_in(P[s0 + 10], self.ln_scalar())
            P[s0 + 10]['pb'] += self.ln_norm()
            self.mix_in(P[s0 + 11], self.ln_pack(ti))
        self.spread(P, o.get('sl0', 4), self.spill_ln(0), 1)
        self.spread(P, o.get('sl1', 14), self.spill_ln(1), 1)
        P[14]['end'].append(self.bias_finish)
        P[20]['end'].append(self.init_counter)
        u = self.vX
        P[33]['end'].append(lambda: self.w2_addr(u, self.tq[0]))
        self.spread(P, 34, [lambda k=k: self.w2_fetch(u, k) for k in range(7)], 2)
        self.mix_in(P[36], self.ident32())
        for k, ti in zip(ints(o.get('ts', '38')), ints(o.get('tt', '0,1,2,3'))):
            P[k]['end'].append(lambda ti=ti: self.touch_x([ti], self.tq[0], self.tq[1]))
        fr = flts(o.get('pf1', '0,0.5,0.85'))
        marks = [0, c0s[0] - 0.5, 10, 12 + c0s[1] - 0.5, 22, 24 + c0s[2] - 0.5, 34] + list(range(34 + o.get('lc', 4), 50, o.get('lc', 4))) + [50]
        for a, b in zip(marks, marks[1:]):
            self.ladder(P, a, b, fr)
        self.run(P, self.ring1)
        p.lds_age = 0
        p.raw("s_setprio 3")
        t = [V(128 + i) for i in range(16)]
        p.valu("v_and_b32", t[8], 0x33, lane)
        p.valu("v_bfe_u32", t[9], lane, 2, 1)
        p.valu("v_lshl_add_u32", t[8], t[9], 3, t[8])
        p.valu("v_bfe_u32", t[9], lane, 3, 1)
        p.valu("v_lshl_add_u32", t[8], t[9], 2, t[8])
        p.valu("v_lshl_add_u32", t[8], t[8], 2, sPRIV)
        for j in range(0, 12, 2):
            p.swap32(self.SQ[j], self.SQ[j + 1])
            p.valu("v_add_f32", self.SQ[j], self.SQ[j], self.SQ[j + 1])
            p.ds_write("ds_write_b32", t[8], self.SQ[j], TABO + j * 128)
        p.valu("v_mov_b32", t[0], CNT)
        p.valu("v_mov_b32", t[1], 1)
        p.wait_all(vm=False)
        p.raw("s_mov_b64 exec, 1")
        p.raw(f"ds_add_rtn_u32 {t[2]}, {t[0]}, {t[1]}")
        p.raw("s_mov_b64 exec, -1")
        p.raw("s_waitcnt lgkmcnt(0)")
        p.valu("v_readfirstlane_b32", sT0, t[2])

        def publish():
            pv = [V(168 + 8 * w, 8) for w in range(7)] + [V(120, 8)]
            p.valu("v_min_u32", t[3], 47, lane)
            p.valu("v_lshlrev_b32", t[4], 5, t[3])
            p.valu("v_add_u32", t[4], W2R + TABO, t[4])
            for w in range(8):
                for k in range(2):
                    p.ds_read("ds_read_b128", pv[w].sub(4 * k, 4), t[4], 9216 * w + 16 * k)
            p.valu("v_lshlrev_b32", t[6], 13, t[3])
            p.valu("v_add_u32", t[7], 4096, t[6])
            for st in (1, 2, 4):
                for w in range(0, 8, 2 * st):
                    for i in range(8):
                        p.valu("v_add_f32", pv[w].sub(i), pv[w].sub(i), pv[w + st].sub(i))
            for i in range(8):
                p.valu("v_min_u32", pv[1].sub(i), -2, pv[0].sub(i))
            p.salu("s_lshl_b32", sT0, S(2), 4)
            p.buf_store("buffer_store_dwordx4", pv[1].sub(0, 4), t[6], sWS, sT0, flags="sc1")
            p.buf_store("buffer_store_dwordx4", pv[1].sub(4, 4), t[7], sWS, sT0, flags="sc1")
            p.ds_write("ds_write_b32", t[0], t[1], 4)
            p.raw("s_waitcnt lgkmcnt(0)")
            p.nop(2)
        self.cond("s_cmp_lg_u32", sT0, 7, "Lnopub", publish)
        self.stamp(192)

    def ident32(self):
        p, lane = self.p, self.vLane
        a, b, c = self.tq[0], self.tq[1], self.tq[2]
        ops = [lambda: p.valu("v_and_b32", a, 1, lane),
               lambda: p.valu("v_lshlrev_b32", a, 4, a),
               lambda: p.valu("v_mov_b32", b, 0x3C00),
               lambda: p.valu("v_lshlrev_b32", a, a, b),
               lambda: p.valu("v_lshrrev_b32", b, 3, lane),
               lambda: p.valu("v_xor_b32", b, b, lane),
               lambda: p.valu("v_and_b32", b, 4, b),
               lambda: p.valu("v_bfe_u32", c, lane, 3, 2),
               lambda: p.valu("v_lshl_add_u32", b, b, 1, 0),
               lambda: p.valu("v_lshl_add_u32", b, c, 1, b),
               lambda: p.valu("v_bfe_u32", c, lane, 1, 1),
               lambda: p.valu("v_add_u32", b, b, c)]
        for i in range(8):
            ops.append(lambda i=i: (p.valu("v_cmp_eq_u32", "vcc", i, b), p.valu("v_cndmask_b32", self.idf[i // 4].sub(i % 4), 0, a, "vcc")))
        return [(4, f) for f in ops]

    def poll_regs(self):
        rv = [V(156, 4), V(160, 4), V(164, 4), V(240, 4)]
        tv = V(156, 6)
        gv = [V(244), V(245), V(246)]
        t = [V(247), V(255), V(162), V(163), V(164), V(165), V(166), V(167)]
        return rv, tv, gv, t

    def poll_loads(self, p, reducer):
        rv, tv, gv, t = self.poll_regs()
        if reducer:
            p.valu("v_lshlrev_b32", t[0], 4, self.vLane)
            p.salu("s_lshl_b32", sT1, S(2), 12)
            for i in range(4):
                p.buf_load("buffer_load_dwordx4", rv[i], t[0], sWS, sT1, 1024 * i, flags="sc1")
        else:
            p.valu("v_lshlrev_b32", t[0], 3, self.vLane)
            p.salu("s_and_b32", sT1, S(2), REP - 1)
            p.salu("s_lshl_b32", sT1, sT1, 11)
            p.salu("s_add_u32", sT1, sT1, WS_TOT)
            for i in range(3):
                p.buf_load("buffer_load_dwordx2", tv.sub(2 * i, 2), t[0], sWS, sT1, 512 * i, flags="sc1")

    def poll_routine(self):
        main, self.p = self.p, Prog()
        p = self.p
        rv, tv, gv, t = self.poll_regs()
        ret = f"s_setpc_b64 {sRET}"
        p.lines.append("Lpoll:")
        p.raw("s_waitcnt vmcnt(0)")
        p.salu("s_cmp_eq_u32", sROLE, 2)
        p.raw("s_cbranch_scc1 LpollC")
        allr = [rv[i].sub(k) for i in range(4) for k in range(4)]
        p.valu("v_max_u32", t[1], allr[0], allr[1])
        for i in range(2, 16, 2):
            p.valu("v_max3_u32", t[1], t[1], allr[i], allr[i + 1])
        p.valu("v_cmp_eq_u32", "vcc", -1, t[1])
        p.nop(5)
        p.raw("s_cbranch_vccz LpollR")
        self.poll_loads(p, True)
        p.raw(ret)
        self.p = p2 = Prog()
        p2.lines.append("LpollR:")
        p2.raw("s_setprio 3")
        for k in range(4):
            p2.valu("v_add_f32", rv[0].sub(k), rv[0].sub(k), rv[1].sub(k))
            p2.valu("v_add_f32", rv[3].sub(k), rv[2].sub(k), rv[3].sub(k))
            p2.valu("v_add_f32", rv[3].sub(k), rv[0].sub(k), rv[3].sub(k))
        for k in range(4):
            self.lane_sum64(rv[3].sub(k), t[1])
            p2.valu("v_min_u32", rv[3].sub(k), -2, rv[3].sub(k))
        p2.salu("s_lshl_b32", sT1, S(2), 4)
        p2.salu("s_add_u32", sT1, sT1, WS_TOT)
        p2.valu("v_lshlrev_b32", t[1], 11, self.vLane)
        p2.raw(f"s_mov_b64 exec, {hex((1 << REP) - 1)}")
        p2.buf_store("buffer_store_dwordx4", rv[3], t[1], sWS, sT1, flags="sc1")
        p2.raw("s_mov_b64 exec, -1")
        p2.salu("s_mov_b32", sROLE, 2)
        self.poll_loads(p2, False)
        p2.raw(ret)
        self.p = p3 = Prog()
        p3.lines.append("LpollC:")
        p3.valu("v_max3_u32", t[1], tv.sub(0), tv.sub(1), tv.sub(2))
        p3.valu("v_max3_u32", t[1], t[1], tv.sub(3), tv.sub(4))
        p3.valu("v_max_u32", t[1], t[1], tv.sub(5))
        p3.valu("v_cmp_eq_u32", "vcc", -1, t[1])
        p3.nop(5)
        p3.raw("s_cbranch_vccz LpollS")
        self.poll_loads(p3, False)
        p3.raw(ret)
        self.p = p4 = Prog()
        p4.lines.append("LpollS:")
        p4.raw("s_setprio 3")
        p4.salu("s_mov_b32", sT0, f2u(1.0 / (GA * GA)))
        p4.valu("v_mov_b32", t[2], f2u(1e-6))
        for i in range(6):
            p4.valu("v_fma_f32", tv.sub(i), tv.sub(i), sT0, t[2])
        for i in range(6):
            p4.valu("v_sqrt_f32", tv.sub(i), tv.sub(i))
        p4.valu("v_add_f32", t[3], tv.sub(0), tv.sub(1))
        for i in range(2, 6):
            p4.valu("v_add_f32", t[3], t[3], tv.sub(i))
        self.lane_sum64(t[3], t[1])
        p4.salu("s_mov_b32", sT0, f2u(1.0 / 384))
        p4.valu("v_fma_f32", t[3], t[3], sT0, t[2])
        p4.valu("v_rcp_f32", t[3], t[3])
        p4.valu("v_mov_b32", t[2], f2u(1.0 / GA))
        p4.valu("v_mul_f32", t[3], t[3], t[2])
        for i in range(3):
            p4.valu("v_lshlrev_b32", t[4], 16, gv[i])
            p4.valu("v_and_b32", t[5], 0xFFFF0000, gv[i])
            p4.valu("v_mul_f32", tv.sub(2 * i), tv.sub(2 * i), t[3])
            p4.valu("v_mul_f32", tv.sub(2 * i + 1), tv.sub(2 * i + 1), t[3])
            p4.valu("v_fma_f32", t[4], t[4], tv.sub(2 * i), t[2])
            p4.valu("v_fma_f32", t[5], t[5], tv.sub(2 * i + 1), t[2])
            p4.valu("v_cvt_pk_f16_f32", gv[i], t[4], t[5])
        p4.salu("s_mov_b32", sROLE, 0)
        p4.raw(ret)
        self.p = main
        for q in (p, p2, p3, p4):
            main.lines += q.lines

    def poll_point(self, k):
        p = self.p
        self.cond("s_cmp_eq_u32", sROLE, 0, f"Lpp{k}", lambda: (p.raw(f"s_call_b64 {sRET}, Lpoll"), p.raw(f"s_setprio {self.prio}")))

    def gap(self):
        p, o, lane = self.p, self.o, self.vLane
        rv, tv, gv, t = self.poll_regs()
        wa = self.tq[1]
        p.valu("v_mov_b32", wa, self.vX)
        p.salu("s_mov_b32", sROLE, 0)

        def role():
            p.valu("v_lshlrev_b32", t[1], 2, lane)
            for i in range(3):
                p.buf_load("buffer_load_dword", gv[i], t[1], sGA, 0, 256 * i)
            p.valu("v_mov_b32", t[2], 0)
            p.label("Lpi")
            p.buf_load("buffer_load_dword", t[3], t[2], sDBG, flags="sc1")
            p.valu("v_readfirstlane_b32", sT0, t[3])
            self.spin_guard("Lpix")
            p.salu("s_cmp_lt_u32", sT0, 256)
            p.branch("s_cbranch_scc1", "Lpi")
            p.label("Lpix")
            p.valu("v_min_u32", t[0], 47, lane)
            p.valu("v_lshlrev_b32", t[0], 3, t[0])
            p.salu("s_and_b32", sT1, S(2), REP - 1)
            p.salu("s_lshl_b32", sT1, sT1, 11)
            p.salu("s_add_u32", sT1, sT1, WS_TOT + 1536)
            p.buf_load("buffer_load_dwordx2", V(166, 2), t[0], sWS, sT1, flags="sc1")
            p.valu("v_add_u32", t[1], BT0, t[0])
            p.valu("v_add_u32", t[0], BT1 - 256, t[0])
            p.valu("v_cmp_gt_u32", "vcc", 32, lane)
            p.valu("v_cndmask_b32", t[0], t[0], t[1], "vcc")
            p.ds_write("ds_write_b64", t[0], V(166, 2))
            p.wait_all()
            p.salu("s_cmp_lt_u32", S(2), 96)
            p.salu("s_cselect_b32", sROLE, 1, 2)
            for r in rv:
                for i in range(4):
                    p.valu("v_mov_b32", r.sub(i), -1)
            p.raw(f"s_call_b64 {sRET}, Lpoll")
        self.cond("s_cmp_lg_u32", sWAVE, 0, "Lnorole", role)
        self.setprio(0)
        p.lds_age = o.get('age1', 24)
        NE = len(self.J2)
        P = [seg() for _ in range(NE + 2)]
        ln = self.LN[2]
        for s, S_ in enumerate(P):
            if 0 <= s - 1 < NE:
                S_['fill'] = self.period_fill(regs(self.Y), o.get('ndg', 5), G=regs(self.S2[self.J2[s - 1]]), fl=s == NE)
            if s < NE:
                S_['mf'] = self.gemm1_32(self.J2[s], ln, True, 8 if s else 0)
                S_['head'], S_['tail'] = 32, o.get('t1', 24)
            if 0 <= s - 2 < NE:
                G = self.S2[self.J2[s - 2]]
                self.mix_in(S_, self.swaps(G.sub(0, 4), G.sub(4, 4)))
            S_['end'].append(lambda s=s: self.poll_point(s))
            if o.get('pp2', 0) and 1 <= s <= NE:
                insert_at(P, s + 0.5, lambda s=s: (self.flush(), self.poll_point(100 + s)))
        self.mix_in(P[NE], [x for u in range(3) for x in self.swaps(ln.sub(8 * u, 4), ln.sub(8 * u + 4, 4))])
        ws_ = max(0, NE - o.get('w2b', 3))
        P[ws_]['end'] += [lambda: self.lds_spin(self.tq[2], self.tq[3], 4, 1, "w2"), lambda: self.w2_fetch(wa, 7), lambda: self.w2_fetch(wa, 8)]
        for a in range(0, NE + 2, 3):
            self.ladder(P, a, a + 3, flts(o.get('pfg', '0,0.45,0.8')))
        self.run(P, self.ring2)
        p.lds_age = 0
        self.stamp(224)
        p.raw("s_setprio 2")
        fr = [V(120 + 4 * u, 4) for u in range(9)]
        u = [V(224 + i) for i in range(4)]
        p.valu("v_lshrrev_b32", u[1], 5, lane)
        p.valu("v_lshl_add_u32", u[0], u[1], 9, sPRIV)
        p.valu("v_lshl_add_u32", u[2], u[1], 4, sPRIV)
        p.valu("v_and_b32", u[1], 15, lane)
        p.valu("v_lshl_add_u32", u[0], u[1], 4, u[0])
        p.valu("v_bfe_u32", u[1], lane, 4, 1)
        p.valu("v_lshl_add_u32", u[0], u[1], 3, u[0])
        p.raw("s_waitcnt vmcnt(0)")
        p.vm_done = p.vm_seq
        for k in range(9):
            for i in range(2):
                p.ds_read("ds_read_b64_tr_b16", fr[k].sub(2 * i, 2), u[0], k * 1024 + i * 256)
        g, n = u[1], u[3]
        p.valu("v_lshrrev_b32", g, 4, lane)
        p.valu("v_and_b32", n, 15, lane)
        p.valu("v_mul_u32_u24", self.vG, 192, n)
        p.valu("v_lshl_add_u32", self.vG, g, 4, self.vG)
        p.valu("v_lshlrev_b32", self.vBias, 5, g)
        p.valu("v_and_b32", self.vR, 0x2F, lane)
        p.valu("v_lshlrev_b32", self.vR, 4, self.vR)
        p.valu("v_and_b32", g, 1, g)
        p.valu("v_mul_u32_u24", n, 3072, g)
        p.valu("v_add_u32", self.vA[0], n, self.vR)
        p.valu("v_add_u32", self.vA[1], 0x10000, self.vA[0])
        p.valu("v_add_u32", self.vA[2], 0x20000, self.vA[0])
        p.valu("v_lshl_add_u32", self.vR, g, 21, self.vR)
        p.valu("v_mov_b32", u[1], CNT)
        p.valu("v_mov_b32", u[3], 1)
        p.wait_all(vm=False)
        p.raw("s_mov_b64 exec, 1")
        p.raw(f"ds_add_u32 {u[1]}, {u[3]} offset:8")
        p.raw("s_mov_b64 exec, -1")
        p.lgkm_seq += 1
        w = [V(228 + i) for i in range(4)]
        for k in range(36):
            f, a, b = V(120 + k), w[2 * (k % 2)], w[2 * (k % 2) + 1]
            p.valu("v_lshlrev_b32", a, 16, f)
            p.valu("v_and_b32", b, 0xFFFF0000, f)
            p.valu("v_cvt_pk_f16_f32", f, a, b)
            if k % 12 == 11:
                self.prio = 2
                self.poll_point(200 + k)
        p.valu("v_lshl_add_u32", u[0], lane, 4, sPRIV)

        def finish():
            p.lines.append("Lspin:")
            p.salu("s_cmp_eq_u32", sROLE, 0)
            p.raw("s_cbranch_scc1 Lspinx")
            self.spin_guard("Lspinx")
            p.raw(f"s_call_b64 {sRET}, Lpoll")
            p.raw("s_branch Lspin")
            p.lines.append("Lspinx:")
            for i in range(3):
                p.valu("v_add_u32", t[2 + i], 64 * i, lane)
                p.valu("v_mul_u32_u24", t[5], 2731, t[2 + i])
                p.valu("v_lshrrev_b32", t[5], 16, t[5])
                p.valu("v_mul_u32_u24", t[5], 9216 - 96, t[5])
                p.valu("v_lshl_add_u32", t[2 + i], t[2 + i], 2, t[5])
                p.valu("v_add_u32", t[2 + i], W2R, t[2 + i])
            self.lds_spin(t[5], t[6], 8, 8, "rr")
            for i in range(3):
                p.ds_write("ds_write_b32", t[2 + i], gv[i])
        self.cond("s_cmp_lg_u32", sWAVE, 0, "Lnofin", finish)
        p.raw("s_waitcnt lgkmcnt(0)")
        p.lgkm_done = p.lgkm_seq
        self.stamp(228)
        p.barrier()
        self.stamp(228)
        sc = [V(228, 4), V(232, 4), V(236, 4)]
        for k in range(3):
            p.ds_read("ds_read_b128", sc[k], u[2], 32 * k)
        self.early_loads()
        p.wait_all(vm=False)
        for k in range(9):
            for i in range(4):
                p.valu("v_pk_mul_f16", fr[k].sub(i), fr[k].sub(i), sc[k // 3].sub(i))
            p.ds_write("ds_write_b128", u[0], fr[k], k * 1024)
        p.wait_all(vm=False)
        p.barrier()
        self.stamp(228)

    def load_x1(self, dst, ti, k):
        p = self.p
        if k % 2:
            p.salu("s_add_u32", sT3, sTILE[ti], ROWB)
        p.buf_load("buffer_load_dwordx4", dst, self.vG, sX, sT3 if k % 2 else sTILE[ti], 64 * (k // 2), flags=self.o.get('xlf', ''))

    def reload_ln(self, ti, dst):
        p = self.p
        return [lambda k=k: self.ws_frag(6 * ti + (k & ~1), lambda so: p.buf_load(
            "buffer_load_dwordx4", dst[k], self.vR, sWS, so, 256 * (k & 1), flags=self.o.get('rlf', ''))) for k in range(6)]

    def early_loads(self):
        self.load_x1(V(240, 4), 3, 0)
        self.load_x1(V(244, 4), 3, 1)

    def gemm1_16(self, j, ln, y, need):
        p = self.p
        return [dict(reads=[self.frag(W1F + (j * 6 + u) * 1024 + 256 * b)], need=need,
                     emit=[(lambda w, u=u, b=b, r=r: p.mfma(y[2 * r + b], w, ln[2 * u + r], y[2 * r + b] if u else 0)) for r in range(2)])
                for u in range(3) for b in range(2)]

    def gemm2_16(self, j, users, tag=None):
        p = self.p
        items = []
        for T in range(3):
            for b in range(2):
                reads = [self.frag(W2R + (j * 6 + T) * 1024 + 256 * b)]
                if any(f for _, _, f in users):
                    reads.append(rd128(self.vBias, (BT0 + 128 * T if T < 2 else BT1) + 16 * b))
                em = []
                for acc, G, f in users:
                    for r in range(2):
                        d = acc[2 * T + r].sub(4 * b, 4)
                        em.append(lambda w, c=None, d=d, G=G, r=r, f=f: p.mfma(d, w, G.sub(4 * r, 4), c if f else d, 'f16'))
                items.append(dict(reads=reads, emit=em, tag=tag if (T, b) == (2, 1) else None))
        return items

    def resid_item(self, acc, k, x):
        p = self.p
        return dict(reads=[], emit=[(lambda b=b: p.mfma(acc[k].sub(4 * b, 4), self.id16.sub(2 - 2 * b, 4), x, acc[k].sub(4 * b, 4))) for b in range(2)])

    def ident16(self):
        p, lane, I = self.p, self.vLane, self.id16
        a, b = I.sub(0), I.sub(1)
        ops = [lambda: p.valu("v_and_b32", a, 1, lane),
               lambda: p.valu("v_lshlrev_b32", a, 4, a),
               lambda: p.valu("v_mov_b32", b, 0x3F80),
               lambda: p.valu("v_lshlrev_b32", a, a, b),
               lambda: p.valu("v_lshrrev_b32", b, 2, lane),
               lambda: p.valu("v_xor_b32", b, b, lane),
               lambda: p.valu("v_and_b32", b, 12, b),
               lambda: p.valu("v_and_b32", I.sub(4), 2, lane),
               lambda: p.valu("v_or_b32", b, b, I.sub(4)),
               lambda: (p.valu("v_cmp_eq_u32", "vcc", 0, b), p.valu("v_cndmask_b32", I.sub(2), 0, a, "vcc")),
               lambda: (p.valu("v_cmp_eq_u32", "vcc", 2, b), p.valu("v_cndmask_b32", I.sub(3), 0, a, "vcc"))]
        ops += [lambda i=i: p.valu("v_mov_b32", I.sub(i), 0) for i in (0, 1, 4, 5)]
        return [(4, f) for f in ops]

    def out_ops(self, acc, ti, k):
        p = self.p
        a = acc[k]

        def st():
            if k % 2:
                p.salu("s_add_u32", sT3, sTILE[ti], ROWB)
            p.buf_store("buffer_store_dwordx4", a.sub(0, 4), self.vG, sOUT, sT3 if k % 2 else sTILE[ti], 64 * (k // 2), flags=self.o.get('osf', 'sc1'))
        return [(4, lambda i=i: p.valu("v_cvt_pk_bf16_f32", a.sub(i), a.sub(2 * i), a.sub(2 * i + 1))) for i in range(4)] + [(0, lambda: self.gq.append(st))]

    def phase2(self):
        p, o = self.p, self.o
        S3, S2, J2 = self.S3, self.S2, self.J2
        assert len(J2) == 7
        C2_ = [j for j in range(12) if j not in J2]
        half = lambda v: [v.sub(0, 4), v.sub(4, 4)]
        A = [V(120 + 8 * i, 8) for i in range(6)]
        o1 = C2_ + J2[:1]
        B = [S3[j] for j in o1]
        f2 = [S3[j] for j in J2[1:4]] + [S2[j] for j in J2[1:4]]
        f3 = [S3[j] for j in J2[4:7]] + [S2[j] for j in J2[4:7]]
        R0 = half(f2[0]) + half(f2[3]) + half(f2[1])
        self.id16 = f2[4].sub(0, 6)
        Y = half(f2[2]) + half(f2[5])
        W = regs(f3[0], f3[3], f3[1].sub(0, 4))
        G = f3[4]
        ring3 = self.ring2 + half(f3[2])
        xs = [V(240, 4), V(244, 4), f3[1].sub(4, 4)] + half(f3[5])
        R1 = [self.LN[2].sub(4 * k, 4) for k in range(6)]
        self.ge = Gelu(self, W, sK, sM, 0)
        seq = [(2, j) for j in C2_] + [(0, j) for j in [J2[0]] + [j for j in range(12) if j != J2[0]]] + [(1, j) for j in range(12)]
        NE = len(seq)
        pre = [seg() for _ in range(7)]
        for k, j in enumerate(o1):
            pre[0]['mf'] += self.gemm2_16(j, [(A, S3[j], k == 0)])
        for k, j in enumerate(J2[1:]):
            pre[1 + k]['mf'] += self.gemm2_16(j, [(A, S3[j], False), (B, S2[j], k == 0)])
        rl = self.reload_ln(0, R0)
        pre[2]['vm'] += rl[:4]
        pre[3]['vm'] += rl[4:]
        pre[3]['fill'] += self.ident16()
        g1 = self.gemm1_16(seq[0][1], R1, Y, 0)
        for k in range(2):
            m = pre[4 + k]['mf']
            pre[4 + k]['mf'] = [x for i in range(3) for x in (m[2 * i], g1[3 * k + i], m[2 * i + 1])]
        NP = NE + 2
        P = [seg() for _ in range(NP)]
        P[0] = pre.pop()
        for s in pre + P:
            s['cl'] = 1
        acc = {2: B, 0: A, 1: B, 3: A}
        lns = {2: R1, 0: R0, 1: R1}
        nds = ints(o.get('nd2', '5'))
        yl = regs(*Y)
        ex = [[] for _ in range(NP)]
        for s in range(NP):
            S_ = P[s]
            a = self.gemm1_16(seq[s + 1][1], lns[seq[s + 1][0]], Y, 8) if s + 1 < NE else []
            b = list(S_['mf'])
            if 1 <= s <= NE:
                ti, j = seq[s - 1]
                users = [(acc[ti], G, ti != 2 and seq[s - 2][0] != ti)]
                if (ti, j) == (0, J2[0]):
                    users.append((B, S2[j], False))
                b = self.gemm2_16(j, users, 'g')
            if s < NE:
                S_['fill'] = self.period_fill(yl, nds[s % len(nds)], G=regs(G), tag='g' if s else None, ph=2)
            S_['ab'] = (a, b)
            S_['tail'] = o.get('t2', 32)
        n2 = len(C2_)
        allseg = pre + P
        base = len(pre)
        lead, minl = o.get('lead', 3), o.get('minl', 2)
        avail = {0: None, 1: None, 2: 0, 3: 1, 4: 1}
        done = {}
        want = [(-2, 3, 0), (-2, 3, 1)] + [(0, 3, k) for k in range(2, 6)]
        for ti, r0, st in ((2, o.get('r2', 5), o.get('r2s', 1)), (0, o.get('r0', 11), o.get('r0s', 1)), (1, o.get('r1', 22), o.get('r1s', 1))):
            want += [(int(r0 + k * st), ti, k) for k in range(6)]
        want.sort(key=lambda w: w[0])
        for i, (s, ti, k) in enumerate(want):
            if i < 2:
                bi = i
            else:
                bi = min(avail, key=lambda b_: (avail[b_], b_))
                at = max(avail[bi], s - lead)
                s = max(s, at + minl)
                allseg[base + at]['vm'].append(lambda buf=xs[bi], ti=ti, k=k: self.load_x1(buf, ti, k))
            it = self.resid_item(acc[ti], k, xs[bi])
            (allseg[base + s]['mf'] if s < 0 else ex[s]).append(it)
            avail[bi] = s + 1
            done[(ti, k)] = s
        first = {3: -9, 2: -9, 0: n2 + 1, 1: n2 + 13}
        assert all(done[(ti, k)] > first[ti] for ti, k in done), done
        last = {3: 0, 2: n2 + 1, 0: n2 + 12, 1: NE}
        free = {3: n2, 2: n2 + 12, 0: NP - 1, 1: NP - 1}
        for ti, o0, st in ((3, o.get('o3', 1), o.get('o3s', 0.67)), (2, o.get('o2', 8), o.get('o2s', 1.4)), (0, o.get('o0', 18), o.get('o0s', 1.5)), (1, NP - 1, 0)):
            for k in range(6):
                s = max(int(o0 + k * st), done[(ti, k)] + 1, last[ti] + 1)
                assert s <= free[ti], (ti, k, s)
                if s < NE:
                    f = P[s]['fill']
                    cut = next(i for i, x in enumerate(f) if len(x) > 2)
                    P[s]['fill'] = f[:8] + merge(f[8:cut - 4], self.out_ops(acc[ti], ti, k)) + f[cut - 4:]
                else:
                    P[s]['fill'] += self.out_ops(acc[ti], ti, k)[:4] + [(0, self.out_ops(acc[ti], ti, k)[4][1]), (0, self.flush)]
        for k, f in enumerate(self.reload_ln(1, R1)):
            P[int(o.get('rl1', n2 + 2) + k * o.get('rl1s', 1))]['vm'].append(f)
        for s in range(NP):
            a, b = P[s].pop('ab')
            src = {'a': a, 'b': b, 'x': ex[s]}
            P[s]['mf'] = [src[c].pop(0) for c in o.get('ord', 'bbabxababbxaaa' + 'x' * 6) if src[c]]
            assert not any(src.values())
            if s >= 1:
                P[s]['ring'] = ring3
        n_pre = sum(len(s['mf']) for s in pre + P[:1])
        for s in P[1:]:
            s['free_from'] = {v.b: n_pre - 1 for v in half(f3[2])}
        lc = o.get('lc2', 3)
        for a in range(o.get('l2a', 0), NP - o.get('l2e', 4), lc):
            self.ladder(P, a, a + lc, flts(o.get('pf2', '0,0.4,0.7,0.9')))
        for k in ints(o.get('ssp', '0,3,6,10,14,18,22,26')):
            P[k]['end'].append(self.sstamp)
        p.raw(f"s_setprio {o.get('pp', 3)}")
        p.lds_age = o.get('age2', 24)
        self.run(allseg, self.ring2)
        self.stamp(96)
        self.sstamp_flush(100)

    def build(self):
        self.alloc()
        self.p.raw("s_branch Lmain")
        self.startup_routines()
        self.p.lines.append("Lmain:")
        self.prologue()
        self.phase1()
        self.gap()
        self.phase2()
        self.p.raw("s_endpgm")
        self.poll_routine()
        self.p.lines.append("Lend:")
        self.p.raw("s_endpgm")
        return self.p


HEADER = open('standalone__modern_conv_block_convnext_v2__vision.s.ref').read().split('; Override launch')[0]


def wrap(p):
    return f"""{HEADER}; Generated by gen/gen2.py (hand-written generator; see gen/asmgen.py, gen/engine.py, gen/gelu.py)
; @launch grid=(256,1,1) block=(512,1,1) lds={LDS_BYTES}
.amdgcn_target "amdgcn-amd-amdhsa--gfx950"
.text
.globl {NAME}
.p2align 8
.type {NAME},@function
{NAME}:
{p.text()}
.section .rodata,"a"
.p2align 6
.amdhsa_kernel {NAME}
  .amdhsa_next_free_vgpr 256
  .amdhsa_next_free_sgpr 102
  .amdhsa_accum_offset 256
  .amdhsa_group_segment_fixed_size 0
  .amdhsa_kernarg_size 72
  .amdhsa_user_sgpr_count 2
  .amdhsa_user_sgpr_kernarg_segment_ptr 1
  .amdhsa_system_sgpr_workgroup_id_x 1
.end_amdhsa_kernel
"""


def generate(out, args):
    opt = {}
    for a in args:
        k, v = a.split('=')
        try:
            opt[k] = int(v)
        except ValueError:
            try:
                opt[k] = float(v)
            except ValueError:
                opt[k] = v
    g = Gen(opt)
    p = g.build()
    from align import align_dp
    al = align_dp(p.lines)
    open(out, 'w').write(wrap(p))
    print(out, 'align', al, 'instructions', sum(p.stats.values()), 'stamps', g.nstamp,
          {k: v for k, v in p.stats.items() if k in ('s_nop', 's_waitcnt', 'ds_read_b128') or 'mfma' in k})


if __name__ == '__main__':
    generate(sys.argv[1], sys.argv[2:])
```

```python
import math
import struct
import sys

from gelu import *

NAME = 'standalone__modern_conv_block_convnext_v2__vision_kernel'


def f2u(x):
    return struct.unpack('<I', struct.pack('<f', x))[0]


C2 = -2 * math.sqrt(2 / math.pi) * math.log2(math.e)
C1 = C2 * 0.044715
KH = 0x44EA
GK = 4.9140625
GA = C2 / GK
GC = C1 / GA ** 3

H0, H1 = 0x1F00, 0x3F00
BT0, BT1 = H0, H1
CNT = H1 + 128
W1F = 16384
W2R = 90112
RP = 6656
DIAG = W2R + 10 * RP
TABO = 7168
LDS_BYTES = 163840
WS_TOT = 96 * 256 * 16
WS_STAMP = 1 << 20
WS_LN = 4 << 20
WS_BYTES = 80 << 20
OOB_V = 0x80000000
OOB_S = 0x40000000
X_BYTES = 512 * 512 * 96 * 2
ROWB = 512 * 192
REP = 8

sX, sOUT, sW1, sW2, sDW, sGA, sBE, sWS, sDBG = [S(4 + 4 * i, 4) for i in range(9)]
sWAVE, sX0, sY0, sT0, sT1, sT2, sT3 = [S(40 + i) for i in range(7)]
sK, sM = S(48), S(49)
sYB, sXM = S(66), S(67)
sTILE = [S(68 + i) for i in range(4)]
sPRIV = S(72)
sSTAMP = S(73)
sEX = S(74, 2)
sCNT = S(76)
sROLE = S(77)
sRET = S(78, 2)
sLNB, sW2B = S(80), S(82)
sLD = S(80, 16)
sTM = S(96, 2)
sRT = S(98, 2)


def ints(s):
    return [int(x) for x in str(s).split(',') if x not in ('', 'n')]


def flts(s):
    return [float(x) for x in str(s).split(',') if x not in ('', 'n')]


class Gen(Engine):
    def __init__(self, opt):
        super().__init__(opt)
        self.nstamp = 0
        self.ss = []
        self.mk = []
        self.nrow = self.nready = 0

    def stamp(self, tb):
        if not self.o.get('stamps'):
            self.nmk = getattr(self, 'nmk', 0) + 1
            if self.nmk in (2, 3, 4, 5, 6, 9, 10):
                self.mark()
            return
        p = self.p
        t = V(tb, 4)
        p.raw(f"s_memtime {sTM}")
        p.raw(f"s_memrealtime {sRT}")
        p.raw("s_waitcnt lgkmcnt(0)")
        p.lgkm_done = p.lgkm_seq
        for i in range(4):
            p.valu("v_mov_b32", t.sub(i), S(sTM.b + i))
        p.raw("s_mov_b64 exec, 1")
        p.buf_store("buffer_store_dwordx4", t, self.vA[0], sWS, sSTAMP, 16 * self.nstamp)
        p.raw("s_mov_b64 exec, -1")
        p.nop(2)
        self.nstamp += 1

    def mark(self):
        if not self.o.get('dbg'):
            return
        p = self.p
        r = S((84, 86, 88, 90, 92, 94, 50, 52, 54, 56, 58, 60, 62, 64)[len(self.mk)], 2)
        self.mk.append(r)
        p.raw(f"s_memrealtime {r}")
        p.raw("s_waitcnt lgkmcnt(0)")
        p.lgkm_done = p.lgkm_seq

    def mark_flush(self):
        if not self.o.get('dbg'):
            return
        p = self.p
        p.raw("s_waitcnt vmcnt(0)")
        self.mark()
        p.raw("s_mov_b64 exec, 1")
        p.salu("s_not_b32", sT0, S(100))
        p.valu("v_mov_b32", V(96), sT0)
        p.raw(f"buffer_atomic_umax v96, {self.vA[0]}, {sDBG}, 0 offen offset:4")
        for k, r in enumerate(self.mk):
            p.valu("v_mov_b32", V(97 + k), r.sub(0))
            p.raw(f"buffer_atomic_umax v{97 + k}, {self.vA[0]}, {sDBG}, 0 offen offset:{8 + 4 * k}")

    def sstamp(self, where='p2'):
        if not self.o.get('stamps') or self.o.get('fine', 'p2') != where:
            self.mark()
            return
        p = self.p
        k = len(self.ss)
        self.ss.append(S((84, 86, 88, 90, 92, 94, 50, 52, 54, 56, 58, 60, 62, 64)[k], 2))
        p.raw(f"s_memtime {self.ss[-1]}")
        p.raw("s_waitcnt lgkmcnt(0)")
        p.lgkm_done = p.lgkm_seq

    def sstamp_flush(self, tb):
        p = self.p
        t = V(tb, 4)
        for r in self.ss:
            p.valu("v_mov_b32", t.sub(0), r.sub(0))
            p.valu("v_mov_b32", t.sub(1), r.sub(1))
            p.valu("v_mov_b32", t.sub(2), sRT.sub(0))
            p.valu("v_mov_b32", t.sub(3), sRT.sub(1))
            p.raw("s_mov_b64 exec, 1")
            p.buf_store("buffer_store_dwordx4", t, self.vA[0], sWS, sSTAMP, 16 * self.nstamp)
            p.raw("s_mov_b64 exec, -1")
            p.nop(2)
            self.nstamp += 1

    def frag(self, byte, ring=None):
        return rd128(self.vA[byte >> 16], byte & 0xFFFF, ring)

    def srd(self, d, ptr, nbytes):
        p = self.p
        p.salu("s_mov_b32", d.sub(0), ptr.sub(0))
        p.salu("s_and_b32", d.sub(1), ptr.sub(1), 0xFFFF)
        p.salu("s_mov_b32", d.sub(2), nbytes)
        p.salu("s_mov_b32", d.sub(3), 0x20000)

    def row_off(self, dst, base, delta):
        p = self.p
        p.salu("s_add_i32", sT0, base, delta)
        p.salu("s_mul_i32", sT1, sT0, ROWB)
        p.salu("s_cmp_lt_u32", sT0, 512)
        p.salu("s_cselect_b32", dst, sT1, OOB_S)

    def lane_sum64(self, v, t):
        p = self.p
        for r in (8, 4, 2, 1):
            p.valu("v_add_f32_dpp", v, v, v, mods=f"row_ror:{r} row_mask:0xf bank_mask:0xf")
        p.valu("v_mov_b32", t, v)
        p.swap16(v, t)
        p.valu("v_add_f32", v, v, t)
        p.valu("v_mov_b32", t, v)
        p.swap32(v, t)
        p.valu("v_add_f32", v, v, t)

    def cond(self, cmp, a, b, label, body, skip_on=1):
        p = self.p
        p.salu(cmp, a, b)
        p.raw(f"s_cbranch_scc{skip_on} {label}")
        p.cond_begin()
        body()
        tok = p.cond_end()
        p.lines.append(f"{label}:")
        return tok

    def spin_guard(self, exit_label):
        p = self.p
        p.salu("s_cmp_eq_u32", sCNT, 0)
        p.salu("s_cbranch_scc1", exit_label)
        p.salu("s_sub_u32", sCNT, sCNT, 1)

    def lds_spin(self, a, t, off, target, tag):
        p = self.p
        p.valu("v_mov_b32", a, CNT)
        p._mem_issue([a.b], [t.b])
        p.lines.append(f"L{tag}w:")
        p.raw(f"ds_read_b32 {t}, {a} offset:{off}")
        p.raw("s_waitcnt lgkmcnt(0)")
        p.lgkm_done = p.lgkm_seq
        p.raw(f"v_readfirstlane_b32 {sT0}, {t}")
        self.spin_guard(f"L{tag}x")
        p.raw(f"s_cmp_lt_u32 {sT0}, {target}")
        p.raw(f"s_cbranch_scc0 L{tag}x")
        p.raw("s_sleep 2")
        p.raw(f"s_branch L{tag}w")
        p.lines.append(f"L{tag}x:")

    def alloc(self):
        o = self.o
        self.S3 = [V(8 * i, 8) for i in range(12)]
        self.CA = V(0, 48)
        self.LN = [V(48, 24), V(72, 24), V(96, 24), V(168, 24)]
        self.Y = V(120, 16)
        self.W = regs(V(136, 20))
        self.SQ = [V(156 + i) for i in range(12)]
        self.ls = [V(168, 2), V(170, 2), V(172, 2)]
        self.rb = [V(192 + 4 * i, 4) for i in range(6)]
        self.D0 = V(192, 16)
        self.idf = [V(208, 4), V(212, 4)]
        self.ring2 = [V(224 + 4 * i, 4) for i in range(4)]
        self.ring1 = self.ring2 + [V(216, 4), V(220, 4)]
        self.vX, self.vL = V(240), V(241)
        self.vB = [V(242), V(243), V(244)]
        self.vC = [V(245), V(246)]
        self.tq = [V(247), V(252), V(253), V(254), V(255)]
        self.vA = [V(248), V(249), V(250)]
        self.vLane = V(251)
        self.vG, self.vR, self.vBias = V(252), V(253), V(254)
        self.J2 = ints(o.get('j2', '5,6,7,8,9,10,11'))
        self.S2 = {j: V(168 + 8 * k, 8) for k, j in enumerate(self.J2)}
        assert len(self.J2) <= 7
        self.ge = Gelu(self, self.W, sK, sM, 0)
        self.fsh = 18 if o.get('smap', 0) else 21

    def rows_dma(self, rows, label):
        p = self.p

        def body():
            for r in rows:
                self.row_off(sT2, sYB, r)
                p.salu("s_add_u32", "m0", sXM, ((r + 1) % 10) * RP)
                p.dma(self.vX, sX, sT2, flags='nt' if r < self.o.get('ntrows', 9) else '')
        self.x_tok = self.cond("s_cmp_eq_u32", sWAVE, 7, label, body)

    def row_dma_fast(self, r):
        p = self.p
        p.salu("s_add_u32", "m0", sXM, ((r + 1) % 10) * RP)
        p.salu("s_add_u32", sYB, sYB, ROWB)
        self.nrow += 1
        self.x_tok = p.dma(self.vX, sX, sYB, flags='nt' if r < self.o.get('ntrows', 9) else '')

    def gelu_table(self, tid):
        p = self.p
        y = [V(0 + i) for i in range(8)]
        t = [V(8 + i) for i in range(8)]
        r = [V(16 + i) for i in range(8)]
        a, b = V(24), V(25)
        pn, pp = V(28, 4), V(32, 4)
        p.valu("v_lshlrev_b32", a, 6, tid)
        p.salu("s_mov_b32", sT0, f2u(GC))
        p.valu("v_mov_b32", b, f2u(GK))
        for i in range(8):
            p.valu("v_add_u32", y[i], 0x8004 + 8 * i, a)
        for i in range(8):
            p.valu("v_cvt_f32_f16", y[i], y[i])
        for i in range(8):
            p.valu("v_mul_f32", t[i], y[i], y[i])
        for i in range(8):
            p.valu("v_fma_f32", t[i], t[i], sT0, b)
        for i in range(8):
            p.valu("v_mul_f32", t[i], y[i], t[i])
        for i in range(8):
            p.valu("v_exp_f32", t[i], t[i])
        for i in range(8):
            p.valu("v_add_f32", r[i], "1.0", t[i])
        for i in range(8):
            p.valu("v_rcp_f32", r[i], r[i])
        for i in range(8):
            p.valu("v_mul_f32", y[i], y[i], r[i])
        for i in range(8):
            p.valu("v_mul_f32", t[i], t[i], y[i])
        for i in range(4):
            p.valu("v_cvt_pk_f16_f32", pn.sub(i), y[2 * i], y[2 * i + 1])
            p.valu("v_cvt_pk_f16_f32", pp.sub(i), f"-{t[2 * i]}", f"-{t[2 * i + 1]}")
        p.valu("v_lshlrev_b32", a, 4, tid)
        p.valu("v_mov_b32", b, LDS_BYTES)
        p.salu("s_movk_i32", sT0, 496)
        p.valu("v_cmp_gt_u32", "vcc", sT0, tid)
        p.valu("v_cndmask_b32", a, b, a, "vcc")
        p.ds_write("ds_write_b128", a, pp)
        p.ds_write("ds_write_b128", a, pn, 8192)

    def prologue(self):
        p, o = self.p, self.o
        p.salu("s_cmp_ge_u32", S(2), 256)
        p.raw("s_cbranch_scc1 Lend")
        p.raw(f"s_load_dwordx16 {sLD}, s[0:1], 0")
        p.raw(f"s_load_dwordx2 {sTM}, s[0:1], 64")
        if o.get('dbg'):
            p.raw("s_memrealtime s[100:101]")
        if o.get('stamps'):
            p.raw("s_memtime s[68:69]")
            p.raw("s_memrealtime s[70:71]")
        lane = self.vLane
        tid = V(199)
        t = [V(120 + i) for i in range(40)]
        p.valu("v_mov_b32", tid, V(0))
        p.valu("v_and_b32", lane, 63, V(0))
        p.valu("v_lshrrev_b32", t[0], 6, V(0))
        p.valu("v_readfirstlane_b32", sWAVE, t[0])
        p.salu("s_and_b32", sT0, S(2), 7)
        p.salu("s_lshr_b32", sT1, S(2), 3)
        p.salu("s_and_b32", sX0, sT0, 3)
        p.salu("s_lshl_b32", sX0, sX0, 2)
        p.salu("s_and_b32", sT2, sT1, 3)
        p.salu("s_add_u32", sX0, sX0, sT2)
        p.salu("s_lshr_b32", sY0, sT0, 2)
        p.salu("s_lshl_b32", sY0, sY0, 3)
        p.salu("s_lshr_b32", sT2, sT1, 2)
        p.salu("s_add_u32", sY0, sY0, sT2)
        p.salu("s_lshl_b32", sX0, sX0, 5)
        p.salu("s_lshl_b32", sY0, sY0, 5)
        p.salu("s_lshl_b32", sXM, sWAVE, 6)
        p.salu("s_cmp_eq_u32", sWAVE, 6)
        p.salu("s_cselect_b32", sXM, 352, sXM)
        p.valu("v_add_u32", t[5], sXM, lane)
        p.valu("v_mul_u32_u24", t[1], 5462, t[5])
        p.valu("v_lshrrev_b32", t[1], 16, t[1])
        p.valu("v_mul_u32_u24", t[2], 12, t[1])
        p.valu("v_sub_u32", t[2], t[5], t[2])
        p.valu("v_bfe_u32", t[3], t[1], 2, 2)
        p.valu("v_xor_b32", t[2], t[2], t[3])
        p.valu("v_add_u32", t[3], sX0, t[1])
        p.valu("v_subrev_u32", t[3], 1, t[3])
        p.valu("v_mul_u32_u24", t[4], 192, t[3])
        p.valu("v_lshl_add_u32", t[4], t[2], 4, t[4])
        p.valu("v_mov_b32", self.vX, OOB_V)
        p.salu("s_movk_i32", sT0, 512)
        p.valu("v_cmp_gt_u32", "vcc", sT0, t[3])
        p.valu("v_cndmask_b32", t[4], self.vX, t[4], "vcc")
        p.valu("v_cmp_gt_u32", "vcc", 34, t[1])
        p.valu("v_cndmask_b32", self.vX, self.vX, t[4], "vcc")
        dv = [t[6], t[7]]
        di = [t[8], t[9]]
        p.valu("v_mov_b32", di[0], tid)
        p.valu("v_add_u32", di[1], 512, tid)
        p.valu("v_min_u32", di[1], 863, di[1])
        for r in range(2):
            p.valu("v_lshlrev_b32", t[10 + r], 1, di[r])
        p.salu("s_mov_b32", sYB, sY0)
        p.salu("s_lshl_b32", sXM, sXM, 4)
        p.salu("s_add_u32", sXM, sXM, W2R)
        p.raw("s_waitcnt lgkmcnt(0)")
        self.srd(sX, sLD.sub(0, 2), X_BYTES)
        self.srd(sDW, sLD.sub(2, 2), 1728)
        for r in range(2):
            dv_tok = p.buf_load("buffer_load_ushort", dv[r], t[10 + r], sDW)
        self.rows_dma(range(-1, 5), "Lskipx0")
        self.srd(sW1, sLD.sub(4, 2), 73728)
        p.valu("v_lshrrev_b32", self.vW1g, 2, lane)
        p.valu("v_mul_u32_u24", self.vW1g, 768, self.vW1g)
        p.valu("v_and_b32", t[5], 3, lane)
        p.valu("v_lshl_add_u32", self.vW1g, t[5], 4, self.vW1g)
        self.srd(sW2, sLD.sub(6, 2), 73728)
        self.srd(sGA, sLD.sub(8, 2), 768)
        self.srd(sBE, sLD.sub(10, 2), 768)
        self.srd(sOUT, sLD.sub(12, 2), X_BYTES)
        self.srd(sDBG, sLD.sub(14, 2), 256)
        self.srd(sWS, sTM, WS_BYTES)
        early = o.get('w1e', 0)
        if early:
            self.cond("s_cmp_lt_u32", sWAVE, 4, "Lnow1a", lambda: [self.w1_dma(u) for u in range(6)])
        self.gelu_table(tid)
        p.salu("s_and_b32", sT0, sWAVE, 1)
        p.salu("s_lshl_b32", sT3, sT0, 4)
        p.salu("s_add_u32", sX0, sX0, sT3)
        p.salu("s_and_b32", sT0, sWAVE, 6)
        p.salu("s_add_u32", sY0, sY0, sT0)
        p.salu("s_mul_i32", sT2, sT0, RP)
        p.salu("s_add_u32", sT2, sT2, W2R)
        m, g = t[11], t[12]
        p.valu("v_and_b32", m, 15, lane)
        p.valu("v_lshrrev_b32", g, 4, lane)
        p.valu("v_mul_u32_u24", t[2], RP, g)
        p.valu("v_add_u32", t[2], sT2, t[2])
        p.valu("v_add_u32", t[1], sT3, m)
        for dx in range(3):
            if dx:
                p.valu("v_add_u32", t[1], 1, t[1])
            p.valu("v_mul_u32_u24", t[3], 192, t[1])
            p.valu("v_bfe_u32", t[4], t[1], 2, 2)
            p.valu("v_lshl_add_u32", t[3], t[4], 4, t[3])
            p.valu("v_add_u32", self.vB[dx], t[2], t[3])
        p.salu("s_mul_i32", sPRIV, sWAVE, 9216)
        p.salu("s_add_u32", sPRIV, sPRIV, W2R)
        z = V(160, 4)
        for i in range(4):
            p.valu("v_mov_b32", z.sub(i), 0)
        p.valu("v_mov_b32", t[20], CNT)
        p.ds_write("ds_write_b128", t[20], z)
        p.valu("v_bfe_u32", t[13], m, 2, 1)
        p.valu("v_sub_u32", t[13], g, t[13])
        p.valu("v_lshrrev_b32", t[14], 3, m)
        p.valu("v_and_b32", t[15], 3, m)
        p.valu("v_lshl_add_u32", t[15], t[14], 2, t[15])
        p.valu("v_lshlrev_b32", t[16], 6, t[13])
        p.valu("v_lshl_add_u32", t[16], t[15], 3, t[16])
        p.valu("v_add_u32", t[16], DIAG, t[16])
        p.valu("v_mov_b32", t[17], LDS_BYTES)
        p.valu("v_cmp_gt_u32", "vcc", 3, t[13])
        p.valu("v_cndmask_b32", t[16], t[17], t[16], "vcc")
        p.valu("v_cmp_eq_u32", "vcc", 0, t[14])
        p.valu("v_cndmask_b32", self.vC[0], t[17], t[16], "vcc")
        p.valu("v_cndmask_b32", self.vC[1], t[16], t[17], "vcc")
        p.valu("v_lshlrev_b32", self.vL, 4, lane)
        p.valu("v_and_b32", t[13], 0x23, lane)
        p.valu("v_bfe_u32", t[14], lane, 2, 2)
        p.valu("v_lshl_add_u32", t[13], t[14], 3, t[13])
        p.valu("v_bfe_u32", t[14], lane, 4, 1)
        p.valu("v_lshl_add_u32", t[13], t[14], 2, t[13])
        p.valu("v_lshlrev_b32", self.vA[0], 4, t[13])
        p.valu("v_add_u32", self.vA[1], 0x10000, self.vA[0])
        p.valu("v_add_u32", self.vA[2], 0x20000, self.vA[0])
        p.salu("s_lshl_b32", sSTAMP, S(2), 3)
        p.salu("s_add_u32", sSTAMP, sSTAMP, sWAVE)
        if o.get('smap', 0):
            p.salu("s_and_b32", sT0, S(2), 7)
            p.salu("s_mul_i32", sT0, sT0, 3 << 10)
            p.salu("s_and_b32", sT1, S(2), 0xF8)
            p.salu("s_add_u32", sT0, sT0, sT1)
            p.salu("s_add_u32", sLNB, sT0, sWAVE)
            p.salu("s_lshl_b32", sLNB, sLNB, 10)
        else:
            p.salu("s_lshl_b32", sLNB, sSTAMP, 10)
        p.salu("s_add_u32", sLNB, sLNB, WS_LN)
        p.salu("s_mul_i32", sSTAMP, sSTAMP, 16 * o.get('stamps', 1))
        p.salu("s_add_u32", sSTAMP, sSTAMP, WS_STAMP)
        if o.get('stamps'):
            for i in range(4):
                p.valu("v_mov_b32", V(188 + i), S(68 + i))
            p.raw("s_mov_b64 exec, 1")
            p.buf_store("buffer_store_dwordx4", V(188, 4), self.vA[0], sWS, sSTAMP, 0)
            p.raw("s_mov_b64 exec, -1")
            self.nstamp += 1
        self.stamp(192)
        p.salu("s_mul_i32", sT3, sX0, 192)
        for ti in range(4):
            p.salu("s_add_u32", sT0, sY0, 8 * ti)
            p.salu("s_mul_i32", sT0, sT0, ROWB)
            p.salu("s_add_u32", sTILE[ti], sT0, sT3)
        p.salu("s_mul_i32", sW2B, sWAVE, 9216)
        p.salu("s_mov_b32", sK, KH * 0x10001)
        p.salu("s_mov_b32", sM, 0xFFF8FFF8)
        p.salu("s_mov_b32", sCNT, 400000)
        p.valu("v_lshrrev_b32", t[28], 5, lane)
        p.valu("v_lshlrev_b32", self.vW1r, 8, t[28])
        for sh, w, up in ((2, 2, 6), (4, 1, 5), (0, 1, 4), (1, 1, 3)):
            p.valu("v_bfe_u32", t[28], lane, sh, w)
            p.valu("v_lshl_add_u32", self.vW1r, t[28], up, self.vW1r)
        p.salu("s_and_b32", sT0, sWAVE, 3)
        p.salu("s_lshl_b32", sT0, sT0, 10)
        p.salu("s_add_u32", sT0, sT0, W1F)
        p.valu("v_add_u32", self.vW1r, sT0, self.vW1r)
        p.valu("v_add_u32", self.vW1w, sT0, self.vA[0])
        ad = [t[30], t[31]]
        for r in range(2):
            p.valu("v_mul_u32_u24", t[20], 683, di[r])
            p.valu("v_lshrrev_b32", t[20], 16, t[20])
            p.valu("v_mul_u32_u24", t[21], 96, t[20])
            p.valu("v_sub_u32", t[21], di[r], t[21])
            p.valu("v_mul_u32_u24", t[22], 11, t[20])
            p.valu("v_lshrrev_b32", t[22], 5, t[22])
            p.valu("v_mul_u32_u24", t[23], 3, t[22])
            p.valu("v_sub_u32", t[23], t[20], t[23])
            p.valu("v_mul_u32_u24", t[23], 12, t[23])
            p.valu("v_lshrrev_b32", t[24], 3, t[21])
            p.valu("v_add_u32", t[23], t[23], t[24])
            p.valu("v_mul_u32_u24", t[23], 192, t[23])
            p.valu("v_lshl_add_u32", t[23], t[22], 6, t[23])
            p.valu("v_and_b32", t[24], 7, t[21])
            p.valu("v_lshl_add_u32", t[23], t[24], 3, t[23])
            p.valu("v_add_u32", ad[r], DIAG, t[23])
        later = p.vm_seq - dv_tok
        if early:
            p.raw(f"s_waitcnt vmcnt({12 + later})")
            self.cond("s_cmp_eq_u32", sT0, sT0, "Lw7w", lambda: None)
            p.salu("s_sub_u32", sT0, sWAVE, 4)
            self.cond("s_cmp_lt_u32", sT0, 3, "Lw7x", lambda: p.raw(f"s_waitcnt vmcnt({6 + later})"))
        else:
            p.raw(f"s_waitcnt vmcnt({6 + later})")
            self.cond("s_cmp_lg_u32", sWAVE, 7, "Lw7w", lambda: p.raw("s_waitcnt vmcnt(0)"))
        for r in range(2):
            p.p_vm[dv[r].b] = None
        ch = [V(160, 2), V(162, 2)]
        for r in range(2):
            p.valu("v_and_b32", t[10], 1, di[r])
            p.valu("v_lshlrev_b32", t[10], 4, t[10])
            p.valu("v_lshlrev_b32", dv[r], t[10], dv[r])
            p.valu("v_and_b32", t[10], 2, di[r])
            p.valu("v_cmp_eq_u32", "vcc", 0, t[10])
            p.valu("v_cndmask_b32", ch[r].sub(0), 0, dv[r], "vcc")
            p.valu("v_sub_u32", ch[r].sub(1), dv[r], ch[r].sub(0))
            p.ds_write("ds_write_b64", ad[r], ch[r])
        if not early:
            self.cond("s_cmp_lt_u32", sWAVE, 4, "Lnow1a", lambda: [self.w1_dma(u) for u in range(6)])
        self.rows_dma(range(5, 9), "Lskipx1")
        p.raw("s_waitcnt vmcnt(10) lgkmcnt(0)")
        self.cond("s_cmp_ge_u32", sWAVE, 4, "Lwa", lambda: p.raw("s_waitcnt vmcnt(4)"))
        p.vm_done, p.lgkm_done = p.vm_seq, p.lgkm_seq
        p.barrier()
        self.stamp(192)

    def w1_dma(self, u):
        p = self.p
        p.salu("s_and_b32", sT0, sWAVE, 3)
        p.salu("s_add_u32", sT0, sT0, 4 * u)
        p.salu("s_mul_i32", sT1, sT0, 43)
        p.salu("s_lshr_b32", sT1, sT1, 8)
        p.salu("s_lshl_b32", sT2, sT0, 10)
        p.salu("s_add_u32", "m0", sT2, W1F)
        p.salu("s_mul_i32", sT3, sT1, 6)
        p.salu("s_sub_u32", sT0, sT0, sT3)
        p.salu("s_lshl_b32", sT0, sT0, 1)
        p.salu("s_sub_u32", sT2, sT0, 5)
        p.salu("s_cmp_ge_u32", sT0, 6)
        p.salu("s_cselect_b32", sT0, sT2, sT0)
        p.salu("s_mul_i32", sT0, sT0, 12288)
        p.salu("s_lshl_b32", sT1, sT1, 6)
        p.salu("s_add_u32", sT0, sT0, sT1)
        return p.dma(self.vW1g, sW1, sT0)

    def sentinels(self):
        p, lane = self.p, self.vLane
        t = [V(174 + i) for i in range(18)]
        sv = V(164, 4)

        def bias():
            p.salu("s_lshl_b32", sT1, sT0, 1)
            p.valu("v_mul_u32_u24", t[0], 192, lane)
            p.valu("v_lshlrev_b32", t[1], 1, lane)
            for i in range(6):
                p.salu("s_add_u32", sT2, sT1, 64 * 192 * i)
                p.raw(f"buffer_load_ushort {t[2 + i]}, {t[0]}, {sW2}, {sT2} offen")
                p.raw(f"buffer_load_ushort {t[8 + i]}, {t[1]}, {sBE}, 0 offen offset:{128 * i}")

        def body():
            for i in range(4):
                p.valu("v_mov_b32", sv.sub(i), -1)
            p.valu("v_lshlrev_b32", t[0], 12, lane)
            p.valu("v_add_u32", t[1], 64 * 4096, t[0])
            p.valu("v_cmp_gt_u32", "vcc", 32, lane)
            p.valu("v_mov_b32", t[2], OOB_V)
            p.valu("v_cndmask_b32", t[1], t[2], t[1], "vcc")
            p.salu("s_lshl_b32", sT0, S(2), 4)
            p.raw(f"buffer_store_dwordx4 {sv}, {t[0]}, {sWS}, {sT0} offen sc1")
            p.raw(f"buffer_store_dwordx4 {sv}, {t[1]}, {sWS}, {sT0} offen sc1")
            p.salu("s_add_u32", sT0, sT0, WS_TOT)
            p.salu("s_cmp_lt_u32", S(2), 96)
            p.salu("s_cselect_b32", sT0, sT0, OOB_S)
            p.valu("v_lshlrev_b32", t[17], 11, lane)
            p.raw(f"s_mov_b64 exec, {hex((1 << REP) - 1)}")
            p.raw(f"buffer_store_dwordx4 {sv}, {t[17]}, {sWS}, {sT0} offen sc1")
            p.raw("s_mov_b64 exec, -1")
            p.raw(f"s_getpc_b64 {sEX}")
            p.lines.append("Lpc:")
            p.salu("s_lshr_b32", sT0, S(2), 3)
            p.salu("s_and_b32", sT0, sT0, 15)
            p.salu("s_lshl_b32", sT0, sT0, 13)
            p.valu("v_lshlrev_b32", t[2], 7, lane)
            p.valu("v_add_u32", t[2], sT0, t[2])
            p.valu("v_min_u32", t[2], "Lend-Lpc", t[2])
            if self.o.get('pf', 1):
                p.raw(f"global_load_dword {self.tq[4]}, {t[2]}, {sEX}")
            p.salu("s_sub_u32", sT0, S(2), 96)
            p.salu("s_cmp_lt_u32", sT0, 96)
            p.raw("s_cbranch_scc0 Lnobias")
            bias()
            p.lines.append("Lnobias:")
            p.nop(2)
        self.cond("s_cmp_lg_u32", sWAVE, 7, "Lnosent", body)
        self.sent_tok = p.vm_seq

    def bias_finish(self):
        p = self.p
        t = [V(174 + i) for i in range(18)]

        def body():
            p.salu("s_sub_u32", sT0, S(2), 96)
            p.salu("s_cmp_lt_u32", sT0, 96)
            p.raw("s_cbranch_scc0 Lnobias2")
            p.raw(f"s_waitcnt vmcnt({p.vm_seq - self.sent_tok})")
            for i in range(12):
                p.valu("v_lshlrev_b32", t[2 + i], 16, t[2 + i])
            p.valu("v_mul_f32", t[0], t[2], t[8])
            for i in range(1, 6):
                p.valu("v_fmac_f32", t[0], t[2 + i], t[8 + i], rmw=True)
            self.lane_sum64(t[0], t[1])
            p.salu("s_lshl_b32", sT1, sT0, 2)
            p.salu("s_add_u32", sT1, sT1, WS_TOT + 1536)
            p.valu("v_lshlrev_b32", t[17], 11, self.vLane)
            p.raw(f"s_mov_b64 exec, {hex((1 << REP) - 1)}")
            p.raw(f"buffer_store_dword {t[0]}, {t[17]}, {sWS}, {sT1} offen sc1")
            p.raw("s_mov_b64 exec, -1")
        self.cond("s_cmp_lg_u32", sWAVE, 7, "Lnobias2", body)
        self.sent_tok = p.vm_seq

    def init_counter(self):
        p = self.p

        def body():
            p.raw(f"s_waitcnt vmcnt({p.vm_seq - self.sent_tok})")
            p.raw(f"v_mov_b32 {self.tq[4]}, 1")
            p.raw("s_mov_b64 exec, 1")
            p.raw(f"buffer_atomic_add {self.tq[4]}, {self.vL}, {sDBG}, 0 offen")
            p.raw("s_mov_b64 exec, -1")
        self.cond("s_cmp_lg_u32", sWAVE, 7, "Lnoinit", body)

    def ln_stats(self):
        p, C, ls = self.p, self.CA, self.ls
        s2, q2 = ls[0], ls[1]
        ops = [lambda: p.valu("v_pk_add_f32", s2, C.sub(0, 2), C.sub(2, 2)),
               lambda: p.valu("v_pk_mul_f32", q2, C.sub(0, 2), C.sub(0, 2))]
        for i in range(1, 24):
            if i >= 2:
                ops.append(lambda i=i: p.valu("v_pk_add_f32", s2, s2, C.sub(2 * i, 2)))
            ops.append(lambda i=i: p.valu("v_pk_fma_f32", q2, C.sub(2 * i, 2), C.sub(2 * i, 2), q2))
        return ops

    def ln_scalar(self):
        p, ls = self.p, self.ls
        s, s1, q, q1, rs, off = [ls[i // 2].sub(i % 2) for i in range(6)]
        return [
            (4, lambda: p.valu("v_add_f32", s, s, s1)),
            (4, lambda: p.valu("v_add_f32", q, q, q1)),
            (4, lambda: p.swap32(s, q)),
            (4, lambda: p.valu("v_add_f32", s, s, q)),
            (4, lambda: p.valu("v_mul_f32", s, f2u(1.0 / 96), s)),
            (4, lambda: p.valu("v_mov_b32", q, s)),
            (4, lambda: p.swap32(s, q)),
            (4, lambda: p.valu("v_fma_f32", q, f"-{s}", s, q)),
            (4, lambda: p.valu("v_max_f32", q, 0, q)),
            (4, lambda: p.valu("v_add_f32", q, f2u(1e-5), q)),
            (8, lambda: p.valu("v_rsq_f32", q, q)),
            (4, lambda: p.valu("v_mul_f32", rs, f2u(GA), q)),
            (4, lambda: p.valu("v_mul_f32", off, s, rs)),
        ]

    def ln_norm(self):
        p, C, ro = self.p, self.CA, self.ls[2]
        return [lambda i=i: p.valu("v_pk_fma_f32", C.sub(2 * i, 2), C.sub(2 * i, 2), ro, ro,
                                   mods="op_sel:[0,0,1] op_sel_hi:[1,0,1] neg_lo:[0,0,1] neg_hi:[0,0,1]")
                for i in range(24)]

    def ln_pack(self, t):
        p, C = self.p, self.CA
        return [(4, lambda i=i: p.valu("v_cvt_pk_bf16_f32", self.LN[t].sub(i), C.sub(2 * i), C.sub(2 * i + 1)))
                for i in range(24)]

    def conv_items(self, ti, pre=None):
        p = self.p
        items = []
        order = (0, 1, 3, 2) if ti % 2 == 0 else (2, 3, 1, 0)
        for k, cl in enumerate(order):
            for dx in range(3):
                for cq in range(3):
                    cb = 4 * cq + cl
                    acc = self.CA.sub(4 * cb, 4)
                    hook = None
                    if cq == 0 and k:
                        hook = (lambda dx=dx, d=16 * (cl ^ order[k - 1]): p.valu("v_xor_b32", self.vB[dx], d, self.vB[dx]))
                    elif not items:
                        hook = pre
                    off = (dx * 12 + cb) * 192
                    ra = dict(parts=[("ds_read_b64", self.vC[0], off, 0, 2), ("ds_read_b64", self.vC[1], off, 2, 2)], ring=None, hook=None)
                    items.append(dict(reads=[ra, rd128(self.vB[dx], 64 * cq, self.rb, hook)], w=self.o.get('cw', 0.5),
                                      emit=(lambda a, b, acc=acc, dx=dx: p.mfma(acc, a, b, acc if dx else 0))))
        return items

    def gemm1_32(self, j, ln, pixel_lane, need):
        p, y = self.p, self.Y
        items = []
        for s6 in range(6):
            b = ln.sub(4 * s6, 4)
            if pixel_lane:
                e = (lambda w, b=b, s6=s6: p.mfma(y, w, b, y if s6 else 0))
            else:
                e = (lambda w, b=b, s6=s6: p.mfma(y, b, w, y if s6 else 0))
            items.append(dict(reads=[self.frag(W1F + (j * 6 + 3 * (s6 & 1) + (s6 >> 1)) * 1024)], emit=e, need=need))
        return items

    def period_fill(self, y, n, G=None, sq=None, first=False, tag=None, ph=1, fl=False):
        o, ge = self.o, self.ge
        a, d = ge.front(n, o.get('grp', 2), G is None)
        if fl:
            d = d[:len(d) // 2] + [(0, self.flush)] + d[len(d) // 2:] + [(0, self.flush)]
        t0, t1 = split_cost(a + ge.mid(n), o.get(f'ds{ph}', 96 if ph == 1 else 64))
        if G is not None:
            ba, bd = ge.back_pack(G, n)
            if tag:
                ba, bd = [x + (tag,) for x in ba], [x + (tag,) for x in bd]
            t1a, t1b = split_cost(t1, sum(x[0] for x in t1) - o.get(f'de{ph}', 32 if ph == 1 else 16))
            return ge.cvts(y, n) + merge(t0, d) + t1a + merge(t1b, bd) + ba
        ba, bd = ge.back_stat(sq, None, n, first, o.get('mix', 1))
        tl = t1 + ba
        t1a, t1b = split_cost(tl, sum(x[0] for x in tl) - o.get('des', 64))
        return ge.cvts(y, n) + merge(t0, d) + t1a + merge(t1b, bd)

    @staticmethod
    def mix_in(s, ops, lo=8):
        s['fill'] = s['fill'][:lo] + merge(s['fill'][lo:], ops)

    @staticmethod
    def spread(segs, s0, fns, per):
        for k, f in enumerate(fns):
            segs[s0 + k // per]['vm'].append(f)

    def ladder(self, segs, a, b, fr):
        for f, lv in zip(fr, range(len(fr) - 1, -1, -1)):
            h = a + f * (b - a)
            if h < len(segs):
                insert_at(segs, h, lambda lv=lv: self.setprio(lv))

    def swaps(self, a, b):
        return [(4, lambda i=i: self.p.swap16(a.sub(i), b.sub(i))) for i in range(4)]

    def ws_frag(self, f, fn):
        p = self.p
        if f == 0:
            return fn(sLNB)
        p.salu("s_add_u32", sT3, sLNB, f << self.fsh)
        return fn(sT3)

    def spill_ln(self, ti):
        p = self.p
        return [lambda k=k: self.ws_frag(6 * ti + k, lambda so: p.buf_store(
            "buffer_store_dwordx4", self.LN[ti].sub(4 * k, 4), self.vL, sWS, so, flags=self.o.get('ssf', ''))) for k in range(6)]

    def touch_x(self, tiles, a, b):
        p, lane = self.p, self.vLane
        p.valu("v_and_b32", a, 31, lane)
        p.valu("v_min_u32", a, 23, a)
        p.valu("v_lshlrev_b32", a, 7, a)
        p.valu("v_lshrrev_b32", b, 5, lane)
        p.valu("v_mul_u32_u24", b, ROWB, b)
        p.valu("v_add_u32", a, a, b)
        p.salu("s_mov_b32", "m0", LDS_BYTES)
        p.nop(1)
        for ti in tiles:
            p.raw(f"buffer_load_dword {a}, {sX}, {sTILE[ti]} offen lds")
            p.vm_seq += 1

    def w2_addr(self, a, b):
        p, lane = self.p, self.vLane
        p.valu("v_lshrrev_b32", a, 2, lane)
        p.valu("v_mul_u32_u24", a, 192, a)
        p.valu("v_and_b32", b, 3, lane)
        p.valu("v_lshl_add_u32", a, b, 4, a)

    def w2_fetch(self, a, u):
        p = self.p
        p.salu("s_add_u32", "m0", sPRIV, u * 1024)
        p.salu("s_add_u32", sT0, sW2B, (u // 3) * 3072 + (u % 3) * 64)
        p.dma(a, sW2, sT0)

    def startup_routines(self):
        main = self.p
        self.vW1g, self.vW1r, self.vW1w = V(145), V(146), V(147)
        a, b = V(148), V(149)

        def w1_transform(us, fr):
            p = self.p
            p.valu("v_add_u32", a, 65536, self.vW1r)
            p.valu("v_add_u32", b, 65536, self.vW1w)
            for k, u in enumerate(us):
                for i in range(2):
                    p.ds_read("ds_read_b64_tr_b16", fr[k].sub(2 * i, 2), self.vW1r if u < 16 else a, (u % 16) * 4096 + i * 512)
            for k, u in enumerate(us):
                p.ds_write("ds_write_b128", self.vW1w if u < 16 else b, fr[k], (u % 16) * 4096)
            p.wait_all(vm=False)

        for name in ("Lconv0", "Lln0", "Lw1a", "Lw1i", "Lw1b"):
            self.p = p = Prog()
            p.lines.append(f"{name}:")
            if name == "Lw1a":
                p.raw("s_waitcnt vmcnt(0)")
                w1_transform(range(6), [V(72 + 4 * u, 4) for u in range(6)])
            elif name == "Lw1i":
                for u in range(6, 18):
                    self.w1_dma(u)
            elif name == "Lw1b":
                p.raw("s_waitcnt vmcnt(0)")
                w1_transform(range(6, 18), [V(72 + 4 * u, 4) for u in range(12)])
            elif name == "Lconv0":
                s = seg()
                s['mf'] = self.conv_items(0)
                s['cl'] = 1
                self.run([s], self.ring1)
                p.nop(12)
            else:
                for f in self.ln_stats():
                    f()
                for _, f in self.ln_scalar():
                    f()
                for f in self.ln_norm():
                    f()
                for _, f in self.ln_pack(0):
                    f()
                p.nop(2)
            p.raw(f"s_setpc_b64 {sRET}")
            main.lines += p.lines
        self.p = main

    def phase1(self):
        p, o, lane = self.p, self.o, self.vLane

        def call_if(older, names, tag):
            self.cond("s_cmp_lt_u32" if older else "s_cmp_ge_u32", sWAVE, 4, tag,
                      lambda: [p.raw(n if n.startswith("s_") else f"s_call_b64 {sRET}, {n}") for n in names], 0)

        p.raw("s_setprio 2")
        call_if(True, ["Lconv0", "Lln0", "s_waitcnt vmcnt(0)"], "Lsu0")
        call_if(False, ["Lw1a", "Lw1i"], "Lsu1")
        p.barrier()
        self.stamp(192)
        call_if(False, [f"s_setprio {o.get('sp', 3)}", "Lconv0", "s_barrier", "Lw1b", "s_barrier", "Lln0"], "Lsu2")
        self.sentinels()
        self.stamp(192)
        p.lds_age = o.get('age1', 24)
        NS = 50
        P = [seg() for _ in range(NS)]
        c0s = [o.get('c1', 6), o.get('cn', 4), o.get('cn', 4)]
        conv = {}

        def ready():
            assert self.nrow % 8 == 0 and self.nrow > self.nready, (self.nrow, self.nready)
            self.nready = self.nrow
            p.wait(vm=self.x_tok)
            p.barrier()

        def advance_rows():
            a, b = self.tq[0], self.tq[1]
            p.valu("v_add_u32", a, 8 * RP - W2R, self.vB[0])
            p.valu("v_subrev_u32", b, 10 * RP, a)
            p.valu("v_min_u32", a, a, b)
            p.valu("v_add_u32", a, W2R, a)
            p.valu("v_sub_u32", b, a, self.vB[0])
            for k in range(3):
                p.valu("v_add_u32", self.vB[k], b, self.vB[k])

        for ti in range(1, 4):
            s0, first = 12 * (ti - 1), c0s[ti - 1]
            for k, it in enumerate(self.conv_items(ti, pre=ready)):
                conv.setdefault(s0 + first + k * (10 - first) // 36, []).append(it)
        ndc, ndn, ndk = o.get('ndc', 4), o.get('ndn', 5), o.get('ndk', 5)
        for s in range(NS):
            S_ = P[s]
            e = s - 1
            if 0 <= e < 36:
                S_['fill'] = self.period_fill(regs(self.Y), ndc if s in conv else ndn, sq=self.SQ[e % 12], first=e < 12)
            elif 36 <= e < 48:
                S_['fill'] = self.period_fill(regs(self.Y), ndk, G=regs(self.S3[e - 36]), fl=e == 47)
            g1 = self.gemm1_32(s % 12, self.LN[s // 12], s >= 36, 8 if s else 0) if s < 48 else []
            ex = conv.get(s, [])
            if s - 2 >= 36:
                G, sq = self.S3[s - 38], self.SQ[s - 38]
                tr = [dict(reads=[], tag='tr' if q else None, w=0.5,
                           emit=(lambda q=q, G=G: p.mfma(self.D0, G.sub(4 * q, 4), self.idf[q], self.D0 if q else 0, 'f16'))) for q in range(2)]
                ops = [x + ('tr',) for x in self.swaps(G.sub(0, 4), G.sub(4, 4))]
                ops += [(4, lambda i=i, sq=sq: p.valu("v_fmac_f32", sq, self.D0.sub(i), self.D0.sub(i), rmw=True)) for i in range(16)]
                self.mix_in(S_, ops, 12)
                S_['mf'] = tr + g1
                S_['tail'] = o.get('t1', 24) if g1 else 10 ** 6
            elif ex:
                nf, nl = 1, 2
                mid = ex[nf:len(ex) - nl]
                m = []
                for k in range(6):
                    m.append(g1[k])
                    if k < 5:
                        m += mid[k * len(mid) // 5:(k + 1) * len(mid) // 5]
                S_['mf'] = ex[:nf] + m + ex[len(ex) - nl:]
                S_['cl'] = o.get('clc', 1)
            else:
                S_['mf'] = g1
                S_['head'], S_['tail'] = 32, o.get('t1', 24)
        p.salu("s_add_u32", sYB, sYB, 8)
        p.salu("s_mul_i32", sYB, sYB, ROWB)
        p.salu("s_cmp_eq_u32", sWAVE, 7)
        p.salu("s_cselect_b32", sXM, LDS_BYTES, sXM)
        f0 = o.get('f0', 1)
        P[f0]['end'] += [lambda: call_if(True, ["s_barrier"], "Lsu3"), advance_rows]
        P[2]['end'].append(lambda: call_if(True, ["s_barrier"], "Lsu4"))
        for ti in range(3):
            fns = [lambda r=r: self.row_dma_fast(r) for r in range(8 * ti + 9, 8 * ti + 17)]
            self.spread(P, f0 + 1 if ti == 0 else 12 * ti - 2, fns, o.get('per0', 4) if ti == 0 else o.get('pern', 3))
        for ti in range(1, 4):
            s0 = 12 * (ti - 1)
            P[s0 + 9]['tail'] = 32
            P[s0 + 9]['pb'] += self.ln_stats()
            P[s0 + 9]['end'] += [p.barrier] + ([advance_rows] if ti < 3 else [])
            self.mix_in(P[s0 + 10], self.ln_scalar())
            P[s0 + 10]['pb'] += self.ln_norm()
            self.mix_in(P[s0 + 11], self.ln_pack(ti))
        self.spread(P, o.get('sl0', 4), self.spill_ln(0), 1)
        self.spread(P, o.get('sl1', 14), self.spill_ln(1), 1)
        P[14]['end'].append(self.bias_finish)
        P[20]['end'].append(self.init_counter)
        u = self.vX
        P[33]['end'].append(lambda: self.w2_addr(u, self.tq[0]))
        self.spread(P, 34, [lambda k=k: self.w2_fetch(u, k) for k in range(7)], 2)
        self.mix_in(P[36], self.ident32())
        for k, ti in zip(ints(o.get('ts', '38')), ints(o.get('tt', '0,1,2,3'))):
            P[k]['end'].append(lambda ti=ti: self.touch_x([ti], self.tq[0], self.tq[1]))
        fr = flts(o.get('pf1', '0,0.5,0.85'))
        marks = [0, c0s[0] - 0.5, 10, 12 + c0s[1] - 0.5, 22, 24 + c0s[2] - 0.5, 34] + list(range(34 + o.get('lc', 4), 50, o.get('lc', 4))) + [50]
        for a, b in zip(marks, marks[1:]):
            self.ladder(P, a, b, fr)
        self.run(P, self.ring1)
        p.lds_age = 0
        p.raw("s_setprio 3")
        t = [V(128 + i) for i in range(16)]
        p.valu("v_and_b32", t[8], 0x33, lane)
        p.valu("v_bfe_u32", t[9], lane, 2, 1)
        p.valu("v_lshl_add_u32", t[8], t[9], 3, t[8])
        p.valu("v_bfe_u32", t[9], lane, 3, 1)
        p.valu("v_lshl_add_u32", t[8], t[9], 2, t[8])
        p.valu("v_lshl_add_u32", t[8], t[8], 2, sPRIV)
        for j in range(0, 12, 2):
            p.swap32(self.SQ[j], self.SQ[j + 1])
            p.valu("v_add_f32", self.SQ[j], self.SQ[j], self.SQ[j + 1])
            p.ds_write("ds_write_b32", t[8], self.SQ[j], TABO + j * 128)
        p.valu("v_mov_b32", t[0], CNT)
        p.valu("v_mov_b32", t[1], 1)
        p.wait_all(vm=False)
        p.raw("s_mov_b64 exec, 1")
        p.raw(f"ds_add_rtn_u32 {t[2]}, {t[0]}, {t[1]}")
        p.raw("s_mov_b64 exec, -1")
        p.raw("s_waitcnt lgkmcnt(0)")
        p.valu("v_readfirstlane_b32", sT0, t[2])

        def publish():
            pv = [V(168 + 8 * w, 8) for w in range(7)] + [V(120, 8)]
            p.valu("v_min_u32", t[3], 47, lane)
            p.valu("v_lshlrev_b32", t[4], 5, t[3])
            p.valu("v_add_u32", t[4], W2R + TABO, t[4])
            for w in range(8):
                for k in range(2):
                    p.ds_read("ds_read_b128", pv[w].sub(4 * k, 4), t[4], 9216 * w + 16 * k)
            p.valu("v_lshlrev_b32", t[6], 13, t[3])
            p.valu("v_add_u32", t[7], 4096, t[6])
            for st in (1, 2, 4):
                for w in range(0, 8, 2 * st):
                    for i in range(8):
                        p.valu("v_add_f32", pv[w].sub(i), pv[w].sub(i), pv[w + st].sub(i))
            for i in range(8):
                p.valu("v_min_u32", pv[1].sub(i), -2, pv[0].sub(i))
            p.salu("s_lshl_b32", sT0, S(2), 4)
            p.buf_store("buffer_store_dwordx4", pv[1].sub(0, 4), t[6], sWS, sT0, flags="sc1")
            p.buf_store("buffer_store_dwordx4", pv[1].sub(4, 4), t[7], sWS, sT0, flags="sc1")
            p.ds_write("ds_write_b32", t[0], t[1], 4)
            p.raw("s_waitcnt lgkmcnt(0)")
            p.nop(2)
        self.cond("s_cmp_lg_u32", sT0, 7, "Lnopub", publish)
        self.stamp(192)

    def ident32(self):
        p, lane = self.p, self.vLane
        a, b, c = self.tq[0], self.tq[1], self.tq[2]
        ops = [lambda: p.valu("v_and_b32", a, 1, lane),
               lambda: p.valu("v_lshlrev_b32", a, 4, a),
               lambda: p.valu("v_mov_b32", b, 0x3C00),
               lambda: p.valu("v_lshlrev_b32", a, a, b),
               lambda: p.valu("v_lshrrev_b32", b, 3, lane),
               lambda: p.valu("v_xor_b32", b, b, lane),
               lambda: p.valu("v_and_b32", b, 4, b),
               lambda: p.valu("v_bfe_u32", c, lane, 3, 2),
               lambda: p.valu("v_lshl_add_u32", b, b, 1, 0),
               lambda: p.valu("v_lshl_add_u32", b, c, 1, b),
               lambda: p.valu("v_bfe_u32", c, lane, 1, 1),
               lambda: p.valu("v_add_u32", b, b, c)]
        for i in range(8):
            ops.append(lambda i=i: (p.valu("v_cmp_eq_u32", "vcc", i, b), p.valu("v_cndmask_b32", self.idf[i // 4].sub(i % 4), 0, a, "vcc")))
        return [(4, f) for f in ops]

    def poll_regs(self):
        rv = [V(156, 4), V(160, 4), V(164, 4), V(240, 4)]
        tv = V(156, 6)
        gv = [V(244), V(245), V(246)]
        t = [V(247), V(255), V(162), V(163), V(164), V(165), V(166), V(167)]
        return rv, tv, gv, t

    def poll_loads(self, p, reducer):
        rv, tv, gv, t = self.poll_regs()
        if reducer:
            p.valu("v_lshlrev_b32", t[0], 4, self.vLane)
            p.salu("s_lshl_b32", sT1, S(2), 12)
            for i in range(4):
                p.buf_load("buffer_load_dwordx4", rv[i], t[0], sWS, sT1, 1024 * i, flags="sc1")
        else:
            p.valu("v_lshlrev_b32", t[0], 3, self.vLane)
            p.salu("s_and_b32", sT1, S(2), REP - 1)
            p.salu("s_lshl_b32", sT1, sT1, 11)
            p.salu("s_add_u32", sT1, sT1, WS_TOT)
            for i in range(3):
                p.buf_load("buffer_load_dwordx2", tv.sub(2 * i, 2), t[0], sWS, sT1, 512 * i, flags="sc1")

    def poll_routine(self):
        main, self.p = self.p, Prog()
        p = self.p
        rv, tv, gv, t = self.poll_regs()
        ret = f"s_setpc_b64 {sRET}"
        p.lines.append("Lpoll:")
        p.raw("s_waitcnt vmcnt(0)")
        p.salu("s_cmp_eq_u32", sROLE, 2)
        p.raw("s_cbranch_scc1 LpollC")
        allr = [rv[i].sub(k) for i in range(4) for k in range(4)]
        p.valu("v_max_u32", t[1], allr[0], allr[1])
        for i in range(2, 16, 2):
            p.valu("v_max3_u32", t[1], t[1], allr[i], allr[i + 1])
        p.valu("v_cmp_eq_u32", "vcc", -1, t[1])
        p.nop(5)
        p.raw("s_cbranch_vccz LpollR")
        self.poll_loads(p, True)
        p.raw(ret)
        self.p = p2 = Prog()
        p2.lines.append("LpollR:")
        p2.raw("s_setprio 3")
        for k in range(4):
            p2.valu("v_add_f32", rv[0].sub(k), rv[0].sub(k), rv[1].sub(k))
            p2.valu("v_add_f32", rv[3].sub(k), rv[2].sub(k), rv[3].sub(k))
            p2.valu("v_add_f32", rv[3].sub(k), rv[0].sub(k), rv[3].sub(k))
        for k in range(4):
            self.lane_sum64(rv[3].sub(k), t[1])
            p2.valu("v_min_u32", rv[3].sub(k), -2, rv[3].sub(k))
        p2.salu("s_lshl_b32", sT1, S(2), 4)
        p2.salu("s_add_u32", sT1, sT1, WS_TOT)
        p2.valu("v_lshlrev_b32", t[1], 11, self.vLane)
        p2.raw(f"s_mov_b64 exec, {hex((1 << REP) - 1)}")
        p2.buf_store("buffer_store_dwordx4", rv[3], t[1], sWS, sT1, flags="sc1")
        p2.raw("s_mov_b64 exec, -1")
        p2.salu("s_mov_b32", sROLE, 2)
        self.poll_loads(p2, False)
        p2.raw(ret)
        self.p = p3 = Prog()
        p3.lines.append("LpollC:")
        p3.valu("v_max3_u32", t[1], tv.sub(0), tv.sub(1), tv.sub(2))
        p3.valu("v_max3_u32", t[1], t[1], tv.sub(3), tv.sub(4))
        p3.valu("v_max_u32", t[1], t[1], tv.sub(5))
        p3.valu("v_cmp_eq_u32", "vcc", -1, t[1])
        p3.nop(5)
        p3.raw("s_cbranch_vccz LpollS")
        self.poll_loads(p3, False)
        p3.raw(ret)
        self.p = p4 = Prog()
        p4.lines.append("LpollS:")
        p4.raw("s_setprio 3")
        p4.salu("s_mov_b32", sT0, f2u(1.0 / (GA * GA)))
        p4.valu("v_mov_b32", t[2], f2u(1e-6))
        for i in range(6):
            p4.valu("v_fma_f32", tv.sub(i), tv.sub(i), sT0, t[2])
        for i in range(6):
            p4.valu("v_sqrt_f32", tv.sub(i), tv.sub(i))
        p4.valu("v_add_f32", t[3], tv.sub(0), tv.sub(1))
        for i in range(2, 6):
            p4.valu("v_add_f32", t[3], t[3], tv.sub(i))
        self.lane_sum64(t[3], t[1])
        p4.salu("s_mov_b32", sT0, f2u(1.0 / 384))
        p4.valu("v_fma_f32", t[3], t[3], sT0, t[2])
        p4.valu("v_rcp_f32", t[3], t[3])
        p4.valu("v_mov_b32", t[2], f2u(1.0 / GA))
        p4.valu("v_mul_f32", t[3], t[3], t[2])
        for i in range(3):
            p4.valu("v_lshlrev_b32", t[4], 16, gv[i])
            p4.valu("v_and_b32", t[5], 0xFFFF0000, gv[i])
            p4.valu("v_mul_f32", tv.sub(2 * i), tv.sub(2 * i), t[3])
            p4.valu("v_mul_f32", tv.sub(2 * i + 1), tv.sub(2 * i + 1), t[3])
            p4.valu("v_fma_f32", t[4], t[4], tv.sub(2 * i), t[2])
            p4.valu("v_fma_f32", t[5], t[5], tv.sub(2 * i + 1), t[2])
            p4.valu("v_cvt_pk_f16_f32", gv[i], t[4], t[5])
        p4.salu("s_mov_b32", sROLE, 0)
        p4.raw(ret)
        self.p = main
        for q in (p, p2, p3, p4):
            main.lines += q.lines

    def poll_point(self, k):
        p = self.p
        self.cond("s_cmp_eq_u32", sROLE, 0, f"Lpp{k}", lambda: (p.raw(f"s_call_b64 {sRET}, Lpoll"), p.raw(f"s_setprio {self.prio}")))

    def gap(self):
        p, o, lane = self.p, self.o, self.vLane
        rv, tv, gv, t = self.poll_regs()
        wa = self.tq[1]
        p.valu("v_mov_b32", wa, self.vX)
        p.salu("s_mov_b32", sROLE, 0)

        def role():
            p.valu("v_lshlrev_b32", t[1], 2, lane)
            for i in range(3):
                p.buf_load("buffer_load_dword", gv[i], t[1], sGA, 0, 256 * i)
            p.valu("v_mov_b32", t[2], 0)
            p.label("Lpi")
            p.buf_load("buffer_load_dword", t[3], t[2], sDBG, flags="sc1")
            p.valu("v_readfirstlane_b32", sT0, t[3])
            self.spin_guard("Lpix")
            p.salu("s_cmp_lt_u32", sT0, 256)
            p.branch("s_cbranch_scc1", "Lpi")
            p.label("Lpix")
            p.valu("v_min_u32", t[0], 47, lane)
            p.valu("v_lshlrev_b32", t[0], 3, t[0])
            p.salu("s_and_b32", sT1, S(2), REP - 1)
            p.salu("s_lshl_b32", sT1, sT1, 11)
            p.salu("s_add_u32", sT1, sT1, WS_TOT + 1536)
            p.buf_load("buffer_load_dwordx2", V(166, 2), t[0], sWS, sT1, flags="sc1")
            p.valu("v_add_u32", t[1], BT0, t[0])
            p.valu("v_add_u32", t[0], BT1 - 256, t[0])
            p.valu("v_cmp_gt_u32", "vcc", 32, lane)
            p.valu("v_cndmask_b32", t[0], t[0], t[1], "vcc")
            p.ds_write("ds_write_b64", t[0], V(166, 2))
            p.wait_all()
            p.salu("s_cmp_lt_u32", S(2), 96)
            p.salu("s_cselect_b32", sROLE, 1, 2)
            for r in rv:
                for i in range(4):
                    p.valu("v_mov_b32", r.sub(i), -1)
            p.raw(f"s_call_b64 {sRET}, Lpoll")
        self.cond("s_cmp_lg_u32", sWAVE, 0, "Lnorole", role)
        self.setprio(0)
        p.lds_age = o.get('age1', 24)
        NE = len(self.J2)
        P = [seg() for _ in range(NE + 2)]
        ln = self.LN[2]
        for s, S_ in enumerate(P):
            if 0 <= s - 1 < NE:
                S_['fill'] = self.period_fill(regs(self.Y), o.get('ndg', 5), G=regs(self.S2[self.J2[s - 1]]), fl=s == NE)
            if s < NE:
                S_['mf'] = self.gemm1_32(self.J2[s], ln, True, 8 if s else 0)
                S_['head'], S_['tail'] = 32, o.get('t1', 24)
            if 0 <= s - 2 < NE:
                G = self.S2[self.J2[s - 2]]
                self.mix_in(S_, self.swaps(G.sub(0, 4), G.sub(4, 4)))
            S_['end'].append(lambda s=s: self.poll_point(s))
            if o.get('pp2', 0) and 1 <= s <= NE:
                insert_at(P, s + 0.5, lambda s=s: (self.flush(), self.poll_point(100 + s)))
        self.mix_in(P[NE], [x for u in range(3) for x in self.swaps(ln.sub(8 * u, 4), ln.sub(8 * u + 4, 4))])
        ws_ = max(0, NE - o.get('w2b', 3))
        P[ws_]['end'] += [lambda: self.lds_spin(self.tq[2], self.tq[3], 4, 1, "w2"), lambda: self.w2_fetch(wa, 7), lambda: self.w2_fetch(wa, 8)]
        for a in range(0, NE + 2, 3):
            self.ladder(P, a, a + 3, flts(o.get('pfg', '0,0.45,0.8')))
        self.run(P, self.ring2)
        p.lds_age = 0
        self.stamp(224)
        p.raw("s_setprio 2")
        fr = [V(120 + 4 * u, 4) for u in range(9)]
        u = [V(224 + i) for i in range(4)]
        p.valu("v_lshrrev_b32", u[1], 5, lane)
        p.valu("v_lshl_add_u32", u[0], u[1], 9, sPRIV)
        p.valu("v_lshl_add_u32", u[2], u[1], 4, sPRIV)
        p.valu("v_and_b32", u[1], 15, lane)
        p.valu("v_lshl_add_u32", u[0], u[1], 4, u[0])
        p.valu("v_bfe_u32", u[1], lane, 4, 1)
        p.valu("v_lshl_add_u32", u[0], u[1], 3, u[0])
        p.raw("s_waitcnt vmcnt(0)")
        p.vm_done = p.vm_seq
        for k in range(9):
            for i in range(2):
                p.ds_read("ds_read_b64_tr_b16", fr[k].sub(2 * i, 2), u[0], k * 1024 + i * 256)
        g, n = u[1], u[3]
        p.valu("v_lshrrev_b32", g, 4, lane)
        p.valu("v_and_b32", n, 15, lane)
        p.valu("v_mul_u32_u24", self.vG, 192, n)
        p.valu("v_lshl_add_u32", self.vG, g, 4, self.vG)
        p.valu("v_lshlrev_b32", self.vBias, 5, g)
        p.valu("v_and_b32", self.vR, 0x2F, lane)
        p.valu("v_lshlrev_b32", self.vR, 4, self.vR)
        p.valu("v_and_b32", g, 1, g)
        p.valu("v_mul_u32_u24", n, 3072, g)
        p.valu("v_add_u32", self.vA[0], n, self.vR)
        p.valu("v_add_u32", self.vA[1], 0x10000, self.vA[0])
        p.valu("v_add_u32", self.vA[2], 0x20000, self.vA[0])
        p.valu("v_lshl_add_u32", self.vR, g, self.fsh, self.vR)
        p.valu("v_mov_b32", u[1], CNT)
        p.valu("v_mov_b32", u[3], 1)
        p.wait_all(vm=False)
        p.raw("s_mov_b64 exec, 1")
        p.raw(f"ds_add_u32 {u[1]}, {u[3]} offset:8")
        p.raw("s_mov_b64 exec, -1")
        p.lgkm_seq += 1
        w = [V(228 + i) for i in range(4)]
        for k in range(36):
            f, a, b = V(120 + k), w[2 * (k % 2)], w[2 * (k % 2) + 1]
            p.valu("v_lshlrev_b32", a, 16, f)
            p.valu("v_and_b32", b, 0xFFFF0000, f)
            p.valu("v_cvt_pk_f16_f32", f, a, b)
            if k % 12 == 11:
                self.prio = 2
                self.poll_point(200 + k)
        p.valu("v_lshl_add_u32", u[0], lane, 4, sPRIV)

        def finish():
            p.lines.append("Lspin:")
            p.salu("s_cmp_eq_u32", sROLE, 0)
            p.raw("s_cbranch_scc1 Lspinx")
            self.spin_guard("Lspinx")
            p.raw(f"s_call_b64 {sRET}, Lpoll")
            p.raw("s_branch Lspin")
            p.lines.append("Lspinx:")
            for i in range(3):
                p.valu("v_add_u32", t[2 + i], 64 * i, lane)
                p.valu("v_mul_u32_u24", t[5], 2731, t[2 + i])
                p.valu("v_lshrrev_b32", t[5], 16, t[5])
                p.valu("v_mul_u32_u24", t[5], 9216 - 96, t[5])
                p.valu("v_lshl_add_u32", t[2 + i], t[2 + i], 2, t[5])
                p.valu("v_add_u32", t[2 + i], W2R, t[2 + i])
            self.lds_spin(t[5], t[6], 8, 8, "rr")
            for i in range(3):
                p.ds_write("ds_write_b32", t[2 + i], gv[i])
        self.cond("s_cmp_lg_u32", sWAVE, 0, "Lnofin", finish)
        p.raw("s_waitcnt lgkmcnt(0)")
        p.lgkm_done = p.lgkm_seq
        self.stamp(228)
        p.barrier()
        self.stamp(228)
        sc = [V(228, 4), V(232, 4), V(236, 4)]
        for k in range(3):
            p.ds_read("ds_read_b128", sc[k], u[2], 32 * k)
        self.early_loads()
        p.wait_all(vm=False)
        for k in range(9):
            for i in range(4):
                p.valu("v_pk_mul_f16", fr[k].sub(i), fr[k].sub(i), sc[k // 3].sub(i))
            p.ds_write("ds_write_b128", u[0], fr[k], k * 1024)
        p.wait_all(vm=False)
        p.barrier()
        self.stamp(228)

    def load_x1(self, dst, ti, k):
        p = self.p
        if k % 2:
            p.salu("s_add_u32", sT3, sTILE[ti], ROWB)
        p.buf_load("buffer_load_dwordx4", dst, self.vG, sX, sT3 if k % 2 else sTILE[ti], 64 * (k // 2), flags=self.o.get('xlf', ''))

    def reload_ln(self, ti, dst):
        p = self.p
        return [lambda k=k: self.ws_frag(6 * ti + (k & ~1), lambda so: p.buf_load(
            "buffer_load_dwordx4", dst[k], self.vR, sWS, so, 256 * (k & 1), flags=self.o.get('rlf', ''))) for k in range(6)]

    def early_loads(self):
        self.load_x1(V(240, 4), 3, 0)
        self.load_x1(V(244, 4), 3, 1)

    def gemm1_16(self, j, ln, y, need):
        p = self.p
        return [dict(reads=[self.frag(W1F + (j * 6 + u) * 1024 + 256 * b)], need=need,
                     emit=[(lambda w, u=u, b=b, r=r: p.mfma(y[2 * r + b], w, ln[2 * u + r], y[2 * r + b] if u else 0)) for r in range(2)])
                for u in range(3) for b in range(2)]

    def gemm2_16(self, j, users, tag=None):
        p = self.p
        items = []
        for T in range(3):
            for b in range(2):
                reads = [self.frag(W2R + (j * 6 + T) * 1024 + 256 * b)]
                if any(f for _, _, f in users):
                    reads.append(rd128(self.vBias, (BT0 + 128 * T if T < 2 else BT1) + 16 * b))
                em = []
                for acc, G, f in users:
                    for r in range(2):
                        d = acc[2 * T + r].sub(4 * b, 4)
                        em.append(lambda w, c=None, d=d, G=G, r=r, f=f: p.mfma(d, w, G.sub(4 * r, 4), c if f else d, 'f16'))
                items.append(dict(reads=reads, emit=em, tag=tag if (T, b) == (2, 1) else None))
        return items

    def resid_item(self, acc, k, x):
        p = self.p
        return dict(reads=[], emit=[(lambda b=b: p.mfma(acc[k].sub(4 * b, 4), self.id16.sub(2 - 2 * b, 4), x, acc[k].sub(4 * b, 4))) for b in range(2)])

    def ident16(self):
        p, lane, I = self.p, self.vLane, self.id16
        a, b = I.sub(0), I.sub(1)
        ops = [lambda: p.valu("v_and_b32", a, 1, lane),
               lambda: p.valu("v_lshlrev_b32", a, 4, a),
               lambda: p.valu("v_mov_b32", b, 0x3F80),
               lambda: p.valu("v_lshlrev_b32", a, a, b),
               lambda: p.valu("v_lshrrev_b32", b, 2, lane),
               lambda: p.valu("v_xor_b32", b, b, lane),
               lambda: p.valu("v_and_b32", b, 12, b),
               lambda: p.valu("v_and_b32", I.sub(4), 2, lane),
               lambda: p.valu("v_or_b32", b, b, I.sub(4)),
               lambda: (p.valu("v_cmp_eq_u32", "vcc", 0, b), p.valu("v_cndmask_b32", I.sub(2), 0, a, "vcc")),
               lambda: (p.valu("v_cmp_eq_u32", "vcc", 2, b), p.valu("v_cndmask_b32", I.sub(3), 0, a, "vcc"))]
        ops += [lambda i=i: p.valu("v_mov_b32", I.sub(i), 0) for i in (0, 1, 4, 5)]
        return [(4, f) for f in ops]

    def out_ops(self, acc, ti, k):
        p = self.p
        a = acc[k]

        def st():
            if k % 2:
                p.salu("s_add_u32", sT3, sTILE[ti], ROWB)
            p.buf_store("buffer_store_dwordx4", a.sub(0, 4), self.vG, sOUT, sT3 if k % 2 else sTILE[ti], 64 * (k // 2), flags=self.o.get('osf', 'sc1'))
        return [(4, lambda i=i: p.valu("v_cvt_pk_bf16_f32", a.sub(i), a.sub(2 * i), a.sub(2 * i + 1))) for i in range(4)] + [(0, lambda: self.gq.append(st))]

    def phase2(self):
        p, o = self.p, self.o
        S3, S2, J2 = self.S3, self.S2, self.J2
        assert len(J2) == 7
        C2_ = [j for j in range(12) if j not in J2]
        half = lambda v: [v.sub(0, 4), v.sub(4, 4)]
        A = [V(120 + 8 * i, 8) for i in range(6)]
        o1 = C2_ + J2[:1]
        B = [S3[j] for j in o1]
        f2 = [S3[j] for j in J2[1:4]] + [S2[j] for j in J2[1:4]]
        f3 = [S3[j] for j in J2[4:7]] + [S2[j] for j in J2[4:7]]
        R0 = half(f2[0]) + half(f2[3]) + half(f2[1])
        self.id16 = f2[4].sub(0, 6)
        Y = half(f2[2]) + half(f2[5])
        W = regs(f3[0], f3[3], f3[1].sub(0, 4))
        G = f3[4]
        ring3 = self.ring2 + half(f3[2])
        xs = [V(240, 4), V(244, 4), f3[1].sub(4, 4)] + half(f3[5])
        R1 = [self.LN[2].sub(4 * k, 4) for k in range(6)]
        self.ge = Gelu(self, W, sK, sM, 0)
        seq = [(2, j) for j in C2_] + [(0, j) for j in [J2[0]] + [j for j in range(12) if j != J2[0]]] + [(1, j) for j in range(12)]
        NE = len(seq)
        pre = [seg() for _ in range(7)]
        for k, j in enumerate(o1):
            pre[0]['mf'] += self.gemm2_16(j, [(A, S3[j], k == 0)])
        for k, j in enumerate(J2[1:]):
            pre[1 + k]['mf'] += self.gemm2_16(j, [(A, S3[j], False), (B, S2[j], k == 0)])
        rl = self.reload_ln(0, R0)
        pre[2]['vm'] += rl[:4]
        pre[3]['vm'] += rl[4:]
        pre[3]['fill'] += self.ident16()
        g1 = self.gemm1_16(seq[0][1], R1, Y, 0)
        for k in range(2):
            m = pre[4 + k]['mf']
            pre[4 + k]['mf'] = [x for i in range(3) for x in (m[2 * i], g1[3 * k + i], m[2 * i + 1])]
        NP = NE + 2
        P = [seg() for _ in range(NP)]
        P[0] = pre.pop()
        for s in pre + P:
            s['cl'] = 1
        acc = {2: B, 0: A, 1: B, 3: A}
        lns = {2: R1, 0: R0, 1: R1}
        nds = ints(o.get('nd2', '5'))
        yl = regs(*Y)
        ex = [[] for _ in range(NP)]
        for s in range(NP):
            S_ = P[s]
            a = self.gemm1_16(seq[s + 1][1], lns[seq[s + 1][0]], Y, 8) if s + 1 < NE else []
            b = list(S_['mf'])
            if 1 <= s <= NE:
                ti, j = seq[s - 1]
                users = [(acc[ti], G, ti != 2 and seq[s - 2][0] != ti)]
                if (ti, j) == (0, J2[0]):
                    users.append((B, S2[j], False))
                b = self.gemm2_16(j, users, 'g')
            if s < NE:
                S_['fill'] = self.period_fill(yl, nds[s % len(nds)], G=regs(G), tag='g' if s else None, ph=2)
            S_['ab'] = (a, b)
            S_['tail'] = o.get('t2', 32)
        n2 = len(C2_)
        allseg = pre + P
        base = len(pre)
        lead, minl = o.get('lead', 3), o.get('minl', 2)
        avail = {0: None, 1: None, 2: 0, 3: 1, 4: 1}
        done = {}
        want = [(-2, 3, 0), (-2, 3, 1)] + [(0, 3, k) for k in range(2, 6)]
        for ti, r0, st in ((2, o.get('r2', 5), o.get('r2s', 1)), (0, o.get('r0', 11), o.get('r0s', 1)), (1, o.get('r1', 22), o.get('r1s', 1))):
            want += [(int(r0 + k * st), ti, k) for k in range(6)]
        want.sort(key=lambda w: w[0])
        for i, (s, ti, k) in enumerate(want):
            if i < 2:
                bi = i
            else:
                bi = min(avail, key=lambda b_: (avail[b_], b_))
                at = max(avail[bi], s - lead)
                s = max(s, at + minl)
                allseg[base + at]['vm'].append(lambda buf=xs[bi], ti=ti, k=k: self.load_x1(buf, ti, k))
            it = self.resid_item(acc[ti], k, xs[bi])
            (allseg[base + s]['mf'] if s < 0 else ex[s]).append(it)
            avail[bi] = s + 1
            done[(ti, k)] = s
        first = {3: -9, 2: -9, 0: n2 + 1, 1: n2 + 13}
        assert all(done[(ti, k)] > first[ti] for ti, k in done), done
        last = {3: 0, 2: n2 + 1, 0: n2 + 12, 1: NE}
        free = {3: n2, 2: n2 + 12, 0: NP - 1, 1: NP - 1}
        for ti, o0, st in ((3, o.get('o3', 1), o.get('o3s', 0.67)), (2, o.get('o2', 8), o.get('o2s', 1.4)), (0, o.get('o0', 18), o.get('o0s', 1.5)), (1, NP - 1, 0)):
            for k in range(6):
                s = max(int(o0 + k * st), done[(ti, k)] + 1, last[ti] + 1)
                assert s <= free[ti], (ti, k, s)
                if s < NE:
                    f = P[s]['fill']
                    cut = next(i for i, x in enumerate(f) if len(x) > 2)
                    P[s]['fill'] = f[:8] + merge(f[8:cut - 4], self.out_ops(acc[ti], ti, k)) + f[cut - 4:]
                else:
                    P[s]['fill'] += self.out_ops(acc[ti], ti, k)[:4] + [(0, self.out_ops(acc[ti], ti, k)[4][1]), (0, self.flush)]
        for k, f in enumerate(self.reload_ln(1, R1)):
            P[int(o.get('rl1', n2 + 2) + k * o.get('rl1s', 1))]['vm'].append(f)
        for s in range(NP):
            a, b = P[s].pop('ab')
            src = {'a': a, 'b': b, 'x': ex[s]}
            P[s]['mf'] = [src[c].pop(0) for c in o.get('ord', 'bbabxababbxaaa' + 'x' * 6) if src[c]]
            assert not any(src.values())
            if s >= 1:
                P[s]['ring'] = ring3
        n_pre = sum(len(s['mf']) for s in pre + P[:1])
        for s in P[1:]:
            s['free_from'] = {v.b: n_pre - 1 for v in half(f3[2])}
        lc = o.get('lc2', 3)
        for a in range(o.get('l2a', 0), NP - o.get('l2e', 4), lc):
            self.ladder(P, a, a + lc, flts(o.get('pf2', '0,0.4,0.7,0.9')))
        for k in ints(o.get('ssp', '0,6,12,18,24' if o.get('dbg') else '0,3,6,10,14,18,22,26')):
            P[k]['end'].append(self.sstamp)
        p.raw(f"s_setprio {o.get('pp', 3)}")
        p.lds_age = o.get('age2', 24)
        self.run(allseg, self.ring2)
        self.stamp(96)
        self.sstamp_flush(100)
        self.mark_flush()

    def build(self):
        self.alloc()
        self.p.raw("s_branch Lmain")
        self.startup_routines()
        self.p.lines.append("Lmain:")
        self.prologue()
        self.phase1()
        self.gap()
        self.phase2()
        self.p.raw("s_endpgm")
        self.poll_routine()
        self.p.lines.append("Lend:")
        self.p.raw("s_endpgm")
        return self.p


HEADER = open('standalone__modern_conv_block_convnext_v2__vision.s.ref').read().split('; Override launch')[0]


def wrap(p):
    return f"""{HEADER}; Generated by gen/gen2.py (hand-written generator; see gen/asmgen.py, gen/engine.py, gen/gelu.py)
; @launch grid=(256,1,1) block=(512,1,1) lds={LDS_BYTES}
.amdgcn_target "amdgcn-amd-amdhsa--gfx950"
.text
.globl {NAME}
.p2align 8
.type {NAME},@function
{NAME}:
{p.text()}
.section .rodata,"a"
.p2align 6
.amdhsa_kernel {NAME}
  .amdhsa_next_free_vgpr 256
  .amdhsa_next_free_sgpr 102
  .amdhsa_accum_offset 256
  .amdhsa_group_segment_fixed_size 0
  .amdhsa_kernarg_size 72
  .amdhsa_user_sgpr_count 2
  .amdhsa_user_sgpr_kernarg_segment_ptr 1
  .amdhsa_system_sgpr_workgroup_id_x 1
.end_amdhsa_kernel
"""


def generate(out, args):
    opt = {}
    for a in args:
        k, v = a.split('=')
        try:
            opt[k] = int(v)
        except ValueError:
            try:
                opt[k] = float(v)
            except ValueError:
                opt[k] = v
    g = Gen(opt)
    p = g.build()
    from align import align_dp
    al = align_dp(p.lines)
    open(out, 'w').write(wrap(p))
    print(out, 'align', al, 'instructions', sum(p.stats.values()), 'stamps', g.nstamp,
          {k: v for k, v in p.stats.items() if k in ('s_nop', 's_waitcnt', 'ds_read_b128') or 'mfma' in k})


if __name__ == '__main__':
    generate(sys.argv[1], sys.argv[2:])
```

```python
class V:
    __slots__ = ("b", "n")

    def __init__(self, b, n=1):
        assert 0 <= b and b + n <= 256, (b, n)
        if n > 1:
            assert b % 2 == 0, ("unaligned tuple", b, n)
        self.b, self.n = b, n

    def __str__(self):
        return f"v{self.b}" if self.n == 1 else f"v[{self.b}:{self.b + self.n - 1}]"

    def regs(self):
        return range(self.b, self.b + self.n)

    def sub(self, off, n=1):
        assert off + n <= self.n
        return V(self.b + off, n)


class S:
    __slots__ = ("b", "n")

    def __init__(self, b, n=1):
        self.b, self.n = b, n

    def __str__(self):
        return f"s{self.b}" if self.n == 1 else f"s[{self.b}:{self.b + self.n - 1}]"

    def sub(self, off, n=1):
        return S(self.b + off, n)


TRANS = ("v_exp_f32", "v_rcp_f32", "v_rsq_f32", "v_sqrt_f32", "v_log_f32",
         "v_exp_f16", "v_rcp_f16", "v_exp_f16_sdwa", "v_rcp_f16_sdwa")
NEG = -10 ** 9


class Prog:
    def __init__(self):
        self.lines = []
        self.pos = 0
        self.w_valu = [NEG] * 256
        self.w_trans = [NEG] * 256
        self.w_mfma = [(NEG, None)] * 256
        self.c_read = [NEG] * 256
        self.st_read = [NEG] * 256
        self.p_lgkm = [None] * 256
        self.p_vm = [None] * 256
        self.lgkm_seq = 0
        self.lgkm_done = 0
        self.vm_seq = 0
        self.vm_done = 0
        self.sgpr_valu_w = {}
        self.m0_w = NEG
        self.stats = {}
        self.lds_age = 0
        self.lds_pos = {}

    def raw(self, text, states=1):
        self.lines.append(text)
        self.pos += states
        k = text.split()[0]
        self.stats[k] = self.stats.get(k, 0) + 1

    def comment(self, text):
        self.lines.append("; " + text)

    def nop(self, n):
        while n > 0:
            k = min(n, 16)
            self.raw(f"s_nop {k - 1}", k)
            n -= k

    def _need(self, target):
        if target > self.pos:
            self.nop(target - self.pos)

    def wait(self, lgkm=None, vm=None):
        parts = []
        if vm is not None and vm > self.vm_done:
            n = min(self.vm_seq - vm, 63)
            parts.append(f"vmcnt({n})")
            self.vm_done = self.vm_seq - n
        if lgkm is not None and lgkm > self.lgkm_done:
            if self.lds_age:
                while lgkm < self.lgkm_seq and self.lds_pos.get(lgkm + 1, self.pos) <= self.pos - self.lds_age:
                    lgkm += 1
            n = min(self.lgkm_seq - lgkm, 15)
            parts.append(f"lgkmcnt({n})")
            self.lgkm_done = self.lgkm_seq - n
        if parts:
            self.raw("s_waitcnt " + " ".join(parts))

    def wait_all(self, lgkm=True, vm=True):
        self.wait(self.lgkm_seq if lgkm else None, self.vm_seq if vm else None)

    def sync(self):
        self.raw("s_waitcnt vmcnt(0) lgkmcnt(0)")
        self.lgkm_done = self.lgkm_seq
        self.vm_done = self.vm_seq
        last = max(p for p, _ in self.w_mfma)
        self._need(max(last + 1 + 12, self.pos + 5))

    def _mem_deps(self, regs):
        lg = vm = None
        for r in regs:
            if self.p_lgkm[r] is not None:
                lg = max(lg or 0, self.p_lgkm[r])
            if self.p_vm[r] is not None:
                vm = max(vm or 0, self.p_vm[r])
        self.wait(lg, vm)

    @staticmethod
    def _vregs(ops):
        out = []
        for o in ops:
            if isinstance(o, V):
                out.extend(o.regs())
        return out

    def _sgpr_from_valu(self, ops, states):
        for o in ops:
            if isinstance(o, S):
                for r in range(o.b, o.b + o.n):
                    if r in self.sgpr_valu_w:
                        self._need(self.sgpr_valu_w[r] + 1 + states)
            elif o == "vcc" and "vcc" in self.sgpr_valu_w:
                self._need(self.sgpr_valu_w["vcc"] + 1 + states)

    def valu(self, op, dst, *src, mods="", rmw=False, extra_w=()):
        rd = self._vregs(src)
        wr = self._vregs([dst] + list(extra_w))
        if rmw:
            rd += wr
        self._mem_deps(rd + wr)
        trans = op in TRANS
        t = self.pos
        for r in rd + wr:
            t = max(t, self.w_mfma[r][0] + 1 + 12)
        for r in wr:
            t = max(t, self.c_read[r] + 1 + 7, self.st_read[r] + 1 + 2)
        if not trans or rmw:
            for r in rd:
                t = max(t, self.w_trans[r] + 1 + 1)
        if "permlane" in op or "dpp" in op:
            for r in rd:
                t = max(t, self.w_valu[r] + 1 + 2)
        if "readfirstlane" in op or "readlane" in op:
            for r in rd:
                t = max(t, self.w_valu[r] + 1 + 1)
        self._need(t)
        self._sgpr_from_valu(src, 2)
        txt = f"{op} {dst}" + "".join(f", {s}" for s in src) + (" " + mods if mods else "")
        p = self.pos
        self.raw(txt)
        for r in wr:
            self.w_valu[r] = p
            if trans:
                self.w_trans[r] = p
        if isinstance(dst, S):
            for r in range(dst.b, dst.b + dst.n):
                self.sgpr_valu_w[r] = p
        elif dst == "vcc":
            self.sgpr_valu_w["vcc"] = p

    def swap32(self, a, b):
        self.valu("v_permlane32_swap_b32", a, b, rmw=True, extra_w=(b,))

    def swap16(self, a, b):
        self.valu("v_permlane16_swap_b32", a, b, rmw=True, extra_w=(b,))

    def hi16(self, op, dst, src):
        self.valu(op + "_sdwa", dst, src, mods="dst_sel:WORD_1 dst_unused:UNUSED_PRESERVE src0_sel:WORD_1", rmw=True)

    def mfma(self, d, a, b, c, ty="bf16"):
        rd_ab = self._vregs([a, b])
        rd_c = self._vregs([c])
        wr = list(d.regs())
        self._mem_deps(rd_ab + rd_c + wr)
        t = self.pos
        for r in rd_ab + rd_c:
            t = max(t, self.w_valu[r] + 1 + 2)
        for r in rd_ab:
            t = max(t, self.w_mfma[r][0] + 1 + 12)
        key = (d.b, d.n)
        for r in rd_c:
            p, k = self.w_mfma[r]
            if k != (c.b, c.n):
                t = max(t, p + 1 + 10)
        for r in wr:
            p, k = self.w_mfma[r]
            if not (isinstance(c, V) and k == (c.b, c.n) == key):
                t = max(t, p + 1 + 10)
            t = max(t, self.st_read[r] + 1 + 2)
        self._need(t)
        p = self.pos
        short = 4 if d.n == 4 else 0
        name = ("v_mfma_f32_16x16x32_" if d.n == 4 else "v_mfma_f32_32x32x16_") + ty
        self.raw(f"{name} {d}, {a}, {b}, {c}")
        for r in wr:
            self.w_mfma[r] = (p - short, key)
        for r in rd_c:
            self.c_read[r] = p - short

    def smfmac(self, d, a, b, idx):
        n = len(self.lines)
        t = max(self.w_valu[idx.b] + 1 + 2, self.w_mfma[idx.b][0] + 1 + 12)
        self._need(t)
        self.mfma(d, a, b, d)
        assert self.lines[-1].startswith("v_mfma_f32_16x16x32_bf16")
        self.lines[-1] = f"v_smfmac_f32_16x16x32_bf16 {d}, {a}, {b}, {idx}"

    def _mem_issue(self, rd, wr):
        self._mem_deps(rd + wr)
        t = self.pos
        for r in rd + wr:
            t = max(t, self.w_mfma[r][0] + 1 + 12)
        for r in rd:
            t = max(t, self.w_trans[r] + 1 + 1)
        for r in wr:
            t = max(t, self.c_read[r] + 1 + 7, self.st_read[r] + 1 + 1)
        self._need(t)

    def ds_read(self, op, dst, addr, off=0):
        assert 0 <= off < 65536, off
        self._mem_issue([addr.b], list(dst.regs()))
        self.raw(f"{op} {dst}, {addr}" + (f" offset:{off}" if off else ""))
        self.lgkm_seq += 1
        self.lds_pos[self.lgkm_seq] = self.pos
        for r in dst.regs():
            self.p_lgkm[r] = self.lgkm_seq
        return self.lgkm_seq

    def ds_write(self, op, addr, data, off=0):
        assert 0 <= off < 65536, off
        self._mem_issue([addr.b] + list(data.regs()), [])
        p = self.pos
        self.raw(f"{op} {addr}, {data}" + (f" offset:{off}" if off else ""))
        for r in data.regs():
            self.st_read[r] = p
        self.lgkm_seq += 1
        return self.lgkm_seq

    def _vm_text(self, op, data, voff, srd, soff, off, flags):
        assert 0 <= off < 4096, off
        self._sgpr_from_valu([srd, soff], 5)
        t = op + " " + (f"{data}, " if data is not None else "") + f"{voff}, {srd}, {soff} offen"
        if off:
            t += f" offset:{off}"
        if flags:
            t += " " + flags
        return t

    def buf_load(self, op, dst, voff, srd, soff=0, off=0, flags=""):
        self._mem_issue([voff.b], list(dst.regs()))
        self.raw(self._vm_text(op, dst, voff, srd, soff, off, flags))
        self.vm_seq += 1
        for r in dst.regs():
            self.p_vm[r] = self.vm_seq
        return self.vm_seq

    def buf_store(self, op, data, voff, srd, soff=0, off=0, flags="", ret=False):
        self._mem_issue([voff.b] + list(data.regs()), [])
        txt = self._vm_text(op, data, voff, srd, soff, off, flags)
        p = self.pos
        self.raw(txt)
        self.vm_seq += 1
        for r in data.regs():
            self.st_read[r] = p
            if ret:
                self.p_vm[r] = self.vm_seq
        return self.vm_seq

    def dma(self, voff, srd, soff=0, off=0, flags=""):
        self._mem_issue([voff.b], [])
        self._need(self.m0_w + 1 + 1)
        self.raw(self._vm_text("buffer_load_dwordx4", None, voff, srd, soff, off, (flags + " lds").strip()))
        self.vm_seq += 1
        return self.vm_seq

    def salu(self, op, *ops):
        self._sgpr_from_valu(ops, 2)
        p = self.pos
        self.raw(f"{op} " + ", ".join(str(o) for o in ops))
        if ops and ops[0] == "m0":
            self.m0_w = p

    def label(self, name):
        self.sync()
        self.lines.append(f"{name}:")

    def branch(self, op, name):
        self.sync_soft()
        self.raw(f"{op} {name}")

    def sync_soft(self):
        self.raw("s_waitcnt vmcnt(0) lgkmcnt(0)")
        self.lgkm_done = self.lgkm_seq
        self.vm_done = self.vm_seq
        last = max(p for p, _ in self.w_mfma)
        self._need(max(last + 1 + 12, self.pos + 5))

    def cond_begin(self):
        self._cond = (self.vm_seq, self.vm_done, self.lgkm_seq, self.lgkm_done)
        self._cond_pos = self.pos

    def cond_end(self):
        vs, vd, ls, ld = self._cond
        for arr, lim in ((self.p_vm, vs), (self.p_lgkm, ls)):
            for r in range(256):
                if arr[r] is not None and arr[r] > lim:
                    arr[r] = lim
        self.vm_done = min(vd, vs - 1) if self.vm_seq > vs else vd
        self.lgkm_done = min(ld, ls - 1) if self.lgkm_seq > ls else ld
        self.vm_seq, self.lgkm_seq = vs, ls
        shift = self.pos - self._cond_pos
        for arr in (self.w_valu, self.w_trans, self.c_read, self.st_read):
            for r in range(256):
                if arr[r] < self._cond_pos:
                    arr[r] += shift
        for r in range(256):
            if self.w_mfma[r][0] < self._cond_pos:
                self.w_mfma[r] = (self.w_mfma[r][0] + shift, self.w_mfma[r][1])
        for k, v in self.sgpr_valu_w.items():
            if v < self._cond_pos:
                self.sgpr_valu_w[k] = v + shift
        if self.m0_w < self._cond_pos:
            self.m0_w += shift
        return vs

    def barrier(self):
        self.raw("s_barrier")

    def text(self):
        return "\n".join(self.lines) + "\n"
```

```python
import math
import struct
import sys

from gelu import *

NAME = 'standalone__modern_conv_block_convnext_v2__vision_kernel'


def f2u(x):
    return struct.unpack('<I', struct.pack('<f', x))[0]


C2 = -2 * math.sqrt(2 / math.pi) * math.log2(math.e)
C1 = C2 * 0.044715
KH = 0x44EA
GK = 4.9140625
GA = C2 / GK
GC = C1 / GA ** 3

H0, H1 = 0x1F00, 0x3F00
BT0, BT1 = H0, H1
CNT = H1 + 128
E_ROW, E_FREE, E_W1, E_W1B, E_ROWA = 12, 16, 20, 24, 28
W1F = 16384
W2R = 90112
RP = 6656
DIAG = W2R + 10 * RP
TABO = 7168
LDS_BYTES = 163840
WS_TOT = 96 * 256 * 16
WS_STAMP = 1 << 20
WS_LN = 4 << 20
WS_BYTES = 80 << 20
OOB_V = 0x80000000
OOB_S = 0x40000000
X_BYTES = 512 * 512 * 96 * 2
ROWB = 512 * 192
REP = 8

sX, sOUT, sW1, sW2, sDW, sGA, sBE, sWS, sDBG = [S(4 + 4 * i, 4) for i in range(9)]
sWAVE, sX0, sY0, sT0, sT1, sT2, sT3 = [S(40 + i) for i in range(7)]
sK, sM = S(48), S(49)
sYB, sXM, sROWT = S(66), S(67), S(47)
sW1L, sW1G = S(77), S(3)
sTILE = [S(68 + i) for i in range(4)]
sPRIV = S(72)
sSTAMP = S(73)
sEX = S(74, 2)
sEV = sEX
sCNT = S(76)
sROLE = S(77)
sRET = S(78, 2)
sLNB, sW2B = S(80), S(82)
sLD = S(80, 16)
sTM = S(96, 2)
sRT = S(98, 2)


def ints(s):
    return [int(x) for x in str(s).split(',') if x not in ('', 'n')]


def flts(s):
    return [float(x) for x in str(s).split(',') if x not in ('', 'n')]


class Gen(Engine):
    def __init__(self, opt):
        super().__init__(opt)
        self.nstamp = 0
        self.ss = []
        self.mk = []
        self.nrow = self.nready = 0

    def stamp(self, tb):
        if not self.o.get('stamps'):
            self.nmk = getattr(self, 'nmk', 0) + 1
            if True:
                self.mark()
            return
        p = self.p
        t = V(tb, 4)
        p.raw(f"s_memtime {sTM}")
        p.raw(f"s_memrealtime {sRT}")
        p.raw("s_waitcnt lgkmcnt(0)")
        p.lgkm_done = p.lgkm_seq
        for i in range(4):
            p.valu("v_mov_b32", t.sub(i), S(sTM.b + i))
        p.raw("s_mov_b64 exec, 1")
        p.buf_store("buffer_store_dwordx4", t, self.vA[0], sWS, sSTAMP, 16 * self.nstamp)
        p.raw("s_mov_b64 exec, -1")
        p.nop(2)
        self.nstamp += 1

    def mark(self):
        if not self.o.get('dbg'):
            return
        p = self.p
        r = S((84, 86, 88, 90, 92, 94, 50, 52, 54, 56, 58, 60, 62, 64)[len(self.mk)], 2)
        self.mk.append(r)
        p.raw(f"s_memrealtime {r}")
        p.raw("s_waitcnt lgkmcnt(0)")
        p.lgkm_done = p.lgkm_seq

    def mark_flush(self):
        if not self.o.get('dbg'):
            return
        p = self.p
        p.raw("s_waitcnt vmcnt(0)")
        self.mark()
        p.salu("s_and_b32", sT0, S(2), 0x78)
        p.salu("s_and_b32", sT1, sWAVE, 3)
        p.salu("s_or_b32", sT0, sT0, sT1)
        p.salu("s_cmp_lg_u32", sT0, 0)
        p.raw("s_cbranch_scc1 Lend")
        p.raw("s_mov_b64 exec, 1")
        p.salu("s_not_b32", sT0, S(100))
        p.valu("v_mov_b32", V(96), sT0)
        p.raw(f"buffer_atomic_umax v96, {self.vA[0]}, {sDBG}, 0 offen offset:4")
        for k, r in enumerate(self.mk):
            p.valu("v_mov_b32", V(97 + k), r.sub(0))
            p.raw(f"buffer_atomic_umax v{97 + k}, {self.vA[0]}, {sDBG}, 0 offen offset:{8 + 4 * k}")

    def sstamp(self, where='p2'):
        if not self.o.get('stamps') or self.o.get('fine', 'p2') != where:
            if where == 'p2':
                self.mark()
            return
        p = self.p
        k = len(self.ss)
        self.ss.append(S((50, 52, 54, 56, 58, 60, 84, 86, 88, 90, 92, 94)[k], 2))
        p.raw(f"s_memtime {self.ss[-1]}")
        p.raw("s_waitcnt lgkmcnt(0)")
        p.lgkm_done = p.lgkm_seq

    def sstamp_flush(self, tb):
        p = self.p
        t = V(tb, 4)
        if self.o.get('stamps'):
            for i in range(4):
                p.valu("v_mov_b32", t.sub(i), S(62 + i))
            p.raw("s_mov_b64 exec, 1")
            p.buf_store("buffer_store_dwordx4", t, self.vA[0], sWS, sSTAMP, 0)
            p.raw("s_mov_b64 exec, -1")
            p.nop(2)
            p.raw("s_getreg_b32 s100, hwreg(HW_REG_XCC_ID)")
            p.raw("s_getreg_b32 s101, hwreg(HW_REG_HW_ID)")
            self.ss.append(S(100, 2))
        for r in self.ss:
            p.valu("v_mov_b32", t.sub(0), r.sub(0))
            p.valu("v_mov_b32", t.sub(1), r.sub(1))
            p.valu("v_mov_b32", t.sub(2), sRT.sub(0))
            p.valu("v_mov_b32", t.sub(3), sRT.sub(1))
            p.raw("s_mov_b64 exec, 1")
            p.buf_store("buffer_store_dwordx4", t, self.vA[0], sWS, sSTAMP, 16 * self.nstamp)
            p.raw("s_mov_b64 exec, -1")
            p.nop(2)
            self.nstamp += 1

    def frag(self, byte, ring=None):
        return rd128(self.vA[byte >> 16], byte & 0xFFFF, ring)

    def srd(self, d, ptr, nbytes):
        p = self.p
        p.salu("s_mov_b32", d.sub(0), ptr.sub(0))
        p.salu("s_and_b32", d.sub(1), ptr.sub(1), 0xFFFF)
        p.salu("s_mov_b32", d.sub(2), nbytes)
        p.salu("s_mov_b32", d.sub(3), 0x20000)

    def row_off(self, dst, base, delta):
        p = self.p
        p.salu("s_add_i32", sT0, base, delta)
        p.salu("s_mul_i32", sT1, sT0, ROWB)
        p.salu("s_cmp_lt_u32", sT0, 512)
        p.salu("s_cselect_b32", dst, sT1, OOB_S)

    def lane_sum64(self, v, t):
        p = self.p
        for r in (8, 4, 2, 1):
            p.valu("v_add_f32_dpp", v, v, v, mods=f"row_ror:{r} row_mask:0xf bank_mask:0xf")
        p.valu("v_mov_b32", t, v)
        p.swap16(v, t)
        p.valu("v_add_f32", v, v, t)
        p.valu("v_mov_b32", t, v)
        p.swap32(v, t)
        p.valu("v_add_f32", v, v, t)

    def cond(self, cmp, a, b, label, body, skip_on=1):
        p = self.p
        p.salu(cmp, a, b)
        p.raw(f"s_cbranch_scc{skip_on} {label}")
        p.cond_begin()
        body()
        tok = p.cond_end()
        p.lines.append(f"{label}:")
        return tok

    def spin_guard(self, exit_label):
        p = self.p
        p.salu("s_cmp_eq_u32", sCNT, 0)
        p.salu("s_cbranch_scc1", exit_label)
        p.salu("s_sub_u32", sCNT, sCNT, 1)

    def lds_spin(self, a, t, off, target, tag):
        p = self.p
        p.valu("v_mov_b32", a, CNT)
        p._mem_issue([a.b], [t.b])
        p.lines.append(f"L{tag}w:")
        p.raw(f"ds_read_b32 {t}, {a} offset:{off}")
        p.raw("s_waitcnt lgkmcnt(0)")
        p.lgkm_done = p.lgkm_seq
        p.raw(f"v_readfirstlane_b32 {sT0}, {t}")
        self.spin_guard(f"L{tag}x")
        p.raw(f"s_cmp_lt_u32 {sT0}, {target}")
        p.raw(f"s_cbranch_scc0 L{tag}x")
        p.raw("s_sleep 2")
        p.raw(f"s_branch L{tag}w")
        p.lines.append(f"L{tag}x:")

    def signal(self, off):
        p = self.p
        p.raw("s_mov_b64 exec, 1")
        p.raw(f"ds_add_u32 {self.vCN}, {self.vONE} offset:{off}")
        p.raw("s_mov_b64 exec, -1")
        p.lgkm_seq += 1

    def ev_read(self, off):
        assert getattr(self, 'ev_open', None) is None
        self.ev_open = off
        self.p.ds_read("ds_read_b32", self.vEV, self.vCN, off)

    def ev_wait(self, off, target):
        p = self.p
        assert self.ev_open == off
        self.ev_open = None
        self.nev = getattr(self, 'nev', 0) + 1
        tag = f"Lev{self.nev}"
        p.valu("v_readfirstlane_b32", sT0, self.vEV)

        def slow():
            p.lines.append(f"{tag}w:")
            p.raw("s_sleep 1")
            p.raw(f"ds_read_b32 {self.vEV}, {self.vCN} offset:{off}")
            p.raw("s_waitcnt lgkmcnt(0)")
            p.raw(f"v_readfirstlane_b32 {sT0}, {self.vEV}")
            self.spin_guard(tag)
            p.raw(f"s_cmp_lt_u32 {sT0}, {target}")
            p.raw(f"s_cbranch_scc1 {tag}w")
        self.cond("s_cmp_ge_u32", sT0, target, tag, slow)

    def alloc(self):
        o = self.o
        self.S3 = [V(8 * i, 8) for i in range(12)]
        self.CA = V(0, 48)
        self.LN = [V(48, 24), V(72, 24), V(96, 24), V(168, 24)]
        self.Y = V(120, 16)
        self.W = regs(V(136, 20))
        self.SQ = [V(156 + i) for i in range(12)]
        self.ls = [V(168, 2), V(170, 2), V(172, 2)]
        self.rb = [V(192 + 4 * i, 4) for i in range(6)]
        self.D0 = V(192, 16)
        self.A0 = [V(48 + 4 * i, 4) for i in range(18)]
        self.idf = [V(208, 4), V(212, 4)]
        self.ring2 = [V(224 + 4 * i, 4) for i in range(4)]
        self.ring1 = self.ring2 + [V(216, 4), V(220, 4)]
        self.vX, self.vL = V(240), V(241)
        self.vB = [V(242), V(243), V(244)]
        self.vC = [V(245), V(246)]
        self.tq = [V(247), V(252), V(253), V(254), V(255)]
        self.vCN, self.vONE, self.vEV = V(253), V(254), V(247)
        self.vA = [V(248), V(249), V(250)]
        self.vLane = V(251)
        self.vG, self.vR, self.vBias = V(252), V(253), V(254)
        self.J2 = ints(o.get('j2', '5,6,7,8,9,10,11'))
        self.S2 = {j: V(168 + 8 * k, 8) for k, j in enumerate(self.J2)}
        assert len(self.J2) <= 7
        self.ge = Gelu(self, self.W, sK, sM, 0)
        self.po = ints(o.get('po', '0,2,4,1,3,5'))
        self.vO = V(255)
        self.fsh = 18 if o.get('smap', 0) else 21

    def rows_dma(self, rows):
        p = self.p
        for r in rows:
            p.salu("s_add_u32", "m0", sXM, ((r + 1) % 10) * RP)
            if r > 0:
                p.salu("s_add_u32", sT2, sYB, r * ROWB)
            p.dma(self.vX, sX, sT3 if r < 0 else (sT2 if r else sYB), flags='nt' if r < self.o.get('ntrows', 9) else '')

    def row_dma_fast(self, r):
        p = self.p
        p.salu("s_add_u32", "m0", sXM, ((r + 1) % 10) * RP)
        p.salu("s_add_u32", sYB, sYB, ROWB)
        self.nrow += 1
        self.x_tok = p.dma(self.vX, sX, sYB, flags='nt' if r < self.o.get('ntrows', 9) else '')

    def gelu_table(self, tid):
        p = self.p
        y = [V(0 + i) for i in range(8)]
        t = [V(8 + i) for i in range(8)]
        r = [V(16 + i) for i in range(8)]
        a, b = V(24), V(25)
        pn, pp = V(28, 4), V(32, 4)
        p.valu("v_lshlrev_b32", a, 6, tid)
        p.salu("s_mov_b32", sT0, f2u(GC))
        p.valu("v_mov_b32", b, f2u(GK))
        for i in range(8):
            p.valu("v_add_u32", y[i], 0x8004 + 8 * i, a)
        for i in range(8):
            p.valu("v_cvt_f32_f16", y[i], y[i])
        for i in range(8):
            p.valu("v_mul_f32", t[i], y[i], y[i])
        for i in range(8):
            p.valu("v_fma_f32", t[i], t[i], sT0, b)
        for i in range(8):
            p.valu("v_mul_f32", t[i], y[i], t[i])
        for i in range(8):
            p.valu("v_exp_f32", t[i], t[i])
        for i in range(8):
            p.valu("v_add_f32", r[i], "1.0", t[i])
        for i in range(8):
            p.valu("v_rcp_f32", r[i], r[i])
        for i in range(8):
            p.valu("v_mul_f32", y[i], y[i], r[i])
        for i in range(8):
            p.valu("v_mul_f32", t[i], t[i], y[i])
        for i in range(4):
            p.valu("v_cvt_pk_f16_f32", pn.sub(i), y[2 * i], y[2 * i + 1])
            p.valu("v_cvt_pk_f16_f32", pp.sub(i), f"-{t[2 * i]}", f"-{t[2 * i + 1]}")
        p.valu("v_lshlrev_b32", a, 4, tid)
        p.valu("v_mov_b32", b, LDS_BYTES)
        p.salu("s_movk_i32", sT0, 496)
        p.valu("v_cmp_gt_u32", "vcc", sT0, tid)
        p.valu("v_cndmask_b32", a, b, a, "vcc")
        p.ds_write("ds_write_b128", a, pp)
        p.ds_write("ds_write_b128", a, pn, 8192)

    def prologue(self):
        p, o = self.p, self.o
        p.salu("s_cmp_ge_u32", S(2), 256)
        p.raw("s_cbranch_scc1 Lend")
        p.raw(f"s_load_dwordx16 {sLD}, s[0:1], 0")
        p.raw(f"s_load_dwordx2 {sTM}, s[0:1], 64")
        if o.get('dbg'):
            p.raw("s_memrealtime s[100:101]")
        if o.get('stamps'):
            p.raw("s_memtime s[62:63]")
            p.raw("s_memrealtime s[64:65]")
        lane = self.vLane
        tid = V(199)
        t = [V(120 + i) for i in range(40)]
        if o.get('pf0', 1):
            p.raw(f"s_getpc_b64 {sEX}")
            p.lines.append("Lpc0:")
            p.raw(f"s_sub_u32 {sEX.sub(0)}, {sEX.sub(0)}, Lpc0-Lmain")
            p.raw(f"s_subb_u32 {sEX.sub(1)}, {sEX.sub(1)}, 0")
            p.valu("v_lshlrev_b32", t[39], 7, V(0))
            p.salu("s_movk_i32", sT0, o.get('pf0n', 64))
            p.valu("v_cmp_gt_u32", "vcc", sT0, V(0))
            p.raw(f"s_and_saveexec_b64 {sRET}, vcc")
            p.raw("s_cbranch_execz Lpf0x")
            p.raw(f"global_load_dword {self.tq[4]}, {t[39]}, {sEX}")
            p.lines.append("Lpf0x:")
            p.raw(f"s_mov_b64 exec, {sRET}")
        p.valu("v_mov_b32", tid, V(0))
        p.valu("v_and_b32", lane, 63, V(0))
        p.valu("v_lshrrev_b32", t[0], 6, V(0))
        p.valu("v_readfirstlane_b32", sWAVE, t[0])
        p.salu("s_and_b32", sT0, S(2), 7)
        p.salu("s_lshr_b32", sT1, S(2), 3)
        p.salu("s_and_b32", sX0, sT0, 3)
        p.salu("s_lshl_b32", sX0, sX0, 2)
        p.salu("s_and_b32", sT2, sT1, 3)
        p.salu("s_add_u32", sX0, sX0, sT2)
        p.salu("s_lshr_b32", sY0, sT0, 2)
        p.salu("s_lshl_b32", sY0, sY0, 3)
        p.salu("s_lshr_b32", sT2, sT1, 2)
        p.salu("s_add_u32", sY0, sY0, sT2)
        p.salu("s_lshl_b32", sX0, sX0, 5)
        p.salu("s_lshl_b32", sY0, sY0, 5)
        p.salu("s_lshl_b32", sXM, sWAVE, 6)
        p.salu("s_cmp_eq_u32", sWAVE, 6)
        p.salu("s_cselect_b32", sXM, 352, sXM)
        p.valu("v_add_u32", t[5], sXM, lane)
        p.valu("v_mul_u32_u24", t[1], 5462, t[5])
        p.valu("v_lshrrev_b32", t[1], 16, t[1])
        p.valu("v_mul_u32_u24", t[2], 12, t[1])
        p.valu("v_sub_u32", t[2], t[5], t[2])
        p.valu("v_bfe_u32", t[3], t[1], 2, 2)
        p.valu("v_xor_b32", t[2], t[2], t[3])
        p.valu("v_add_u32", t[3], sX0, t[1])
        p.valu("v_subrev_u32", t[3], 1, t[3])
        p.valu("v_mul_u32_u24", t[4], 192, t[3])
        p.valu("v_lshl_add_u32", t[4], t[2], 4, t[4])
        p.valu("v_mov_b32", self.vX, OOB_V)
        p.salu("s_movk_i32", sT0, 512)
        p.valu("v_cmp_gt_u32", "vcc", sT0, t[3])
        p.valu("v_cndmask_b32", t[4], self.vX, t[4], "vcc")
        p.valu("v_cmp_gt_u32", "vcc", 34, t[1])
        p.valu("v_cndmask_b32", self.vX, self.vX, t[4], "vcc")
        self.row_off(sT3, sY0, -1)
        p.salu("s_mul_i32", sYB, sY0, ROWB)
        p.salu("s_mov_b32", sX.sub(2), X_BYTES)
        p.salu("s_mov_b32", sX.sub(3), 0x20000)
        p.salu("s_lshl_b32", sXM, sXM, 4)
        p.salu("s_add_u32", sXM, sXM, W2R)
        p.salu("s_cmp_eq_u32", sWAVE, 7)
        p.salu("s_cselect_b32", sXM, LDS_BYTES, sXM)
        dv, di, ad = t[6:10], t[32:36], t[36:40]
        p.valu("v_lshlrev_b32", t[10], 1, tid)
        p.valu("v_add_u32", di[3], 768, tid)
        p.valu("v_min_u32", di[3], 863, di[3])
        p.valu("v_lshlrev_b32", t[11], 1, di[3])
        p.raw("s_waitcnt lgkmcnt(0)")
        self.sstamp('s0')
        p.salu("s_mov_b32", sX.sub(0), sLD.sub(0))
        p.salu("s_and_b32", sX.sub(1), sLD.sub(1), 0xFFFF)

        def dw_loads():
            self.srd(sDW, sLD.sub(2, 2), 1728)
            for r in range(4):
                p.raw(f"buffer_load_ushort {dv[r]}, {t[10 + r // 3]}, {sDW}, 0 offen offset:{512 * (r % 3)}")
        self.cond("s_cmp_ge_u32", sWAVE, 4, "Lnodw", dw_loads)
        self.cond("s_cmp_eq_u32", sWAVE, 7, "Lskipx0", lambda: self.rows_dma(range(-1, 5)))
        self.sstamp('s0')
        self.srd(sW1, sLD.sub(4, 2), 73728)
        if o.get('pw1', 0):
            def pw1():
                p.salu("s_lshr_b32", sT0, S(2), 3)
                p.salu("s_mul_i32", sT0, sT0, 18 * 128)
                p.valu("v_min_u32", t[5], 17, lane)
                p.valu("v_lshlrev_b32", t[5], 7, t[5])
                p.raw(f"buffer_load_dword {self.tq[4]}, {t[5]}, {sW1}, {sT0} offen")
            self.cond("s_cmp_lg_u32", sWAVE, 7, "Lnopw1", pw1)
        if o.get('pf', 1) == 2:
            self.code_prefetch()
        p.valu("v_lshrrev_b32", self.vW1g, 2, lane)
        p.valu("v_mul_u32_u24", self.vW1g, 768, self.vW1g)
        p.valu("v_and_b32", t[5], 3, lane)
        p.valu("v_lshl_add_u32", self.vW1g, t[5], 4, self.vW1g)
        p.salu("s_and_b32", sT0, sWAVE, 3)
        p.salu("s_lshl_b32", sW1G, sT0, 6)
        p.salu("s_mul_i32", sW1L, sT0, 6144)
        p.salu("s_add_u32", sW1L, sW1L, W1F)
        p.valu("v_mov_b32", self.vCN, CNT)
        p.valu("v_mov_b32", self.vONE, 1)

        tok_a = p.vm_seq
        p.salu("s_add_u32", sT0, sY0, sWAVE)
        p.salu("s_add_u32", sT0, sT0, 1)
        p.salu("s_lshl_b32", sT0, sT0, 9)
        p.salu("s_add_u32", sT0, sT0, sX0)
        p.salu("s_mul_i32", sROWT, sT0, 192)
        p.salu("s_sub_u32", sROWT, sROWT, 256)
        p.salu("s_and_b32", sT0, sWAVE, 1)
        p.salu("s_lshl_b32", sT3, sT0, 4)
        p.salu("s_add_u32", sX0, sX0, sT3)
        p.salu("s_and_b32", sT0, sWAVE, 6)
        p.salu("s_add_u32", sY0, sY0, sT0)
        p.salu("s_mul_i32", sT2, sT0, RP)
        p.salu("s_add_u32", sT2, sT2, W2R)
        m, g = t[11], t[12]
        p.valu("v_and_b32", m, 15, lane)
        p.valu("v_lshrrev_b32", g, 4, lane)
        p.valu("v_mul_u32_u24", t[2], RP, g)
        p.valu("v_add_u32", t[2], sT2, t[2])
        p.valu("v_add_u32", t[1], sT3, m)
        for dx in range(3):
            if dx:
                p.valu("v_add_u32", t[1], 1, t[1])
            p.valu("v_mul_u32_u24", t[3], 192, t[1])
            p.valu("v_bfe_u32", t[4], t[1], 2, 2)
            p.valu("v_lshl_add_u32", t[3], t[4], 4, t[3])
            p.valu("v_add_u32", self.vB[dx], t[2], t[3])
        p.salu("s_mul_i32", sPRIV, sWAVE, 9216)
        p.salu("s_add_u32", sPRIV, sPRIV, W2R)
        p.valu("v_bfe_u32", t[13], m, 2, 1)
        p.valu("v_sub_u32", t[13], g, t[13])
        p.valu("v_lshrrev_b32", t[14], 3, m)
        p.valu("v_and_b32", t[15], 3, m)
        p.valu("v_lshl_add_u32", t[15], t[14], 2, t[15])
        p.valu("v_lshlrev_b32", t[16], 7, t[13])
        p.valu("v_lshl_add_u32", t[16], t[15], 4, t[16])
        p.valu("v_add_u32", t[16], DIAG, t[16])
        p.valu("v_mov_b32", t[15], LDS_BYTES)
        p.valu("v_cmp_gt_u32", "vcc", 3, t[13])
        p.valu("v_cndmask_b32", self.vC[0], t[15], t[16], "vcc")
        p.valu("v_and_b32", t[15], 3, m)
        p.valu("v_mul_u32_u24", self.vC[1], 0x55, t[15])
        self.srd(sW2, sLD.sub(6, 2), 73728)
        self.srd(sGA, sLD.sub(8, 2), 768)
        self.srd(sBE, sLD.sub(10, 2), 768)
        self.srd(sOUT, sLD.sub(12, 2), X_BYTES)
        self.srd(sDBG, sLD.sub(14, 2), 256)
        self.srd(sWS, sTM, WS_BYTES)
        p.valu("v_lshlrev_b32", self.vL, 4, lane)
        p.valu("v_and_b32", t[13], 0x23, lane)
        p.valu("v_bfe_u32", t[14], lane, 2, 2)
        p.valu("v_lshl_add_u32", t[13], t[14], 3, t[13])
        p.valu("v_bfe_u32", t[14], lane, 4, 1)
        p.valu("v_lshl_add_u32", t[13], t[14], 2, t[13])
        p.valu("v_lshlrev_b32", self.vA[0], 4, t[13])
        p.valu("v_add_u32", self.vA[1], 0x10000, self.vA[0])
        p.valu("v_add_u32", self.vA[2], 0x20000, self.vA[0])
        p.salu("s_lshl_b32", sSTAMP, S(2), 3)
        p.salu("s_add_u32", sSTAMP, sSTAMP, sWAVE)
        if o.get('smap', 0):
            p.salu("s_and_b32", sT0, S(2), 7)
            p.salu("s_mul_i32", sT0, sT0, 3 << 10)
            p.salu("s_and_b32", sT1, S(2), 0xF8)
            p.salu("s_add_u32", sT0, sT0, sT1)
            p.salu("s_add_u32", sLNB, sT0, sWAVE)
            p.salu("s_lshl_b32", sLNB, sLNB, 10)
        else:
            p.salu("s_lshl_b32", sLNB, sSTAMP, 10)
        p.salu("s_add_u32", sLNB, sLNB, WS_LN)
        p.salu("s_mul_i32", sSTAMP, sSTAMP, 16 * o.get('stamps', 1))
        p.salu("s_add_u32", sSTAMP, sSTAMP, WS_STAMP)
        p.salu("s_mul_i32", sT3, sX0, 192)
        for ti in range(4):
            p.salu("s_add_u32", sT0, sY0, 8 * ti)
            p.salu("s_mul_i32", sT0, sT0, ROWB)
            p.salu("s_add_u32", sTILE[ti], sT0, sT3)
        p.salu("s_mul_i32", sW2B, sWAVE, 9216)
        p.salu("s_mov_b32", sK, KH * 0x10001)
        p.salu("s_mov_b32", sM, 0xFFF8FFF8)
        p.salu("s_mov_b32", sCNT, 400000)
        p.valu("v_lshrrev_b32", t[28], 5, lane)
        p.valu("v_lshlrev_b32", self.vW1r, 8, t[28])
        for sh, w, up in ((2, 2, 6), (4, 1, 5), (0, 1, 4), (1, 1, 3)):
            p.valu("v_bfe_u32", t[28], lane, sh, w)
            p.valu("v_lshl_add_u32", self.vW1r, t[28], up, self.vW1r)
        p.valu("v_add_u32", self.vW1r, sW1L, self.vW1r)
        p.valu("v_add_u32", self.vW1w, sW1L, self.vA[0])
        later = p.vm_seq - tok_a
        self.sstamp('s0')

        def young():
            self.gelu_table(tid)

        def old():
            for r in range(4):
                if r < 3:
                    p.valu("v_add_u32", di[r], 256 * r, tid)
                p.valu("v_mul_u32_u24", t[20], 683, di[r])
                p.valu("v_lshrrev_b32", t[20], 16, t[20])
                p.valu("v_mul_u32_u24", t[22], 11, t[20])
                p.valu("v_lshrrev_b32", t[22], 5, t[22])
                p.valu("v_lshrrev_b32", t[23], 5, di[r])
                p.valu("v_bfe_u32", t[21], di[r], 3, 2)
                p.valu("v_bfe_u32", t[24], di[r], 4, 1)
                p.valu("v_xor_b32", t[21], t[21], t[24])
                p.valu("v_sub_u32", t[21], t[21], t[22])
                p.valu("v_mul_i32_i24", t[21], 9, t[21])
                p.valu("v_add_u32", t[23], t[23], t[21])
                p.valu("v_lshrrev_b32", t[21], 1, t[23])
                p.valu("v_mul_u32_u24", t[21], 384 - 16, t[21])
                p.valu("v_lshl_add_u32", t[23], t[23], 3, t[21])
                p.valu("v_lshl_add_u32", t[23], t[22], 7, t[23])
                p.valu("v_and_b32", t[24], 7, di[r])
                p.valu("v_lshl_add_u32", t[23], t[24], 4, t[23])
                p.valu("v_add_u32", ad[r], DIAG, t[23])
            z = V(160, 4)
            for i in range(4):
                p.valu("v_mov_b32", z.sub(i), 0)
            p.raw("s_mov_b64 exec, 1")
            p.ds_write("ds_write_b128", self.vCN, z)
            p.ds_write("ds_write_b128", self.vCN, z, 16)
            p.raw("s_mov_b64 exec, -1")
            p.raw(f"s_waitcnt vmcnt({6 + later})")
            for r in range(4):
                ch = V(164 + 2 * r, 2)
                p.valu("v_and_b32", t[10], 4, di[r])
                p.valu("v_cmp_eq_u32", "vcc", 0, t[10])
                p.valu("v_cndmask_b32", ch.sub(0), 0, dv[r], "vcc")
                p.valu("v_sub_u32", ch.sub(1), dv[r], ch.sub(0))
                p.ds_write("ds_write_b64", ad[r], ch)
            p.raw("s_waitcnt lgkmcnt(0)")
        self.cond("s_cmp_lt_u32", sWAVE, 4, "Lnoy", young)
        self.cond("s_cmp_ge_u32", sWAVE, 4, "Lnoo", old)
        self.sstamp('s0')
        p.barrier()
        self.sstamp('s0')

        def young2():
            p.valu("v_subrev_u32", tid, 256, tid)
            self.gelu_table(tid)
        self.cond("s_cmp_lt_u32", sWAVE, 4, "Lnoy2", young2)
        self.sstamp('s0')
        p.vm_done = p.vm_seq
        self.nstamp += 4

    def w1_dma(self, u):
        p = self.p
        g, x = divmod(u, 6)
        p.salu("s_add_u32", "m0", sW1L, g * 24576 + x * 1024)
        p.salu("s_add_u32", sT0, sW1G, (2 * (x % 3) + x // 3) * 12288 + g * 256)
        return p.dma(self.vW1g, sW1, sT0)

    def sentinels(self):
        p, lane = self.p, self.vLane
        t = [V(176 + i) for i in range(16)]
        sv = V(180, 4)

        def bias():
            p.salu("s_lshl_b32", sT1, sT0, 1)
            p.valu("v_mul_u32_u24", t[0], 192, lane)
            p.valu("v_lshlrev_b32", t[1], 1, lane)
            for i in range(6):
                p.salu("s_add_u32", sT2, sT1, 64 * 192 * i)
                p.raw(f"buffer_load_ushort {t[2 + i]}, {t[0]}, {sW2}, {sT2} offen")
                p.raw(f"buffer_load_ushort {t[8 + i]}, {t[1]}, {sBE}, 0 offen offset:{128 * i}")

        def body():
            for i in range(4):
                p.valu("v_mov_b32", sv.sub(i), -1)
            p.valu("v_lshlrev_b32", t[0], 12, lane)
            p.valu("v_add_u32", t[1], 64 * 4096, t[0])
            p.valu("v_cmp_gt_u32", "vcc", 32, lane)
            p.valu("v_mov_b32", t[2], OOB_V)
            p.valu("v_cndmask_b32", t[1], t[2], t[1], "vcc")
            p.salu("s_lshl_b32", sT0, S(2), 4)
            p.raw(f"buffer_store_dwordx4 {sv}, {t[0]}, {sWS}, {sT0} offen sc1")
            p.raw(f"buffer_store_dwordx4 {sv}, {t[1]}, {sWS}, {sT0} offen sc1")
            p.salu("s_add_u32", sT0, sT0, WS_TOT)
            p.salu("s_cmp_lt_u32", S(2), 96)
            p.salu("s_cselect_b32", sT0, sT0, OOB_S)
            p.valu("v_lshlrev_b32", t[2], 11, lane)
            p.raw(f"s_mov_b64 exec, {hex((1 << REP) - 1)}")
            p.raw(f"buffer_store_dwordx4 {sv}, {t[2]}, {sWS}, {sT0} offen sc1")
            p.raw("s_mov_b64 exec, -1")
            p.salu("s_sub_u32", sT0, S(2), 96)
            p.salu("s_cmp_lt_u32", sT0, 96)
            p.raw("s_cbranch_scc0 Lnobias")
            bias()
            p.lines.append("Lnobias:")
            p.nop(2)
        self.cond("s_cmp_lg_u32", sWAVE, 7, "Lnosent", body)
        self.sent_tok = p.vm_seq

    def code_prefetch(self):
        p, lane = self.p, self.vLane
        t = [V(176 + i) for i in range(16)]

        def body():
            p.raw(f"s_getpc_b64 {sEX}")
            p.lines.append("Lpc:")
            p.salu("s_lshr_b32", sT0, S(2), 3)
            p.salu("s_and_b32", sT0, sT0, 15)
            p.salu("s_lshl_b32", sT0, sT0, 13)
            p.valu("v_lshlrev_b32", t[2], 7, lane)
            p.valu("v_add_u32", t[2], sT0, t[2])
            p.valu("v_min_u32", t[2], "Lend-Lpc", t[2])
            if self.o.get('pf', 1):
                p.raw(f"global_load_dword {self.tq[4]}, {t[2]}, {sEX}")
        self.cond("s_cmp_lg_u32", sWAVE, 7, "Lnopf", body)

    def bias_finish(self):
        p = self.p
        t = [V(176 + i) for i in range(16)]

        def body():
            p.salu("s_sub_u32", sT0, S(2), 96)
            p.salu("s_cmp_lt_u32", sT0, 96)
            p.raw("s_cbranch_scc0 Lnobias2")
            p.raw(f"s_waitcnt vmcnt({p.vm_seq - self.sent_tok})")
            for i in range(12):
                p.valu("v_lshlrev_b32", t[2 + i], 16, t[2 + i])
            p.valu("v_mul_f32", t[0], t[2], t[8])
            for i in range(1, 6):
                p.valu("v_fmac_f32", t[0], t[2 + i], t[8 + i], rmw=True)
            self.lane_sum64(t[0], t[1])
            p.salu("s_lshl_b32", sT1, sT0, 2)
            p.salu("s_add_u32", sT1, sT1, WS_TOT + 1536)
            p.valu("v_lshlrev_b32", t[15], 11, self.vLane)
            p.raw(f"s_mov_b64 exec, {hex((1 << REP) - 1)}")
            p.raw(f"buffer_store_dword {t[0]}, {t[15]}, {sWS}, {sT1} offen sc1")
            p.raw("s_mov_b64 exec, -1")
        self.cond("s_cmp_lg_u32", sWAVE, 7, "Lnobias2", body)
        self.sent_tok = p.vm_seq

    def init_counter(self):
        p = self.p

        def body():
            p.raw(f"s_waitcnt vmcnt({p.vm_seq - self.sent_tok})")
            p.raw(f"v_mov_b32 {self.tq[4]}, 1")
            p.raw("s_mov_b64 exec, 1")
            p.raw(f"buffer_atomic_add {self.tq[4]}, {self.vL}, {sDBG}, 0 offen")
            p.raw("s_mov_b64 exec, -1")
        self.cond("s_cmp_lg_u32", sWAVE, 7, "Lnoinit", body)

    def ln_stats(self):
        p, C, ls = self.p, self.CA, self.ls
        s2, q2 = ls[0], ls[1]
        ops = [lambda: p.valu("v_pk_add_f32", s2, C.sub(0, 2), C.sub(2, 2)),
               lambda: p.valu("v_pk_mul_f32", q2, C.sub(0, 2), C.sub(0, 2))]
        for i in range(1, 24):
            if i >= 2:
                ops.append(lambda i=i: p.valu("v_pk_add_f32", s2, s2, C.sub(2 * i, 2)))
            ops.append(lambda i=i: p.valu("v_pk_fma_f32", q2, C.sub(2 * i, 2), C.sub(2 * i, 2), q2))
        return ops

    def ln_stats_plain(self):
        p, C, ls = self.p, self.CA, self.ls
        ops = []
        for i in range(48):
            s_, q_ = ls[0].sub(i % 2), ls[1].sub(i % 2)
            if i < 2:
                ops.append((4, lambda i=i, q_=q_: p.valu("v_mul_f32", q_, C.sub(i), C.sub(i))))
            else:
                ops.append((4, lambda i=i, s_=s_: p.valu("v_add_f32", s_, C.sub(i - 2) if i < 4 else s_, C.sub(i))))
                ops.append((4, lambda i=i, q_=q_: p.valu("v_fmac_f32", q_, C.sub(i), C.sub(i), rmw=True)))
        return ops

    def ln_scalar(self):
        p, ls = self.p, self.ls
        s, s1, q, q1, rs, off = [ls[i // 2].sub(i % 2) for i in range(6)]
        return [
            (4, lambda: p.valu("v_add_f32", s, s, s1)),
            (4, lambda: p.valu("v_add_f32", q, q, q1)),
            (4, lambda: p.swap32(s, q)),
            (4, lambda: p.valu("v_add_f32", s, s, q)),
            (4, lambda: p.valu("v_mul_f32", s, f2u(1.0 / 96), s)),
            (4, lambda: p.valu("v_mov_b32", q, s)),
            (4, lambda: p.swap32(s, q)),
            (4, lambda: p.valu("v_fma_f32", q, f"-{s}", s, q)),
            (4, lambda: p.valu("v_max_f32", q, 0, q)),
            (4, lambda: p.valu("v_add_f32", q, f2u(1e-5), q)),
            (8, lambda: p.valu("v_rsq_f32", q, q)),
            (4, lambda: p.valu("v_mul_f32", rs, f2u(GA), q)),
            (4, lambda: p.valu("v_mul_f32", off, s, rs)),
        ]

    def ln_norm(self):
        p, C, ro = self.p, self.CA, self.ls[2]
        return [lambda i=i: p.valu("v_pk_fma_f32", C.sub(2 * i, 2), C.sub(2 * i, 2), ro, ro,
                                   mods="op_sel:[0,0,1] op_sel_hi:[1,0,1] neg_lo:[0,0,1] neg_hi:[0,0,1]")
                for i in range(24)]

    def ln_pack(self, t):
        p, C = self.p, self.CA
        return [(4, lambda i=i: p.valu("v_cvt_pk_bf16_f32", self.LN[t].sub(i), C.sub(2 * i), C.sub(2 * i + 1)))
                for i in range(24)]

    def conv_items(self, ti, gate=None):
        p = self.p
        seq = [(cl, dx, cq) for cl in (0, 1, 3, 2) for dx in range(3) for cq in range(3)]
        state = [2 * (ti % 2)] * 3
        items = [dict(reads=[rd128(self.vA[2], 0xFFF0)], w=0.5,
                      emit=[(lambda z, k=k: p.mfma(self.CA.sub(16 * k, 16), z, z, 0)) for k in range(3)])]
        for pr in (range(18) if ti % 2 == 0 else range(17, -1, -1)):
            reads, em = [rd128(self.vC[0], pr * 384)], []
            for k, h in enumerate((0, 1) if ti % 2 == 0 else (1, 0)):
                cl, dx, cq = seq[2 * pr + h]
                hook = None
                if state[dx] != cl:
                    hook = (lambda dx=dx, d=16 * (cl ^ state[dx]): p.valu("v_xor_b32", self.vB[dx], d, self.vB[dx]))
                    state[dx] = cl
                rb_ = rd128(self.vB[dx], 64 * cq, self.rb, hook)
                rb_['after'] = gate
                reads.append(rb_)
                acc = self.CA.sub(4 * (4 * cq + cl), 4)
                em.append(lambda a, *b, acc=acc, h=h, k=k: p.smfmac(acc, a.sub(2 * h, 2), b[k], self.vC[1]))
            items.append(dict(reads=reads, w=self.o.get('cw', 0.5), emit=em))
        return items

    def gemm1_32(self, j, ln, pixel_lane, need):
        p, y = self.p, self.Y
        items = []
        for s6 in range(6):
            b = ln.sub(4 * s6, 4)
            if pixel_lane:
                e = (lambda w, b=b, s6=s6: p.mfma(y, w, b, y if s6 else 0))
            else:
                e = (lambda w, b=b, s6=s6: p.mfma(y, b, w, y if s6 else 0))
            items.append(dict(reads=[self.frag(W1F + (j * 6 + 3 * (s6 & 1) + (s6 >> 1)) * 1024)], emit=e, need=need))
        return items

    def period_fill(self, y, n, G=None, sq=None, first=False, tag=None, ph=1, fl=False):
        o, ge = self.o, self.ge
        a, d = ge.front(n, o.get('grp', 2), G is None)
        if fl:
            d = d[:len(d) // 2] + [(0, self.flush)] + d[len(d) // 2:] + [(0, self.flush)]
        t0, t1 = split_cost(a + ge.mid(n), o.get(f'ds{ph}', 96 if ph == 1 else 64))
        if G is not None:
            ba, bd = ge.back_pack(G, n)
            if tag:
                ba, bd = [x + (tag,) for x in ba], [x + (tag,) for x in bd]
            t1a, t1b = split_cost(t1, sum(x[0] for x in t1) - o.get(f'de{ph}', 32 if ph == 1 else 16))
            return ge.cvts(y, n) + merge(t0, d) + t1a + merge(t1b, bd) + ba
        ba, bd = ge.back_stat(sq, None, n, first, o.get('mix', 1))
        tl = t1 + ba
        t1a, t1b = split_cost(tl, sum(x[0] for x in tl) - o.get('des', 64))
        return ge.cvts(y, n) + merge(t0, d) + t1a + merge(t1b, bd)

    @staticmethod
    def mix_in(s, ops, lo=8):
        s['fill'] = s['fill'][:lo] + merge(s['fill'][lo:], ops)

    @staticmethod
    def spread(segs, s0, fns, per):
        for k, f in enumerate(fns):
            segs[s0 + k // per]['vm'].append(f)

    def ladder(self, segs, a, b, fr):
        for f, lv in zip(fr, range(len(fr) - 1, -1, -1)):
            h = a + f * (b - a)
            if h < len(segs):
                insert_at(segs, h, lambda lv=lv: self.setprio(lv))

    def swaps(self, a, b):
        return [(4, lambda i=i: self.p.swap16(a.sub(i), b.sub(i))) for i in range(4)]

    def ws_frag(self, f, fn):
        p = self.p
        if f == 0:
            return fn(sLNB)
        p.salu("s_add_u32", sT3, sLNB, f << self.fsh)
        return fn(sT3)

    def spill_ln(self, ti):
        p = self.p
        return [lambda k=k: self.ws_frag(6 * ti + k, lambda so: p.buf_store(
            "buffer_store_dwordx4", self.LN[ti].sub(4 * k, 4), self.vL, sWS, so, flags=self.o.get('ssf', 'sc1'))) for k in range(6)]

    def touch(self, kind, ti, a, part=None):
        p, lane = self.p, self.vLane
        if kind == 'x':
            p.valu("v_lshrrev_b32", a, 1, lane)
            p.valu("v_lshlrev_b32", a, 7, a)
            p.raw("s_mov_b64 exec, 0xaaaaaaaa")
            p.salu("s_mov_b32", "exec_hi", 0xAAAAAAAA)
            p.valu("v_add_u32", a, ROWB, a)
            srd, so, n = sX, sTILE[ti], 48
        elif kind == 'l':
            p.valu("v_mul_u32_u24", a, (1 << (self.fsh - 3)) + 128, lane)
            p.valu("v_and_b32", a, (7 << self.fsh) | 0x380, a)
            p.salu("s_add_u32", sT3, sLNB, (6 * ti) << self.fsh)
            srd, so, n = sWS, sT3, 48
        else:
            p.valu("v_lshlrev_b32", a, 7, lane)
            p.salu("s_add_u32", sT3, sROWT, (8 * ti + (4 if kind == 'R' else 0)) * ROWB)
            srd, so, n = sX, sT3, 52
        k, m = part or (0, 1)
        mask = ((1 << (n * (k + 1) // m)) - 1) & ~((1 << (n * k // m)) - 1)
        p.salu("s_mov_b32", "exec_lo", mask & 0xFFFFFFFF)
        p.salu("s_mov_b32", "exec_hi", mask >> 32)
        assert n * (k + 1) // m - n * k // m <= 24
        p.salu("s_mov_b32", "m0", CNT + 32 - 4 * (n * k // m))
        p.nop(1)
        p.raw(f"buffer_load_dword {a}, {srd}, {so} offen lds")
        p.vm_seq += 1
        p.raw("s_mov_b64 exec, -1")

    def touches(self, segs, spec, a, base=0):
        for e in str(spec).split(','):
            if e in ('', 'n'):
                continue
            what, pos = e.split('@')
            pos = [float(x) for x in pos.split('/')] + [1, 1]
            for k in range(int(pos[1])):
                segs[base + int(pos[0] + k * pos[2])]['end'].append(lambda what=what, k=k, m=int(pos[1]): self.touch(what[0], int(what[1]), a, (k, m)))

    def w2_addr(self, a, b):
        p, lane = self.p, self.vLane
        p.valu("v_lshrrev_b32", a, 2, lane)
        p.valu("v_mul_u32_u24", a, 192, a)
        p.valu("v_and_b32", b, 3, lane)
        p.valu("v_lshl_add_u32", a, b, 4, a)

    def w2_fetch(self, a, u):
        p = self.p
        p.salu("s_add_u32", "m0", sPRIV, u * 1024)
        p.salu("s_add_u32", sT0, sW2B, (u // 3) * 3072 + (u % 3) * 64)
        p.dma(a, sW2, sT0)

    def startup_routines(self):
        main = self.p

        def w1_transform(us, fr):
            p = self.p
            off = lambda u: (u // 6) * 24576 + (u % 6) * 1024
            for k, u in enumerate(us):
                for i in range(2):
                    p.ds_read("ds_read_b64_tr_b16", fr[k].sub(2 * i, 2), self.vW1r, off(u) + i * 512)
            for k, u in enumerate(us):
                p.ds_write("ds_write_b128", self.vW1w, fr[k], off(u))
            p.wait_all(vm=False)

        for name in ("Lconv0", "Lln0", "Lw1a", "Lw1i", "Lw1b", "Lpre", "Lrb", "Lw1f"):
            self.p = p = Prog()
            p.lines.append(f"{name}:")
            if name == "Lw1a":
                w1_transform(range(6), [V(148 + 4 * u, 4) for u in range(6)])
            elif name == "Lpre":
                for it, a in zip(self.conv_items(0)[1:], self.A0):
                    for op, addr, off, so, n in it['reads'][0]['parts']:
                        p.ds_read(op, a.sub(so, n), addr, off)
                for r in self.CA.regs():
                    p.valu("v_mov_b32", V(r), 0)
                p.wait_all(vm=False)
            elif name == "Lrb":
                self.rows_dma(range(5, 9))
            elif name == "Lw1f":
                for u in range(6):
                    self.w1_dma(u)
            elif name == "Lw1i":
                for u in range(6, 18):
                    self.w1_dma(u)
            elif name == "Lw1b":
                p.raw("s_waitcnt vmcnt(0)")
                w1_transform(range(6, 18), [V(72 + 4 * u, 4) for u in range(12)])
            elif name == "Lconv0":
                s = seg()
                rb0 = self.rb + self.ring1
                for it, a in zip(self.conv_items(0)[1:], self.A0):
                    for rd in it['reads'][1:]:
                        rd['ring'] = rb0
                    s['mf'].append(dict(reads=it['reads'][1:], emit=[(lambda *b, a=a, e=e: e(a, *b)) for e in it['emit']]))
                s['cl'] = 1
                self.run([s], self.ring1)
                p.nop(12)
            else:
                for f in self.ln_stats():
                    f()
                for _, f in self.ln_scalar():
                    f()
                for f in self.ln_norm():
                    f()
                for _, f in self.ln_pack(0):
                    f()
                p.nop(2)
            p.raw(f"s_setpc_b64 {sRET}")
            main.lines += p.lines
        self.p = main

    def phase1(self):
        p, o, lane = self.p, self.o, self.vLane

        def su(n):
            if o.get('fine') == 'su' and n not in ('s_setprio 3', 's_setprio 2', 'Lpre', 'Lln0', 'Lw1b', 'Lr1', 'Lt1'):
                self.sstamp('su')

        def call_if(older, names, tag):
            self.cond("s_cmp_lt_u32" if older else "s_cmp_ge_u32", sWAVE, 4, tag,
                      lambda: [(p.raw(n if n.startswith("s_") else f"s_call_b64 {sRET}, {n}"), su(n)) for n in names], 0)

        def act(n):
            if n.startswith("+"):
                self.signal(int(n[1:]))
            elif n.startswith("?"):
                off, tg = ints(n[1:])
                self.lds_spin(self.vCN, self.vEV, off, tg, f"sw{off}{tg}")
            else:
                p.raw(n if n.startswith("s_") else f"s_call_b64 {sRET}, {n}")
                su(n)

        def seq_if(older, names, tag):
            self.cond("s_cmp_lt_u32" if older else "s_cmp_ge_u32", sWAVE, 4, tag, lambda: [act(n) for n in names], 0)

        p.raw("s_setprio 2")
        vw = lambda n: f"s_waitcnt vmcnt({n})"
        seq_if(True, ["Lpre", "Lrb", vw(4), f"+{E_ROWA}", f"?{E_ROWA},8", "Lconv0", f"+{E_FREE}", "Lln0", vw(0), f"+{E_ROW}"], "Lsu0")
        ya = {0: ["Lw1f", vw(6), f"+{E_ROWA}", "Lrb", "Lpre", vw(4), "Lw1a", f"+{E_W1}", "Lw1i", vw(12)],
              1: ["Lw1f", vw(6), f"+{E_ROWA}", "Lrb", vw(4), "Lw1a", f"+{E_W1}", "Lpre", vw(0)],
              2: ["Lw1f", vw(6), f"+{E_ROWA}", "Lrb", "Lpre", vw(4), "Lw1a", f"+{E_W1}", vw(0)],
              3: ["Lw1f", vw(6), f"+{E_ROWA}", "Lrb", vw(4), "Lw1a", f"+{E_W1}", "Lw1i", "Lpre", vw(12)]}[o.get('ya', 3)]
        yb = ["Lw1b", f"+{E_W1B}", "Lln0"] if "Lw1i" in ya else ["Lw1i", "Lln0", "Lw1b", f"+{E_W1B}"]
        seq_if(False, [f"s_setprio {o.get('sp', 3)}"] + ya + [f"+{E_ROW}", f"?{E_ROW},8", "Lconv0", f"+{E_FREE}"] + yb, "Lsu2")
        p.raw("s_branch Lgo")
        self.startup_routines()
        p.lines.append("Lgo:")
        act(f"?{E_W1},4")
        if o.get('pf', 1) == 1:
            self.code_prefetch()
        self.stamp(192)
        p.lds_age = o.get('age1', 24)
        NS = 50
        P = [seg() for _ in range(NS)]
        c0s = [o.get('c1', 6), o.get('cn', 3), o.get('cn', 3)]
        conv = {}

        def landed():
            assert self.nrow % 8 == 0 and self.nrow > self.nready, (self.nrow, self.nready)
            self.nready = self.nrow
            self.cond("s_cmp_eq_u32", sWAVE, 7, f"Lrdy{self.nrow}", lambda: p.wait(vm=self.x_tok))
            self.signal(E_ROW)

        gate = {}

        def check(pos, off, target, name=None):
            insert_at(P, pos - o.get('evl', 0.3), lambda: self.gq.append(lambda: self.ev_read(off)))
            insert_at(P, pos, lambda: (self.flush(), self.ev_wait(off, target), gate.__setitem__(name, True)))

        def advance_rows():
            a, b = V(174), V(175)
            p.valu("v_add_u32", a, 8 * RP - W2R, self.vB[0])
            p.valu("v_subrev_u32", b, 10 * RP, a)
            p.valu("v_min_u32", a, a, b)
            p.valu("v_add_u32", a, W2R, a)
            p.valu("v_sub_u32", b, a, self.vB[0])
            for k in range(3):
                p.valu("v_add_u32", self.vB[k], b, self.vB[k])

        for ti in range(1, 4):
            s0, first = 12 * (ti - 1), c0s[ti - 1]
            for k, it in enumerate(self.conv_items(ti, gate=lambda ti=ti: gate.get(('r', ti)))):
                conv.setdefault(s0 + first + max(k - 1, 0) * (10 - first) // 18, []).append(it)
        ndc, ndn, ndk = ints(o.get('ndc', '4,5')), ints(o.get('ndn', 5)), o.get('ndk', 5)
        for s in range(NS):
            S_ = P[s]
            e = s - 1
            if 0 <= e < 36:
                n = ndc[(s + 3) % len(ndc)] if s in conv else ndn[s % len(ndn)]
                self.ge.W = self.W + ([V(174), V(175), V(176), V(177)] if n < 4 else [])
                S_['fill'] = self.period_fill(regs(self.Y), n, sq=self.SQ[e % 12], first=e < 12)
                self.ge = Gelu(self, self.W, sK, sM, 0)
            elif 36 <= e < 48:
                S_['fill'] = self.period_fill(regs(self.Y), ndk, G=regs(self.S3[e - 36]), fl=e == 47)
            g1 = self.gemm1_32(s % 12, self.LN[s // 12], s >= 36, 8 if s else 0) if s < 48 else []
            ex = conv.get(s, [])
            if s - 2 >= 36:
                G, sq = self.S3[s - 38], self.SQ[s - 38]
                tr = [dict(reads=[], tag='tr' if q else None, w=0.5,
                           emit=(lambda q=q, G=G: p.mfma(self.D0, G.sub(4 * q, 4), self.idf[q], self.D0 if q else 0, 'f16'))) for q in range(2)]
                ops = [x + ('tr',) for x in self.swaps(G.sub(0, 4), G.sub(4, 4))]
                ops += [(4, lambda i=i, sq=sq: p.valu("v_fmac_f32", sq, self.D0.sub(i), self.D0.sub(i), rmw=True)) for i in range(16)]
                self.mix_in(S_, ops, 12)
                S_['mf'] = tr + g1
                S_['tail'] = o.get('t1', 24) if g1 else 10 ** 6
            elif ex:
                nf, nl = 1, 1
                mid = ex[nf:len(ex) - nl]
                m = []
                for k in range(6):
                    m.append(g1[k])
                    if k < 5:
                        m += mid[k * len(mid) // 5:(k + 1) * len(mid) // 5]
                S_['mf'] = ex[:nf] + m + ex[len(ex) - nl:]
                S_['cl'] = o.get('clc', 1)
            else:
                S_['mf'] = g1
                S_['head'], S_['tail'] = 32, o.get('t1', 24)
        p.salu("s_add_u32", sYB, sYB, 8 * ROWB)
        P[0]['end'].append(advance_rows)
        for ti in range(1, 4):
            s0 = 12 * (ti - 1)
            P[s0 + 9]['tail'] = 32
            if o.get('lnp', 0) & 1:
                self.mix_in(P[s0 + 10], self.ln_stats_plain() + self.ln_scalar())
            else:
                P[s0 + 9]['pb'] += self.ln_stats()
                self.mix_in(P[s0 + 10], self.ln_scalar())
            P[s0 + 9]['mf'][-1]['post'] = lambda: self.signal(E_FREE)
            if ti < 3:
                P[s0 + 9]['end'].append(advance_rows)
            if o.get('lnp', 0) & 2:
                ro = self.ls[2]
                nm = [(4, lambda i=i: p.valu("v_fma_f32", self.CA.sub(i), self.CA.sub(i), ro.sub(0), f"-{ro.sub(1)}")) for i in range(48)]
                pk = self.ln_pack(ti)
                self.mix_in(P[s0 + 11], nm + pk)
            else:
                P[s0 + 10]['pb'] += self.ln_norm()
                self.mix_in(P[s0 + 11], self.ln_pack(ti))
        for it in P[4]['mf']:
            it['reads'][0]['after'] = lambda: gate.get('w1')
        check(o.get('wck', 3.5), E_W1B, 4, 'w1')
        for ti in range(3):
            d0 = o.get('f0', 2) if ti == 0 else 12 * ti - 12 + o.get('fn', 11)
            check(d0, E_FREE, 8 * (ti + 1))
            fns = [lambda r=r: self.row_dma_fast(r) for r in range(8 * ti + 9, 8 * ti + 17)]
            self.spread(P, d0, fns, o.get('per0', 8) if ti == 0 else o.get('pern', 8))
            c = 12 * ti + c0s[ti]
            insert_at(P, c - o.get('sgl', 1.2), landed)
            check(c - o.get('ckl', 0.4), E_ROW, 8 * (ti + 2), ('r', ti + 1))
        check(24 + o.get('fn', 11), E_FREE, 32)
        for ti, d in ((0, 12), (1, 24)):
            for k, f in enumerate(self.spill_ln(ti)):
                at = int(o.get(f'sl{ti}', d) + k * o.get('sls', 1))
                assert at <= (38 if ti and k >= 4 else 41 + 3 * ti + k // 2)
                P[at]['vm'].append(f)
        P[o.get('sent', 6)]['end'].append(self.sentinels)
        P[17]['end'].append(self.bias_finish)
        P[24]['end'].append(self.init_counter)
        u = self.vX
        P[33]['end'].append(lambda: self.w2_addr(u, self.tq[1]))
        self.spread(P, 24 + o.get('fn', 11), [lambda k=k: self.w2_fetch(u, k) for k in range(7)], 3)
        self.mix_in(P[36], self.ident32())
        for k, f in zip((38, 42, 46), self.role_steps()):
            P[k]['end'].append(f)
        self.touches(P, o.get('t1s', 'r2@7/3/1,r3@18/3/1'), self.tq[1])
        fr = flts(o.get('pf1', '0,0.5,0.85'))
        marks = [0] + list(range(o.get('l1a', 6), 50, o.get('lc', 2))) + [50]
        for a, b in zip(marks, marks[1:]):
            self.ladder(P, a, b, fr)
        if o.get('fine') == 'p1':
            for k in ints(o.get('ss1', '2,4,5,9,12,14,15,21,26,27,33,41')):
                P[k]['end'].append(lambda: self.sstamp('p1'))
        self.run(P, self.ring1)
        p.lds_age = 0
        p.raw("s_setprio 3")
        t = [V(128 + i) for i in range(16)]
        p.valu("v_and_b32", t[8], 0x33, lane)
        p.valu("v_bfe_u32", t[9], lane, 2, 1)
        p.valu("v_lshl_add_u32", t[8], t[9], 3, t[8])
        p.valu("v_bfe_u32", t[9], lane, 3, 1)
        p.valu("v_lshl_add_u32", t[8], t[9], 2, t[8])
        p.valu("v_lshl_add_u32", t[8], t[8], 2, sPRIV)
        for j in range(0, 12, 2):
            p.swap32(self.SQ[j], self.SQ[j + 1])
            p.valu("v_add_f32", self.SQ[j], self.SQ[j], self.SQ[j + 1])
            p.ds_write("ds_write_b32", t[8], self.SQ[j], TABO + j * 128)
        p.valu("v_mov_b32", t[0], CNT)
        p.valu("v_mov_b32", t[1], 1)
        p.wait_all(vm=False)
        p.raw("s_mov_b64 exec, 1")
        p.raw(f"ds_add_rtn_u32 {t[2]}, {t[0]}, {t[1]}")
        p.raw("s_mov_b64 exec, -1")
        p.raw("s_waitcnt lgkmcnt(0)")
        p.valu("v_readfirstlane_b32", sT0, t[2])

        def publish():
            pv = [V(168 + 8 * w, 8) for w in range(7)] + [V(120, 8)]
            p.valu("v_min_u32", t[3], 47, lane)
            p.valu("v_lshlrev_b32", t[4], 5, t[3])
            p.valu("v_add_u32", t[4], W2R + TABO, t[4])
            for w in range(8):
                for k in range(2):
                    p.ds_read("ds_read_b128", pv[w].sub(4 * k, 4), t[4], 9216 * w + 16 * k)
            p.valu("v_lshlrev_b32", t[6], 13, t[3])
            p.valu("v_add_u32", t[7], 4096, t[6])
            for st in (1, 2, 4):
                for w in range(0, 8, 2 * st):
                    for i in range(8):
                        p.valu("v_add_f32", pv[w].sub(i), pv[w].sub(i), pv[w + st].sub(i))
            for i in range(8):
                p.valu("v_min_u32", pv[1].sub(i), -2, pv[0].sub(i))
            p.salu("s_lshl_b32", sT0, S(2), 4)
            p.buf_store("buffer_store_dwordx4", pv[1].sub(0, 4), t[6], sWS, sT0, flags="sc1")
            p.buf_store("buffer_store_dwordx4", pv[1].sub(4, 4), t[7], sWS, sT0, flags="sc1")
            p.ds_write("ds_write_b32", t[0], t[1], 4)
            p.raw("s_waitcnt lgkmcnt(0)")
            p.nop(2)
        self.cond("s_cmp_lg_u32", sT0, 7, "Lnopub", publish)
        self.stamp(192)

    def role_steps(self):
        p, lane = self.p, self.vLane
        gv = self.poll_regs()[2]
        t = [V(88 + i) for i in range(8)]

        def a():
            p.valu("v_lshlrev_b32", t[1], 2, lane)
            p.valu("v_mov_b32", t[2], 0)
            for i in range(3):
                p.raw(f"buffer_load_dword {gv[i]}, {t[1]}, {sGA}, 0 offen offset:{256 * i}")
            p.raw(f"buffer_load_dword {t[3]}, {t[2]}, {sDBG}, 0 offen sc1")

        def b():
            p.valu("v_mov_b32", t[2], 0)
            p.lines.append("Lpi:")
            p.raw("s_waitcnt vmcnt(0)")
            p.raw(f"v_readfirstlane_b32 {sT0}, {t[3]}")
            self.spin_guard("Lpix")
            p.raw(f"s_cmp_ge_u32 {sT0}, 256")
            p.raw("s_cbranch_scc1 Lpix")
            p.raw(f"buffer_load_dword {t[3]}, {t[2]}, {sDBG}, 0 offen sc1")
            p.raw("s_branch Lpi")
            p.lines.append("Lpix:")
            p.valu("v_min_u32", t[0], 47, lane)
            p.valu("v_lshlrev_b32", t[0], 3, t[0])
            p.salu("s_and_b32", sT1, S(2), REP - 1)
            p.salu("s_lshl_b32", sT1, sT1, 11)
            p.salu("s_add_u32", sT1, sT1, WS_TOT + 1536)
            p.raw(f"buffer_load_dwordx2 {V(92, 2)}, {t[0]}, {sWS}, {sT1} offen sc1")

        def c():
            p.valu("v_min_u32", t[0], 47, lane)
            p.valu("v_lshlrev_b32", t[0], 3, t[0])
            p.valu("v_add_u32", t[1], BT0, t[0])
            p.valu("v_add_u32", t[0], BT1 - 256, t[0])
            p.valu("v_cmp_gt_u32", "vcc", 32, lane)
            p.valu("v_cndmask_b32", t[0], t[0], t[1], "vcc")
            p.raw("s_waitcnt vmcnt(0)")
            p.ds_write("ds_write_b64", t[0], V(92, 2))
        return [lambda f=f, k=k: self.cond("s_cmp_lg_u32", sWAVE, 0, f"Lrs{k}", f) for k, f in enumerate((a, b, c))]

    def ident32(self):
        p, lane = self.p, self.vLane
        a, b, c = self.tq[0], self.tq[1], self.tq[2]
        ops = [lambda: p.valu("v_and_b32", a, 1, lane),
               lambda: p.valu("v_lshlrev_b32", a, 4, a),
               lambda: p.valu("v_mov_b32", b, 0x3C00),
               lambda: p.valu("v_lshlrev_b32", a, a, b),
               lambda: p.valu("v_lshrrev_b32", b, 3, lane),
               lambda: p.valu("v_xor_b32", b, b, lane),
               lambda: p.valu("v_and_b32", b, 4, b),
               lambda: p.valu("v_bfe_u32", c, lane, 3, 2),
               lambda: p.valu("v_lshl_add_u32", b, b, 1, 0),
               lambda: p.valu("v_lshl_add_u32", b, c, 1, b),
               lambda: p.valu("v_bfe_u32", c, lane, 1, 1),
               lambda: p.valu("v_add_u32", b, b, c)]
        for i in range(8):
            ops.append(lambda i=i: (p.valu("v_cmp_eq_u32", "vcc", i, b), p.valu("v_cndmask_b32", self.idf[i // 4].sub(i % 4), 0, a, "vcc")))
        return [(4, f) for f in ops]

    def poll_regs(self):
        rv = [V(156, 4), V(160, 4), V(164, 4), V(240, 4)]
        tv = V(156, 6)
        gv = [V(244), V(245), V(246)]
        t = [V(247), V(255), V(162), V(163), V(164), V(165), V(166), V(167)]
        return rv, tv, gv, t

    def poll_loads(self, p, reducer):
        rv, tv, gv, t = self.poll_regs()
        if reducer:
            p.valu("v_lshlrev_b32", t[0], 4, self.vLane)
            p.salu("s_lshl_b32", sT1, S(2), 12)
            for i in range(4):
                p.buf_load("buffer_load_dwordx4", rv[i], t[0], sWS, sT1, 1024 * i, flags="sc1")
        else:
            p.valu("v_lshlrev_b32", t[0], 3, self.vLane)
            p.salu("s_and_b32", sT1, S(2), REP - 1)
            p.salu("s_lshl_b32", sT1, sT1, 11)
            p.salu("s_add_u32", sT1, sT1, WS_TOT)
            for i in range(3):
                p.buf_load("buffer_load_dwordx2", tv.sub(2 * i, 2), t[0], sWS, sT1, 512 * i, flags="sc1")

    def poll_routine(self):
        main, self.p = self.p, Prog()
        p = self.p
        rv, tv, gv, t = self.poll_regs()
        ret = f"s_setpc_b64 {sRET}"
        p.lines.append("Lpoll:")
        p.raw("s_waitcnt vmcnt(0)")
        p.salu("s_cmp_eq_u32", sROLE, 2)
        p.raw("s_cbranch_scc1 LpollC")
        allr = [rv[i].sub(k) for i in range(4) for k in range(4)]
        p.valu("v_max_u32", t[1], allr[0], allr[1])
        for i in range(2, 16, 2):
            p.valu("v_max3_u32", t[1], t[1], allr[i], allr[i + 1])
        p.valu("v_cmp_eq_u32", "vcc", -1, t[1])
        p.nop(5)
        p.raw("s_cbranch_vccz LpollR")
        self.poll_loads(p, True)
        p.raw(ret)
        self.p = p2 = Prog()
        p2.lines.append("LpollR:")
        p2.raw("s_setprio 3")
        for k in range(4):
            p2.valu("v_add_f32", rv[0].sub(k), rv[0].sub(k), rv[1].sub(k))
            p2.valu("v_add_f32", rv[3].sub(k), rv[2].sub(k), rv[3].sub(k))
            p2.valu("v_add_f32", rv[3].sub(k), rv[0].sub(k), rv[3].sub(k))
        for k in range(4):
            self.lane_sum64(rv[3].sub(k), t[1])
            p2.valu("v_min_u32", rv[3].sub(k), -2, rv[3].sub(k))
        p2.salu("s_lshl_b32", sT1, S(2), 4)
        p2.salu("s_add_u32", sT1, sT1, WS_TOT)
        p2.valu("v_lshlrev_b32", t[1], 11, self.vLane)
        p2.raw(f"s_mov_b64 exec, {hex((1 << REP) - 1)}")
        p2.buf_store("buffer_store_dwordx4", rv[3], t[1], sWS, sT1, flags="sc1")
        p2.raw("s_mov_b64 exec, -1")
        p2.salu("s_mov_b32", sROLE, 2)
        self.poll_loads(p2, False)
        p2.raw(ret)
        self.p = p3 = Prog()
        p3.lines.append("LpollC:")
        p3.valu("v_max3_u32", t[1], tv.sub(0), tv.sub(1), tv.sub(2))
        p3.valu("v_max3_u32", t[1], t[1], tv.sub(3), tv.sub(4))
        p3.valu("v_max_u32", t[1], t[1], tv.sub(5))
        p3.valu("v_cmp_eq_u32", "vcc", -1, t[1])
        p3.nop(5)
        p3.raw("s_cbranch_vccz LpollS")
        self.poll_loads(p3, False)
        p3.raw(ret)
        self.p = p4 = Prog()
        p4.lines.append("LpollS:")
        p4.raw("s_setprio 3")
        p4.salu("s_mov_b32", sT0, f2u(1.0 / (GA * GA)))
        p4.valu("v_mov_b32", t[2], f2u(1e-6))
        for i in range(6):
            p4.valu("v_fma_f32", tv.sub(i), tv.sub(i), sT0, t[2])
        for i in range(6):
            p4.valu("v_sqrt_f32", tv.sub(i), tv.sub(i))
        p4.valu("v_add_f32", t[3], tv.sub(0), tv.sub(1))
        for i in range(2, 6):
            p4.valu("v_add_f32", t[3], t[3], tv.sub(i))
        self.lane_sum64(t[3], t[1])
        p4.salu("s_mov_b32", sT0, f2u(1.0 / 384))
        p4.valu("v_fma_f32", t[3], t[3], sT0, t[2])
        p4.valu("v_rcp_f32", t[3], t[3])
        p4.valu("v_mov_b32", t[2], f2u(1.0 / GA))
        p4.valu("v_mul_f32", t[3], t[3], t[2])
        for i in range(3):
            p4.valu("v_lshlrev_b32", t[4], 16, gv[i])
            p4.valu("v_and_b32", t[5], 0xFFFF0000, gv[i])
            p4.valu("v_mul_f32", tv.sub(2 * i), tv.sub(2 * i), t[3])
            p4.valu("v_mul_f32", tv.sub(2 * i + 1), tv.sub(2 * i + 1), t[3])
            p4.valu("v_fma_f32", t[4], t[4], tv.sub(2 * i), t[2])
            p4.valu("v_fma_f32", t[5], t[5], tv.sub(2 * i + 1), t[2])
            p4.valu("v_cvt_pk_f16_f32", gv[i], t[4], t[5])
        p4.salu("s_mov_b32", sROLE, 0)
        p4.raw(ret)
        self.p = main
        for q in (p, p2, p3, p4):
            main.lines += q.lines

    def poll_point(self, k):
        p = self.p

        def body():
            if self.o.get('nb', 1):
                p.raw(f"s_getreg_b32 {sT0}, hwreg(HW_REG_IB_STS, 0, 4)")
                p.raw(f"s_cmp_lg_u32 {sT0}, 0")
                p.raw(f"s_cbranch_scc1 Lpp{k}")
            p.raw(f"s_call_b64 {sRET}, Lpoll")
            p.raw(f"s_setprio {self.prio}")
        self.cond("s_cmp_eq_u32", sROLE, 0, f"Lpp{k}", body)

    def gap(self):
        p, o, lane = self.p, self.o, self.vLane
        rv, tv, gv, t = self.poll_regs()
        wa = self.tq[1]
        p.valu("v_mov_b32", wa, self.vX)
        p.salu("s_mov_b32", sROLE, 0)

        def role():
            p.salu("s_cmp_lt_u32", S(2), 96)
            p.salu("s_cselect_b32", sROLE, 1, 2)
            for r in rv:
                for i in range(4):
                    p.valu("v_mov_b32", r.sub(i), -1)
            p.raw(f"s_call_b64 {sRET}, Lpoll")
        self.cond("s_cmp_lg_u32", sWAVE, 0, "Lnorole", role)
        self.setprio(0)
        p.lds_age = o.get('age1', 24)
        NE = len(self.J2)
        P = [seg() for _ in range(NE + 2)]
        ln = self.LN[2]
        for s, S_ in enumerate(P):
            if 0 <= s - 1 < NE:
                S_['fill'] = self.period_fill(regs(self.Y), o.get('ndg', 5), G=regs(self.S2[self.J2[s - 1]]), fl=s == NE)
            if s < NE:
                S_['mf'] = self.gemm1_32(self.J2[s], ln, True, 8 if s else 0)
                S_['head'], S_['tail'] = 32, o.get('t1', 24)
            if 0 <= s - 2 < NE:
                G = self.S2[self.J2[s - 2]]
                self.mix_in(S_, self.swaps(G.sub(0, 4), G.sub(4, 4)))
            S_['end'].append(lambda s=s: self.poll_point(s))
            if 1 <= s <= NE:
                npp = o.get('npp', 1)
                for q in range(1, npp):
                    insert_at(P, s + q / npp, lambda s=s, q=q: self.poll_point(100 * q + s))
        self.mix_in(P[NE], [x for u in range(3) for x in self.swaps(ln.sub(8 * u, 4), ln.sub(8 * u + 4, 4))])
        ws_ = max(0, NE - o.get('w2b', 3))
        P[ws_]['end'] += [lambda: self.lds_spin(self.tq[2], self.tq[3], 4, 1, "w2"), lambda: self.w2_fetch(wa, 7), lambda: self.w2_fetch(wa, 8)]
        self.touches(P, o.get('tgs', 'n'), self.tq[2])
        for a in range(0, o.get('lge', NE + 2), 3):
            self.ladder(P, a, a + 3, flts(o.get('pfg', '0,0.45,0.8')))
        self.run(P, self.ring2)
        p.lds_age = 0
        self.stamp(224)
        p.raw("s_setprio 2")
        fr = [V(120 + 4 * u, 4) for u in range(9)]
        u = [V(224 + i) for i in range(4)]
        p.valu("v_lshrrev_b32", u[1], 5, lane)
        p.valu("v_lshl_add_u32", u[0], u[1], 9, sPRIV)
        p.valu("v_lshl_add_u32", u[2], u[1], 4, sPRIV)
        p.valu("v_and_b32", u[1], 15, lane)
        p.valu("v_lshl_add_u32", u[0], u[1], 4, u[0])
        p.valu("v_bfe_u32", u[1], lane, 4, 1)
        p.valu("v_lshl_add_u32", u[0], u[1], 3, u[0])
        p.raw("s_waitcnt vmcnt(0)")
        p.vm_done = p.vm_seq
        for k in range(9):
            for i in range(2):
                p.ds_read("ds_read_b64_tr_b16", fr[k].sub(2 * i, 2), u[0], k * 1024 + i * 256)
        g, n = u[1], u[3]
        p.valu("v_lshrrev_b32", g, 4, lane)
        p.valu("v_and_b32", n, 15, lane)
        p.valu("v_mul_u32_u24", self.vG, 192, n)
        p.valu("v_lshl_add_u32", self.vG, g, 4, self.vG)
        p.valu("v_lshlrev_b32", self.vBias, 5, g)
        p.valu("v_and_b32", self.vR, 0x2F, lane)
        p.valu("v_lshlrev_b32", self.vR, 4, self.vR)
        p.valu("v_and_b32", g, 1, g)
        p.valu("v_mul_u32_u24", n, 3072, g)
        p.valu("v_add_u32", self.vA[0], n, self.vR)
        p.valu("v_add_u32", self.vA[1], 0x10000, self.vA[0])
        p.valu("v_add_u32", self.vA[2], 0x20000, self.vA[0])
        p.valu("v_lshl_add_u32", self.vR, g, self.fsh, self.vR)
        p.valu("v_mov_b32", u[1], CNT)
        p.valu("v_mov_b32", u[3], 1)
        p.wait_all(vm=False)
        p.raw("s_mov_b64 exec, 1")
        p.raw(f"ds_add_u32 {u[1]}, {u[3]} offset:8")
        p.raw("s_mov_b64 exec, -1")
        p.lgkm_seq += 1
        w = [V(228 + i) for i in range(4)]
        for k in range(36):
            f, a, b = V(120 + k), w[2 * (k % 2)], w[2 * (k % 2) + 1]
            p.valu("v_lshlrev_b32", a, 16, f)
            p.valu("v_and_b32", b, 0xFFFF0000, f)
            p.valu("v_cvt_pk_f16_f32", f, a, b)
            if k % 12 == 11:
                self.prio = 2
                self.poll_point(900 + k)
        p.valu("v_lshl_add_u32", u[0], lane, 4, sPRIV)
        for e in str(o.get('tb4', 'n')).split(','):
            if e != 'n':
                self.cond("s_cmp_eq_u32", sWAVE, 0, f"Ltb{e}", lambda: [self.touch(e[0], int(e[1]), w[0], (k, 2)) for k in range(2)])

        def finish():
            p.lines.append("Lspin:")
            p.salu("s_cmp_eq_u32", sROLE, 0)
            p.raw("s_cbranch_scc1 Lspinx")
            self.spin_guard("Lspinx")
            p.raw(f"s_call_b64 {sRET}, Lpoll")
            p.raw("s_branch Lspin")
            p.lines.append("Lspinx:")
            for i in range(3):
                p.valu("v_add_u32", t[2 + i], 64 * i, lane)
                p.valu("v_mul_u32_u24", t[5], 2731, t[2 + i])
                p.valu("v_lshrrev_b32", t[5], 16, t[5])
                p.valu("v_mul_u32_u24", t[5], 9216 - 96, t[5])
                p.valu("v_lshl_add_u32", t[2 + i], t[2 + i], 2, t[5])
                p.valu("v_add_u32", t[2 + i], W2R, t[2 + i])
            self.lds_spin(t[5], t[6], 8, 8, "rr")
            for i in range(3):
                p.ds_write("ds_write_b32", t[2 + i], gv[i])
        self.cond("s_cmp_lg_u32", sWAVE, 0, "Lnofin", finish)
        p.raw("s_waitcnt lgkmcnt(0)")
        p.lgkm_done = p.lgkm_seq
        self.stamp(228)
        p.barrier()
        self.stamp(228)
        sc = [V(228, 4), V(232, 4), V(236, 4)]
        for k in range(3):
            p.ds_read("ds_read_b128", sc[k], u[2], 32 * k)
        self.early_loads()
        p.wait_all(vm=False)
        for k in range(9):
            for i in range(4):
                p.valu("v_pk_mul_f16", fr[k].sub(i), fr[k].sub(i), sc[k // 3].sub(i))
            p.ds_write("ds_write_b128", u[0], fr[k], k * 1024)
        p.wait_all(vm=False)
        p.barrier()
        self.stamp(228)

    def load_x1(self, dst, ti, k):
        p = self.p
        if k % 2:
            p.salu("s_add_u32", sT3, sTILE[ti], ROWB)
        if 'X' in self.o.get('x_no', ''):
            return
        if 'x' in self.o.get('x_lin', ''):
            p.buf_load("buffer_load_dwordx4", dst, self.vO, sX, sT3 if k % 2 else sTILE[ti], 128 * (k // 2), flags=self.o.get('xlf', ''))
            return
        p.buf_load("buffer_load_dwordx4", dst, self.vG, sX, sT3 if k % 2 else sTILE[ti], 64 * (k // 2), flags=self.o.get('xlf', ''))

    def reload_ln(self, ti, dst):
        p = self.p
        if 'L' in self.o.get('x_no', '') and ti == 1:
            return []
        return [lambda k=k: self.ws_frag(6 * ti + (k & ~1), lambda so: p.buf_load(
            "buffer_load_dwordx4", dst[k], self.vR, sWS, so, 256 * (k & 1), flags=self.o.get('rlf', 'nt'))) for k in range(6)]

    def out_map(self):
        p = self.p
        p.valu("v_and_b32", self.vO, 1, self.vLane)
        p.valu("v_lshlrev_b32", self.vO, 7, self.vO)
        p.valu("v_sub_u32", self.vO, self.vG, self.vO)
        p.salu("s_mov_b32", sEV.sub(0), 0x55555555)
        p.salu("s_mov_b32", sEV.sub(1), 0x55555555)

    def early_loads(self):
        self.load_x1(V(240, 4), 3, self.po[0])
        self.load_x1(V(244, 4), 3, self.po[1])

    def gemm1_16(self, j, ln, y, need):
        p = self.p
        return [dict(reads=[self.frag(W1F + (j * 6 + u) * 1024 + 256 * b)], need=need,
                     emit=[(lambda w, u=u, b=b, r=r: p.mfma(y[2 * r + b], w, ln[2 * u + r], y[2 * r + b] if u else 0)) for r in range(2)])
                for u in range(3) for b in range(2)]

    def gemm2_16(self, j, users, tag=None):
        p = self.p
        items = []
        for T in range(3):
            for b in range(2):
                reads = [self.frag(W2R + (j * 6 + T) * 1024 + 256 * b)]
                if any(f for _, _, f in users):
                    reads.append(rd128(self.vBias, (BT0 + 128 * T if T < 2 else BT1) + 16 * b))
                em = []
                for acc, G, f in users:
                    for r in range(2):
                        d = acc[2 * T + r].sub(4 * b, 4)
                        em.append(lambda w, c=None, d=d, G=G, r=r, f=f: p.mfma(d, w, G.sub(4 * r, 4), c if f else d, 'f16'))
                items.append(dict(reads=reads, emit=em, tag=tag if (T, b) == (2, 1) else None))
        return items

    def resid_item(self, acc, k, x):
        p = self.p
        return dict(reads=[], emit=[(lambda b=b: p.mfma(acc[k].sub(4 * b, 4), self.id16.sub(2 - 2 * b, 4), x, acc[k].sub(4 * b, 4))) for b in range(2)])

    def ident16(self):
        p, lane, I = self.p, self.vLane, self.id16
        a, b = I.sub(0), I.sub(1)
        ops = [lambda: p.valu("v_and_b32", a, 1, lane),
               lambda: p.valu("v_lshlrev_b32", a, 4, a),
               lambda: p.valu("v_mov_b32", b, 0x3F80),
               lambda: p.valu("v_lshlrev_b32", a, a, b),
               lambda: p.valu("v_lshrrev_b32", b, 2, lane),
               lambda: p.valu("v_xor_b32", b, b, lane),
               lambda: p.valu("v_and_b32", b, 12, b),
               lambda: p.valu("v_and_b32", I.sub(4), 2, lane),
               lambda: p.valu("v_or_b32", b, b, I.sub(4)),
               lambda: (p.valu("v_cmp_eq_u32", "vcc", 0, b), p.valu("v_cndmask_b32", I.sub(2), 0, a, "vcc")),
               lambda: (p.valu("v_cmp_eq_u32", "vcc", 2, b), p.valu("v_cndmask_b32", I.sub(3), 0, a, "vcc"))]
        ops += [lambda i=i: p.valu("v_mov_b32", I.sub(i), 0) for i in (0, 1, 4, 5)]
        return [(4, f) for f in ops]

    def pack_row(self, acc, r, dst=None):
        p = self.p
        a = [acc[2 * T + r] for T in range(3)]
        X, Y, Z = dst or (a[0].sub(0, 4), a[1].sub(4, 4), a[2].sub(0, 4))
        q = "quad_perm:[1,0,3,2] row_mask:0xf bank_mask:0xf"
        ops = [(4, lambda v=v, i=i: p.valu("v_cvt_pk_bf16_f32", v.sub(i), v.sub(2 * i), v.sub(2 * i + 1))) for v in (a[1], a[0], a[2]) for i in range(4)]
        ops.append((0, lambda: p.salu("s_mov_b64", "vcc", sEV)))
        ops += [(4, lambda i=i: p.valu("v_cndmask_b32", Y.sub(i), a[0].sub(i), a[2].sub(i), "vcc")) for i in range(4)]
        ops += [(4, lambda i=i: p.valu("v_cndmask_b32_dpp", X.sub(i), a[1].sub(i), a[0].sub(i), "vcc", mods=q)) for i in range(4)]
        ops.append((0, lambda: p.salu("s_not_b64", "vcc", sEV)))
        ops += [(4, lambda i=i: p.valu("v_cndmask_b32_dpp", Z.sub(i), a[1].sub(i), a[2].sub(i), "vcc", mods=q)) for i in range(4)]
        return ops, (X, Y, Z)

    def store_line(self, v, ti, r, k):
        p = self.p
        if 'O' in self.o.get('x_no', ''):
            return
        if r:
            p.salu("s_add_u32", sT3, sTILE[ti], ROWB)
        p.buf_store("buffer_store_dwordx4", v, self.vO, sOUT, sT3 if r else sTILE[ti], 128 * k, flags=self.o.get('osf1' if ti == 1 else 'osf', 'sc1'))

    def phase2(self):
        p, o = self.p, self.o
        S3, S2, J2 = self.S3, self.S2, self.J2
        assert len(J2) == 7
        C2_ = [j for j in range(12) if j not in J2]
        half = lambda v: [v.sub(0, 4), v.sub(4, 4)]
        A = [V(120 + 8 * i, 8) for i in range(6)]
        st2 = [S2[j] for j in J2]
        xs = [V(240, 4), V(244, 4)] + half(S3[0]) + half(S3[1])
        self.id16 = S3[2].sub(0, 6)
        R0 = half(S3[3]) + half(S3[4]) + half(S3[5])
        B = S3[6:12]
        Y = half(st2[0]) + half(st2[1])
        W = regs(st2[2], st2[3], st2[4].sub(0, 4))
        G = st2[5]
        ext = half(st2[6])
        ring3 = self.ring2 + ext
        R1 = [self.LN[2].sub(4 * k, 4) for k in range(6)]
        self.ge = Gelu(self, W, sK, sM, 0)
        seq = [(2, j) for j in C2_] + [(0, j) for j in range(12)] + [(1, j) for j in range(12)]
        NE = len(seq)
        pre = [seg() for _ in range(10)]
        for j in range(12):
            pre[j // 2]['mf'] += self.gemm2_16(j, [(A, S3[j], j == 0)])
        for k, j in enumerate(J2):
            pre[6 + k // 2]['mf'] += self.gemm2_16(j, [(B, S2[j], k == 0)])
        rl = self.reload_ln(0, R0)
        pre[2]['vm'] += rl[:2]
        for k in range(2, 6):
            pre[int(o.get('rl0', 3) + (k - 2) * o.get('rl0s', 0.5))]['vm'].append(rl[k])
        pre[2]['fill'] += self.ident16()
        pre[5]['pre'].append(self.out_map)
        g1 = self.gemm1_16(seq[0][1], R1, Y, 0)
        for k in range(2):
            m = pre[7 + k]['mf']
            pre[7 + k]['mf'] = [x for i in range(3) for x in m[4 * i:4 * i + 2] + [g1[3 * k + i]] + m[4 * i + 2:4 * i + 4]]
        NP = NE + 2
        P = [seg() for _ in range(NP)]
        P[0] = pre.pop()
        for s in pre + P:
            s['cl'] = 1
        acc = {2: B, 0: A, 1: B, 3: A}
        lns = {2: R1, 0: R0, 1: R1}
        nds = ints(o.get('nd2', '5'))
        yl = regs(*Y)
        ex = [[] for _ in range(NP)]
        for s in range(NP):
            S_ = P[s]
            a = self.gemm1_16(seq[s + 1][1], lns[seq[s + 1][0]], Y, 8) if s + 1 < NE else []
            b = list(S_['mf'])
            if 1 <= s <= NE:
                ti, j = seq[s - 1]
                users = [(acc[ti], G, ti != 2 and seq[s - 2][0] != ti)]
                b = self.gemm2_16(j, users, 'g')
            if s < NE:
                S_['fill'] = self.period_fill(yl, nds[s % len(nds)], G=regs(G), tag='g' if s else None, ph=2)
            S_['ab'] = (a, b)
            S_['tail'] = o.get('t2', 32)
        n2 = len(C2_)
        allseg = pre + P
        base = len(pre)
        minl = o.get('minl', 2)
        xs += [st2[4].sub(4, 4)] + R0
        avail = {0: None, 1: None, 2: -8, 3: -8, 4: -8, 5: -8, 6: 0}
        avail.update({7 + k: n2 + 11 for k in range(6)})
        done = {}
        gl, gu = o.get('gl', 1), o.get('gu', 1)
        po = self.po
        want = [(-8, -6 + i // 2, 3, k) for i, k in enumerate(po)]
        rest = []
        for ti, d in ((2, '-4,0.8,2,1'), (0, '11,1.6,17,1.4'), (1, '20,1.1,24,1')):
            l0, ls_, u0, us = flts(o.get(f'x{ti}', d))
            rest += [(math.floor(l0 + (i - i % gl) * ls_), math.floor(u0 + (i - i % gu) * us), ti, k) for i, k in enumerate(po)]
        want += sorted(rest, key=lambda w: w[:3])
        log = []
        for i, (at, s, ti, k) in enumerate(want):
            if i < 2:
                bi = i
            else:
                ok = [b_ for b_ in avail if avail[b_] <= at]
                bi = max(ok, key=lambda b_: (avail[b_], b_)) if ok else min(avail, key=lambda b_: (avail[b_], b_))
                at = max(avail[bi], at)
                s = max(s, at + minl)
                f = lambda buf=xs[bi], ti=ti, k=k: self.load_x1(buf, ti, k)
                vm = allseg[base + at]['vm']
                if gl > 1 and log and log[-1][0] == ti and log[-1][2] == at and i > 2:
                    vm[-1] = (lambda f0=vm[-1], f=f: (f0(), f()))
                else:
                    vm.append(f)
            it = self.resid_item(acc[ti], k, xs[bi])
            (allseg[base + s]['mf'] if s < 0 else ex[s]).append(it)
            avail[bi] = s + 1
            done[(ti, k)] = s
            log.append((ti, k, at, s))
        if o.get('show'):
            print('x (tile, piece, load, use)', log)
        first = {3: -9, 2: -3, 0: n2 + 1, 1: n2 + 13}
        assert all(done[(ti, k)] > first[ti] for ti, k in done), done
        last = {3: -4, 2: n2, 0: n2 + 12, 1: NE}
        free = {3: n2, 2: n2 + 12, 0: NP - 1, 1: NP - 1}
        r1_free = [n2 - 1] * 6
        olog = []
        for ti, d in ((3, '-3,1.5'), (2, '8,1.8'), (0, '20,1.7'), (1, '30,0')):
            o0, st = flts(o.get(f'o{ti}', d))
            for r in range(2):
                ts = [math.floor(o0 + (3 * r + k) * st) for k in range(3)]
                s = min(max([ts[0], last[ti] + 1] + [done[(ti, 2 * T + r)] + 1 for T in range(3)]), free[ti])
                ts = [max(t_, s) for t_ in ts]
                dst = None
                if ts[2] > free[ti]:
                    assert ti == 3 and s >= n2 - 1
                    dst = R1[3 * r:3 * r + 3]
                    r1_free[3 * r:3 * r + 3] = [t_ + 1 for t_ in ts]
                ops, V3 = self.pack_row(acc[ti], r, dst)
                for k in range(3):
                    f = lambda v=V3[k], ti=ti, r=r, k=k: self.store_line(v, ti, r, k)
                    if ts[k] == s:
                        ops.append((0, lambda f=f: self.gq.append(f)))
                    else:
                        allseg[base + ts[k]]['vm'].append(f)
                olog.append((ti, r, s, ts))
                if s < 0:
                    allseg[base + s]['fill'] += ops
                    allseg[base + s]['head'] = -24
                elif s < NE:
                    f = P[s]['fill']
                    assert not P[s].get('packed')
                    P[s]['packed'] = True
                    cut = next((i for i, x in enumerate(f) if len(x) > 2), len(f) - 8)
                    P[s]['fill'] = f[:8] + merge(f[8:cut - 4], ops) + f[cut - 4:]
                else:
                    P[s]['fill'] += ops + [(0, self.flush)]
        if o.get('show'):
            print('out (tile, row, pack, stores)', olog)
        for k, f in enumerate(self.reload_ln(1, R1)):
            t_ = max(int(o.get('rl1', 4) + k * o.get('rl1s', 1)), r1_free[k])
            assert t_ <= n2 + 9
            P[t_]['vm'].append(f)
        for s in range(NP):
            a, b = P[s].pop('ab')
            src = {'a': a, 'b': b, 'x': ex[s]}
            P[s]['mf'] = [src[c].pop(0) for c in o.get('ord', 'bbabxababbxaaa' + 'x' * 6) if src[c]]
            assert not any(src.values())
            if s >= 1:
                P[s]['ring'] = ring3
        n_pre = sum(len(s['mf']) for s in pre + P[:1])
        for s in P[1:]:
            s['free_from'] = {v.b: n_pre - 1 for v in ext}
        lc = o.get('lc2', 3)
        for a in range(o.get('l2a', 0), NP - o.get('l2e', 8), lc):
            self.ladder(P, a, a + lc, flts(o.get('pf2', '0,0.4,0.7,0.9')))
        for k in ints(o.get('ssp', '0,6,12,18,24' if o.get('dbg') else '0,3,6,10,14,18,22,26')):
            P[k]['end'].append(self.sstamp)
        p.raw(f"s_setprio {o.get('pp', 3)}")
        p.lds_age = o.get('age2', 24)
        self.run(allseg, self.ring2)
        if o.get('stamps'):
            p.raw('s_waitcnt vmcnt(0)')
        self.stamp(96)
        self.sstamp_flush(100)
        self.mark_flush()

    def build(self):
        self.alloc()
        self.vW1g, self.vW1r, self.vW1w = V(145), V(146), V(147)
        self.p.lines.append("Lmain:")
        self.prologue()
        self.phase1()
        self.gap()
        self.phase2()
        self.p.raw("s_endpgm")
        self.poll_routine()
        self.p.lines.append("Lend:")
        self.p.raw("s_endpgm")
        return self.p


HEADER = open('standalone__modern_conv_block_convnext_v2__vision.s.ref').read().split('; Override launch')[0]


def wrap(p):
    return f"""{HEADER}; Generated by gen/gen2.py (hand-written generator; see gen/asmgen.py, gen/engine.py, gen/gelu.py)
; @launch grid=(256,1,1) block=(512,1,1) lds={LDS_BYTES}
.amdgcn_target "amdgcn-amd-amdhsa--gfx950"
.text
.globl {NAME}
.p2align 8
.type {NAME},@function
{NAME}:
{p.text()}
.section .rodata,"a"
.p2align 6
.amdhsa_kernel {NAME}
  .amdhsa_next_free_vgpr 256
  .amdhsa_next_free_sgpr 102
  .amdhsa_accum_offset 256
  .amdhsa_group_segment_fixed_size 0
  .amdhsa_kernarg_size 72
  .amdhsa_user_sgpr_count 2
  .amdhsa_user_sgpr_kernarg_segment_ptr 1
  .amdhsa_system_sgpr_workgroup_id_x 1
.end_amdhsa_kernel
"""


def generate(out, args):
    opt = {}
    for a in args:
        k, v = a.split('=')
        try:
            opt[k] = int(v)
        except ValueError:
            try:
                opt[k] = float(v)
            except ValueError:
                opt[k] = v
    g = Gen(opt)
    p = g.build()
    from align import align_dp
    al = align_dp(p.lines)
    open(out, 'w').write(wrap(p))
    print(out, 'align', al, 'instructions', sum(p.stats.values()), 'stamps', g.nstamp,
          {k: v for k, v in p.stats.items() if k in ('s_nop', 's_waitcnt', 'ds_read_b128') or 'mfma' in k})


if __name__ == '__main__':
    generate(sys.argv[1], sys.argv[2:])
```

```python
from asmgen import *


def merge(a, b):
    ca, cb = sum(x[0] for x in a) or 1, sum(x[0] for x in b) or 1
    out, i, j, xa, xb = [], 0, 0, 0.0, 0.0
    while i < len(a) or j < len(b):
        if j >= len(b) or (i < len(a) and xa / ca <= xb / cb):
            out.append(a[i]); xa += a[i][0]; i += 1
            while i < len(a) and a[i][0] == 0:
                out.append(a[i]); i += 1
        else:
            out.append(b[j]); xb += b[j][0]; j += 1
            while j < len(b) and b[j][0] == 0:
                out.append(b[j]); j += 1
    return out


def seg():
    return dict(pre=[], mf=[], fill=[], vm=[], pb=[], end=[])


def rd128(addr, off, ring=None, hook=None):
    return dict(parts=[("ds_read_b128", addr, off, 0, 4)], ring=ring, hook=hook)


class Engine:
    def __init__(self, opt):
        self.o = opt
        self.p = Prog()
        self.gq = []
        self.prio = 0
        self.imm = 99

    def setprio(self, lv):
        self.prio = lv
        self.p.raw(f"s_setprio {lv}")

    def flush(self):
        while self.gq:
            self.gq.pop(0)()

    def run(self, segs, ring):
        p = self.p
        reads, cnt, last = [], {}, {}
        n_it = 0
        for s in segs:
            for it in s['mf']:
                it['ri'], it['id'] = [], n_it
                for rd in it['reads']:
                    rg = rd['ring'] or s.get('ring') or ring
                    k = cnt.get(id(rg), 0)
                    cnt[id(rg)] = k + 1
                    buf = rg[k % len(rg)]
                    it['ri'].append(len(reads))
                    reads.append((rd, buf, last.get(buf.b, s.get('free_from', {}).get(buf.b, -1))))
                    last[buf.b] = n_it
                n_it += 1
        nxt = [0]

        def issue(cur, lim=None):
            while nxt[0] < (len(reads) if lim is None else lim) and reads[nxt[0]][2] < cur:
                rd, buf, _ = reads[nxt[0]]
                if rd.get('after') is not None and not rd['after']():
                    assert lim is None, "fragment read needed before its gate"
                    break
                if rd['hook']:
                    rd['hook']()
                for op, addr, off, so, n in rd['parts']:
                    p.ds_read(op, buf.sub(so, n), addr() if callable(addr) else addr, off)
                nxt[0] += 1

        issue(0)
        for s in segs:
            for f in s['pre']:
                f()
            fill = list(s['fill'])
            total = sum(x[0] for x in fill)
            wsum = sum(it.get('w', 1.0) * (len(it['emit']) if isinstance(it['emit'], list) else 1) for it in s['mf'])
            head, tail = s.get('head', 0), s.get('tail', 0)
            per = max(0.0, total - head - tail) / wsum if wsum else 0.0
            budget = head
            nfill = len(fill)
            vm = list(s['vm'])
            nvm = len(vm)
            nm = len(s['mf'])

            done = set()

            def step():
                nonlocal budget
                x = fill.pop(0)
                assert len(x) < 3 or x[2] in done, "fill entry forced ahead of the matrix item it must follow"
                x[1]()
                budget -= x[0]

            def drain():
                while fill and budget >= fill[0][0] and (len(fill[0]) < 3 or fill[0][2] in done):
                    step()

            drain()
            for k_it, it in enumerate(s['mf']):
                while nfill - len(fill) < it.get('need', 0):
                    step()
                while any(x is it.get('mark') for x in fill):
                    step()
                if it['ri']:
                    issue(it['id'], it['ri'][-1] + 1)
                bufs = [reads[i][1] for i in it['ri']]
                emits = it['emit'] if isinstance(it['emit'], list) else [it['emit']]
                for k, e in enumerate(emits):
                    after = s.get('cl', self.o.get('cl', 2)) == 1
                    if after:
                        e(*bufs)
                    if k == 0:
                        p._mem_deps([r for b in bufs for r in b.regs()])
                        while vm and (nvm - len(vm)) * nm <= k_it * nvm:
                            vm.pop(0)()
                        if k_it % s.get('rg', self.o.get('rg', 1)) == 0:
                            issue(it['id'])
                    if k == 0 and k_it % s.get('rg', self.o.get('rg', 1)) == 0:
                        self.flush()
                    if not after:
                        e(*bufs)
                    if k == len(emits) - 1:
                        done.add(it.get('tag'))
                        if it.get('post'):
                            it['post']()
                    budget += per * it.get('w', 1.0)
                    drain()
            if vm and not s['mf']:
                st = max(1, len(fill) // (len(vm) + 1))
                for k in range(len(vm), 0, -1):
                    fill.insert(min(k * st, len(fill)), (0, vm[k - 1]))
                vm = []
            for f in vm:
                f()
            while fill:
                step()
            if s['pb']:
                p.raw("s_setprio 3")
                for f in s['pb']:
                    f()
                p.raw(f"s_setprio {self.prio}")
            for f in s['end']:
                f()
        self.flush()
        assert nxt[0] == len(reads)


def insert_at(segs, pos, fn):
    k = int(pos)
    s = segs[k]
    fr = pos - k
    if fr == 0:
        s['pre'].append(fn)
        return
    tot = sum(x[0] for x in s['fill'])
    x = 0
    for i, f in enumerate(s['fill']):
        if x >= fr * tot and i >= 8 and f[0] > 0:
            s['fill'].insert(i, (0, fn))
            return
        x += f[0]
    s['end'].append(fn)
```

```python
from engine import *


class Gelu:
    def __init__(self, eng, W, sK, sM, tab=0, bf=False):
        self.bf = bf
        self.e, self.W, self.sK, self.sM, self.tab = eng, W, sK, sM, tab

    def need(self, *rs):
        if any(getattr(f, 'reg', None) == r.b for f in self.e.gq for r in rs):
            self.e.flush()

    def look(self, op, r):
        f = lambda: self.e.p.ds_read(op, r, r, self.tab)
        f.reg = r.b
        self.e.gq.append(f)
        if len(self.e.gq) >= self.e.imm:
            self.e.flush()

    def treg(self, k):
        n = len(self.W)
        return [self.W[n - 1 - 3 * k - j] for j in range(3)]

    def cvts(self, y, nD):
        p = self.e.p
        assert 2 * nD + 3 * (8 - nD) <= len(self.W)
        d = [(4, lambda i=i: p.valu("v_cvt_pkrtz_f16_f32", self.W[2 * i + 1], y[2 * i], y[2 * i + 1])) for i in range(nD)]
        return d + [(4, lambda i=i: p.valu("v_cvt_pk_f16_f32", self.treg(i - nD)[0], y[2 * i], y[2 * i + 1])) for i in range(nD, 8)]

    def front(self, nD, grp=2, stat=False):
        p, e = self.e.p, self.e
        R = [self.treg(k) for k in range(8 - nD)]
        a = [(4, lambda P=P, T=T: p.valu("v_pk_fma_f16", T, P, P, self.sK)) for P, T, E in R]
        a += [(4, lambda P=P, T=T: p.valu("v_pk_mul_f16", T, P, T)) for P, T, E in R]
        d = []
        for i0 in range(0, nD, grp):
            g = [(self.W[2 * i], self.W[2 * i + 1]) for i in range(i0, min(nD, i0 + grp))]
            d += [(4, lambda b=b: p.valu("v_and_b32", b, self.sM, b)) for a_, b in g]
            for a_, b in g:
                d.append((4, lambda a_=a_, b=b: (p.valu("v_lshrrev_b16", a_, 2, b) if e.o.get('b16', 1) else p.valu("v_bfe_u32", a_, b, 2, 14))))
                d.append((0, lambda a_=a_: self.look("ds_read_u16_d16_hi" if stat and self.bf else "ds_read_u16_d16", a_)))
            for a_, b in g:
                d.append((4, lambda b=b: p.valu("v_lshrrev_b32", b, 18, b)))
                d.append((0, lambda b=b: self.look("ds_read_u16_d16_hi", b)))
        return a, d

    def mid(self, nD):
        p = self.e.p
        R = [self.treg(k) for k in range(8 - nD)]
        a = [(8, lambda T=T, E=E: p.valu("v_exp_f16", E, T)) for P, T, E in R]
        a += [(8, lambda T=T, E=E: p.hi16("v_exp_f16", E, T)) for P, T, E in R]
        a += [(4, lambda E=E: p.valu("v_pk_add_f16", E, E, "1.0", mods="op_sel_hi:[1,0]")) for P, T, E in R]
        a += [(8, lambda T=T, E=E: p.valu("v_rcp_f16", T, E)) for P, T, E in R]
        a += [(8, lambda T=T, E=E: p.hi16("v_rcp_f16", T, E)) for P, T, E in R]
        return a

    def back_pack(self, G, nD):
        p = self.e.p
        a = [(4, lambda k=k: p.valu("v_pk_mul_f16", G[nD + k], self.treg(k)[0], self.treg(k)[1])) for k in range(8 - nD)]
        d = [(4, lambda i=i: (self.need(self.W[2 * i], self.W[2 * i + 1]), p.valu("v_or_b32", G[i], self.W[2 * i], self.W[2 * i + 1]))) for i in range(nD)]
        return a, d

    def back_stat(self, sq, sq2, nD, first, mix=False):
        p = self.e.p
        R = [self.treg(k) for k in range(8 - nD)]
        a = [(4, lambda P=P, T=T: p.valu("v_pk_mul_f16", P, P, T)) for P, T, E in R]
        st = {'f': first}

        def acc(r, h, one=False):
            c = 0 if st['f'] else sq
            st['f'] = False
            if one:
                p.valu("v_fma_mix_f32", sq, r, "1.0", c, mods=f"op_sel:[{h},0,0] op_sel_hi:[1,0,0]")
            else:
                p.valu("v_fma_mix_f32", sq, r, r, c, mods=f"op_sel:[{h},{h},0] op_sel_hi:[1,1,0]")
        if mix:
            a += [(4, lambda P=P, h=h: acc(P, h)) for P, T, E in R for h in range(2)]
        elif R:
            A = R[0][2]
            a += [(4, lambda k=k: p.valu("v_pk_fma_f16", A, R[k][0], R[k][0], A) if k else p.valu("v_pk_mul_f16", A, R[k][0], R[k][0])) for k in range(len(R))]
            a += [(4, lambda h=h: acc(A, h, True)) for h in range(2)]
        def accd(r):
            if st['f']:
                p.valu("v_mul_f32", sq, r, r)
            else:
                p.valu("v_fmac_f32", sq, r, r, rmw=True)
            st['f'] = False
        d = [(4, lambda i=i: (self.need(self.W[i]), accd(self.W[i]) if self.bf else acc(self.W[i], i % 2))) for i in range(2 * nD)]
        return a, d


def fix_flush(eng, fill, keep):
    return [(c, eng.flush if f == 'flush' else f) for c, f in fill if keep or f != 'flush']


def split_cost(stream, c):
    x = 0
    for k, (cc, *_) in enumerate(stream):
        if x >= c:
            return stream[:k], stream[k:]
        x += cc
    return stream, []


def regs(*vs):
    return [V(r) for v in vs for r in v.regs()]
```

```python
import math
import struct
import sys

from gelu import *

NAME = 'standalone__modern_conv_block_convnext_v2__vision_kernel'


def f2u(x):
    return struct.unpack('<I', struct.pack('<f', x))[0]


C2 = -2 * math.sqrt(2 / math.pi) * math.log2(math.e)
C1 = C2 * 0.044715
KH = 0x44EA
GK = 4.9140625
GA = C2 / GK
GC = C1 / GA ** 3

H0, H1 = 0x1F00, 0x3F00
BT0, BT1 = H0, H1
CNT = H1 + 128
E_ROW, E_FREE, E_W1, E_W1B, E_ROWA = 12, 16, 20, 24, 28
W1F = 16384
W2R = 90112
RP = 6656
DIAG = W2R + 10 * RP
TABO = 7168
LDS_BYTES = 163840
WS_TOT = 96 * 256 * 16
WS_STAMP = 1 << 20
WS_LN = 4 << 20
WS_BYTES = 80 << 20
OOB_V = 0x80000000
OOB_S = 0x40000000
X_BYTES = 512 * 512 * 96 * 2
ROWB = 512 * 192
REP = 8

sX, sOUT, sW1, sW2, sDW, sGA, sBE, sWS, sDBG = [S(4 + 4 * i, 4) for i in range(9)]
sWAVE, sX0, sY0, sT0, sT1, sT2, sT3 = [S(40 + i) for i in range(7)]
sK, sM = S(48), S(49)
sYB, sXM, sROWT = S(66), S(67), S(47)
sW1L, sW1G = S(77), S(3)
sTILE = [S(68 + i) for i in range(4)]
sPRIV = S(72)
sSTAMP = S(73)
sEX = S(74, 2)
sEV = sEX
sCNT = S(76)
sROLE = S(77)
sRET = S(78, 2)
sLNB, sW2B = S(80), S(82)
sLD = S(80, 16)
sTM = S(96, 2)
sRT = S(98, 2)


def ints(s):
    return [int(x) for x in str(s).split(',') if x not in ('', 'n')]


def flts(s):
    return [float(x) for x in str(s).split(',') if x not in ('', 'n')]


class Gen(Engine):
    def __init__(self, opt):
        super().__init__(opt)
        self.nstamp = 0
        self.ss = []
        self.mk = []
        self.nrow = self.nready = 0

    def stamp(self, tb):
        if not self.o.get('stamps'):
            self.nmk = getattr(self, 'nmk', 0) + 1
            if True:
                self.mark()
            return
        p = self.p
        t = V(tb, 4)
        p.raw(f"s_memtime {sTM}")
        p.raw(f"s_memrealtime {sRT}")
        p.raw("s_waitcnt lgkmcnt(0)")
        p.lgkm_done = p.lgkm_seq
        for i in range(4):
            p.valu("v_mov_b32", t.sub(i), S(sTM.b + i))
        p.raw("s_mov_b64 exec, 1")
        p.buf_store("buffer_store_dwordx4", t, self.vA[0], sWS, sSTAMP, 16 * self.nstamp)
        p.raw("s_mov_b64 exec, -1")
        p.nop(2)
        self.nstamp += 1

    def mark(self):
        if not self.o.get('dbg'):
            return
        p = self.p
        r = S((84, 86, 88, 90, 92, 94, 50, 52, 54, 56, 58, 60, 62, 64)[len(self.mk)], 2)
        self.mk.append(r)
        p.raw(f"s_memrealtime {r}")
        p.raw("s_waitcnt lgkmcnt(0)")
        p.lgkm_done = p.lgkm_seq

    def mark_flush(self):
        if not self.o.get('dbg'):
            return
        p = self.p
        p.raw("s_waitcnt vmcnt(0)")
        self.mark()
        p.salu("s_and_b32", sT0, S(2), 0x78)
        p.salu("s_and_b32", sT1, sWAVE, 3)
        p.salu("s_or_b32", sT0, sT0, sT1)
        p.salu("s_cmp_lg_u32", sT0, 0)
        p.raw("s_cbranch_scc1 Lend")
        p.raw("s_mov_b64 exec, 1")
        p.salu("s_not_b32", sT0, S(100))
        p.valu("v_mov_b32", V(96), sT0)
        p.raw(f"buffer_atomic_umax v96, {self.vA[0]}, {sDBG}, 0 offen offset:4")
        for k, r in enumerate(self.mk):
            p.valu("v_mov_b32", V(97 + k), r.sub(0))
            p.raw(f"buffer_atomic_umax v{97 + k}, {self.vA[0]}, {sDBG}, 0 offen offset:{8 + 4 * k}")

    def pad(self, where):
        t = self.o.get('x_' + where)
        if not t:
            return
        p = self.p
        p.raw("s_waitcnt vmcnt(0) lgkmcnt(0)")
        p.lines.append(f"Lpad{where}:")
        p.raw("s_sleep 2")
        p.raw("s_memrealtime s[98:99]")
        p.raw("s_waitcnt lgkmcnt(0)")
        p.salu("s_sub_u32", S(98), S(98), S(100))
        p.salu("s_cmp_lt_u32", S(98), t)
        p.raw(f"s_cbranch_scc1 Lpad{where}")
        p.lgkm_done, p.vm_done = p.lgkm_seq, p.vm_seq

    def sstamp(self, where='p2'):
        if not self.o.get('stamps') or self.o.get('fine', 'p2') != where:
            if where == 'p2':
                self.mark()
            return
        p = self.p
        k = len(self.ss)
        self.ss.append(S((50, 52, 54, 56, 58, 60, 84, 86, 88, 90, 92, 94)[k], 2))
        p.raw(f"s_memtime {self.ss[-1]}")
        p.raw("s_waitcnt lgkmcnt(0)")
        p.lgkm_done = p.lgkm_seq

    def sstamp_flush(self, tb):
        p = self.p
        t = V(tb, 4)
        if self.o.get('stamps'):
            for i in range(4):
                p.valu("v_mov_b32", t.sub(i), S(62 + i))
            p.raw("s_mov_b64 exec, 1")
            p.buf_store("buffer_store_dwordx4", t, self.vA[0], sWS, sSTAMP, 0)
            p.raw("s_mov_b64 exec, -1")
            p.nop(2)
            p.raw("s_getreg_b32 s100, hwreg(HW_REG_XCC_ID)")
            p.raw("s_getreg_b32 s101, hwreg(HW_REG_HW_ID)")
            self.ss.append(S(100, 2))
        for r in self.ss:
            p.valu("v_mov_b32", t.sub(0), r.sub(0))
            p.valu("v_mov_b32", t.sub(1), r.sub(1))
            p.valu("v_mov_b32", t.sub(2), sRT.sub(0))
            p.valu("v_mov_b32", t.sub(3), sRT.sub(1))
            p.raw("s_mov_b64 exec, 1")
            p.buf_store("buffer_store_dwordx4", t, self.vA[0], sWS, sSTAMP, 16 * self.nstamp)
            p.raw("s_mov_b64 exec, -1")
            p.nop(2)
            self.nstamp += 1

    def frag(self, byte, ring=None):
        return rd128(self.vA[byte >> 16], byte & 0xFFFF, ring)

    def srd(self, d, ptr, nbytes):
        p = self.p
        p.salu("s_mov_b32", d.sub(0), ptr.sub(0))
        p.salu("s_and_b32", d.sub(1), ptr.sub(1), 0xFFFF)
        p.salu("s_mov_b32", d.sub(2), nbytes)
        p.salu("s_mov_b32", d.sub(3), 0x20000)

    def row_off(self, dst, base, delta):
        p = self.p
        p.salu("s_add_i32", sT0, base, delta)
        p.salu("s_mul_i32", sT1, sT0, ROWB)
        p.salu("s_cmp_lt_u32", sT0, 512)
        p.salu("s_cselect_b32", dst, sT1, OOB_S)

    def lane_sum64(self, v, t):
        p = self.p
        for r in (8, 4, 2, 1):
            p.valu("v_add_f32_dpp", v, v, v, mods=f"row_ror:{r} row_mask:0xf bank_mask:0xf")
        p.valu("v_mov_b32", t, v)
        p.swap16(v, t)
        p.valu("v_add_f32", v, v, t)
        p.valu("v_mov_b32", t, v)
        p.swap32(v, t)
        p.valu("v_add_f32", v, v, t)

    def cond(self, cmp, a, b, label, body, skip_on=1):
        p = self.p
        p.salu(cmp, a, b)
        p.raw(f"s_cbranch_scc{skip_on} {label}")
        p.cond_begin()
        body()
        tok = p.cond_end()
        p.lines.append(f"{label}:")
        return tok

    def spin_guard(self, exit_label):
        p = self.p
        p.salu("s_cmp_eq_u32", sCNT, 0)
        p.salu("s_cbranch_scc1", exit_label)
        p.salu("s_sub_u32", sCNT, sCNT, 1)

    def lds_spin(self, a, t, off, target, tag):
        p = self.p
        p.valu("v_mov_b32", a, CNT)
        p._mem_issue([a.b], [t.b])
        p.lines.append(f"L{tag}w:")
        p.raw(f"ds_read_b32 {t}, {a} offset:{off}")
        p.raw("s_waitcnt lgkmcnt(0)")
        p.lgkm_done = p.lgkm_seq
        p.raw(f"v_readfirstlane_b32 {sT0}, {t}")
        self.spin_guard(f"L{tag}x")
        p.raw(f"s_cmp_lt_u32 {sT0}, {target}")
        p.raw(f"s_cbranch_scc0 L{tag}x")
        p.raw("s_sleep 2")
        p.raw(f"s_branch L{tag}w")
        p.lines.append(f"L{tag}x:")

    def signal(self, off):
        p = self.p
        p.raw("s_mov_b64 exec, 1")
        p.raw(f"ds_add_u32 {self.vCN}, {self.vONE} offset:{off}")
        p.raw("s_mov_b64 exec, -1")
        p.lgkm_seq += 1

    def ev_read(self, off):
        assert getattr(self, 'ev_open', None) is None
        self.ev_open = off
        self.p.ds_read("ds_read_b32", self.vEV, self.vCN, off)

    def ev_wait(self, off, target):
        p = self.p
        assert self.ev_open == off
        self.ev_open = None
        self.nev = getattr(self, 'nev', 0) + 1
        tag = f"Lev{self.nev}"
        p.valu("v_readfirstlane_b32", sT0, self.vEV)

        def slow():
            p.lines.append(f"{tag}w:")
            p.raw("s_sleep 1")
            p.raw(f"ds_read_b32 {self.vEV}, {self.vCN} offset:{off}")
            p.raw("s_waitcnt lgkmcnt(0)")
            p.raw(f"v_readfirstlane_b32 {sT0}, {self.vEV}")
            self.spin_guard(tag)
            p.raw(f"s_cmp_lt_u32 {sT0}, {target}")
            p.raw(f"s_cbranch_scc1 {tag}w")
        self.cond("s_cmp_ge_u32", sT0, target, tag, slow)

    def alloc(self):
        o = self.o
        self.S3 = [V(8 * i, 8) for i in range(12)]
        self.CA = V(0, 48)
        self.LN = [V(48, 24), V(72, 24), V(96, 24), V(168, 24)]
        self.Y = V(120, 16)
        self.W = regs(V(136, 20))
        self.SQ = [V(156 + i) for i in range(12)]
        self.ls = [V(168, 2), V(170, 2), V(172, 2)]
        self.rb = [V(192 + 4 * i, 4) for i in range(o.get('nrb', 6))]
        self.D0 = V(192, 16)
        self.A0 = [V(48 + 4 * i, 4) for i in range(18)]
        self.idf = [V(240, 4), V(244, 4)]
        self.ring2 = [V(224 + 4 * i, 4) for i in range(4)]
        self.ring1 = self.ring2 + [V(216, 4), V(220, 4)]
        self.vX, self.vL = V(240), V(241)
        self.vB = [V(242), V(243), V(244)]
        self.vC = [V(245), V(246)]
        self.tq = [V(247), V(252), V(253), V(254), V(255)]
        self.vCN, self.vONE, self.vEV = V(253), V(254), V(247)
        self.vA = [V(248), V(249), V(250)]
        self.vLane = V(251)
        self.vG, self.vR, self.vBias = V(252), V(253), V(254)
        self.g7 = 1 if o.get('g7', 0 if o.get('hs') else 2) else 0
        self.kl = o.get('kl', 0 if o.get('hs') else 2)
        keep, dst = [V(208, 8), V(216, 8)], [V(168 + 8 * k, 8) for k in range(5)] + [V(240, 8)] * self.g7 + [V(232, 8)]
        if o.get('g7', 0 if o.get('hs') else 2) == 2:
            keep.insert(0, self.S3[11])
            self.S3[11] = dst.pop(0)
        self.KL, keep = keep[:self.kl], keep[self.kl:]
        self.nk = len(keep)
        self.JG = list(range(12 - self.nk - len(dst), 12 - self.nk))
        self.J2 = self.JG + list(range(12 - self.nk, 12))
        self.S2 = dict(zip(self.J2, dst + keep))
        self.vTAB = V(255)
        self.ge = Gelu(self, self.W, sK, sM, 0)
        self.po = ints(o.get('po', '0,2,4,1,3,5'))
        self.vO = V(255)
        self.fsh = 18 if o.get('smap', 0) else 21

    def rows_dma(self, rows):
        p = self.p
        for r in rows:
            p.salu("s_add_u32", "m0", sXM, ((r + 1) % 10) * RP)
            if r > 0:
                p.salu("s_add_u32", sT2, sYB, r * ROWB)
            p.dma(self.vX, sX, sT3 if r < 0 else (sT2 if r else sYB), flags='nt' if r < self.o.get('ntrows', 9) else '')

    def row_dma_fast(self, r):
        p = self.p
        p.salu("s_add_u32", "m0", sXM, ((r + 1) % 10) * RP)
        p.salu("s_add_u32", sYB, sYB, ROWB)
        self.nrow += 1
        self.x_tok = p.dma(self.vX, sX, sYB, flags='nt' if r < self.o.get('ntrows', 9) else '')

    def gelu_table(self, tid):
        p = self.p
        y = [V(0 + i) for i in range(8)]
        t = [V(8 + i) for i in range(8)]
        r = [V(16 + i) for i in range(8)]
        a, b = V(24), V(25)
        pn, pp = V(28, 4), V(32, 4)
        p.valu("v_lshlrev_b32", a, 6, tid)
        p.salu("s_mov_b32", sT0, f2u(GC))
        p.valu("v_mov_b32", b, f2u(GK))
        for i in range(8):
            p.valu("v_add_u32", y[i], 0x8004 + 8 * i, a)
        for i in range(8):
            p.valu("v_cvt_f32_f16", y[i], y[i])
        for i in range(8):
            p.valu("v_mul_f32", t[i], y[i], y[i])
        for i in range(8):
            p.valu("v_fma_f32", t[i], t[i], sT0, b)
        for i in range(8):
            p.valu("v_mul_f32", t[i], y[i], t[i])
        for i in range(8):
            p.valu("v_exp_f32", t[i], t[i])
        for i in range(8):
            p.valu("v_add_f32", r[i], "1.0", t[i])
        for i in range(8):
            p.valu("v_rcp_f32", r[i], r[i])
        for i in range(8):
            p.valu("v_mul_f32", y[i], y[i], r[i])
        for i in range(8):
            p.valu("v_mul_f32", t[i], t[i], y[i])
        for i in range(4):
            p.valu("v_cvt_pk_f16_f32", pn.sub(i), y[2 * i], y[2 * i + 1])
            p.valu("v_cvt_pk_f16_f32", pp.sub(i), f"-{t[2 * i]}", f"-{t[2 * i + 1]}")
        tb = self.o.get('tbits', 0)
        for r_ in (regs(pn, pp) if tb else []):
            p.valu("v_add_u32", r_, (1 << (tb - 1)) * 0x10001, r_)
            p.valu("v_and_b32", r_, (0xFFFF & ~((1 << tb) - 1)) * 0x10001, r_)
        p.valu("v_lshlrev_b32", a, 4, tid)
        p.valu("v_mov_b32", b, LDS_BYTES)
        p.salu("s_movk_i32", sT0, 496)
        p.valu("v_cmp_gt_u32", "vcc", sT0, tid)
        p.valu("v_cndmask_b32", a, b, a, "vcc")
        p.ds_write("ds_write_b128", a, pp)
        p.ds_write("ds_write_b128", a, pn, 8192)

    def prologue(self):
        p, o = self.p, self.o
        p.salu("s_cmp_ge_u32", S(2), 256)
        p.raw("s_cbranch_scc1 Lend")
        p.raw(f"s_load_dwordx16 {sLD}, s[0:1], 0")
        p.raw(f"s_load_dwordx2 {sTM}, s[0:1], 64")
        if o.get('dbg') or any(k.startswith('x_pad') for k in o):
            p.raw("s_memrealtime s[100:101]")
        if o.get('stamps'):
            p.raw("s_memtime s[62:63]")
            p.raw("s_memrealtime s[64:65]")
        lane = self.vLane
        tid = V(199)
        t = [V(120 + i) for i in range(40)]
        if o.get('pf0', 1):
            p.raw(f"s_getpc_b64 {sEX}")
            p.lines.append("Lpc0:")
            p.raw(f"s_sub_u32 {sEX.sub(0)}, {sEX.sub(0)}, Lpc0-Lmain")
            p.raw(f"s_subb_u32 {sEX.sub(1)}, {sEX.sub(1)}, 0")
            p.valu("v_lshlrev_b32", t[39], 7, V(0))
            p.salu("s_movk_i32", sT0, o.get('pf0n', 64))
            p.valu("v_cmp_gt_u32", "vcc", sT0, V(0))
            p.raw(f"s_and_saveexec_b64 {sRET}, vcc")
            p.raw("s_cbranch_execz Lpf0x")
            p.raw(f"global_load_dword {self.tq[4]}, {t[39]}, {sEX}")
            p.lines.append("Lpf0x:")
            p.raw(f"s_mov_b64 exec, {sRET}")
        p.valu("v_mov_b32", tid, V(0))
        p.valu("v_and_b32", lane, 63, V(0))
        p.valu("v_lshrrev_b32", t[0], 6, V(0))
        p.valu("v_readfirstlane_b32", sWAVE, t[0])
        mw = o.get('mw', 4)
        p.salu("s_and_b32", sT0, S(2), 7)
        p.salu("s_lshr_b32", sT1, S(2), 3)
        p.salu("s_and_b32", sX0, sT0, (16 >> mw) - 1)
        p.salu("s_lshl_b32", sX0, sX0, mw)
        p.salu("s_and_b32", sT2, sT1, (1 << mw) - 1)
        p.salu("s_add_u32", sX0, sX0, sT2)
        p.salu("s_lshr_b32", sY0, sT0, 4 - mw)
        p.salu("s_lshl_b32", sY0, sY0, 5 - mw)
        p.salu("s_lshr_b32", sT2, sT1, mw)
        p.salu("s_add_u32", sY0, sY0, sT2)
        p.salu("s_lshl_b32", sX0, sX0, 5)
        p.salu("s_lshl_b32", sY0, sY0, 5)
        p.salu("s_lshl_b32", sXM, sWAVE, 6)
        p.salu("s_cmp_eq_u32", sWAVE, 6)
        p.salu("s_cselect_b32", sXM, 352, sXM)
        p.valu("v_add_u32", t[5], sXM, lane)
        p.valu("v_mul_u32_u24", t[1], 5462, t[5])
        p.valu("v_lshrrev_b32", t[1], 16, t[1])
        p.valu("v_mul_u32_u24", t[2], 12, t[1])
        p.valu("v_sub_u32", t[2], t[5], t[2])
        p.valu("v_bfe_u32", t[3], t[1], 2, 2)
        p.valu("v_xor_b32", t[2], t[2], t[3])
        p.valu("v_add_u32", t[3], sX0, t[1])
        p.valu("v_subrev_u32", t[3], 1, t[3])
        p.valu("v_mul_u32_u24", t[4], 192, t[3])
        p.valu("v_lshl_add_u32", t[4], t[2], 4, t[4])
        p.valu("v_mov_b32", self.vX, OOB_V)
        p.salu("s_movk_i32", sT0, 512)
        p.valu("v_cmp_gt_u32", "vcc", sT0, t[3])
        p.valu("v_cndmask_b32", t[4], self.vX, t[4], "vcc")
        p.valu("v_cmp_gt_u32", "vcc", 34, t[1])
        p.valu("v_cndmask_b32", self.vX, self.vX, t[4], "vcc")
        self.row_off(sT3, sY0, -1)
        p.salu("s_mul_i32", sYB, sY0, ROWB)
        p.salu("s_mov_b32", sX.sub(2), X_BYTES)
        p.salu("s_mov_b32", sX.sub(3), 0x20000)
        p.salu("s_lshl_b32", sXM, sXM, 4)
        p.salu("s_add_u32", sXM, sXM, W2R)
        p.salu("s_cmp_eq_u32", sWAVE, 7)
        p.salu("s_cselect_b32", sXM, LDS_BYTES, sXM)
        dv, di, ad = t[6:10], t[32:36], t[36:40]
        p.valu("v_lshlrev_b32", t[10], 1, tid)
        p.valu("v_add_u32", di[3], 768, tid)
        p.valu("v_min_u32", di[3], 863, di[3])
        p.valu("v_lshlrev_b32", t[11], 1, di[3])
        p.raw("s_waitcnt lgkmcnt(0)")
        self.sstamp('s0')
        p.salu("s_mov_b32", sX.sub(0), sLD.sub(0))
        p.salu("s_and_b32", sX.sub(1), sLD.sub(1), 0xFFFF)

        def dw_loads():
            self.srd(sDW, sLD.sub(2, 2), 1728)
            for r in range(4):
                p.raw(f"buffer_load_ushort {dv[r]}, {t[10 + r // 3]}, {sDW}, 0 offen offset:{512 * (r % 3)}")
        self.cond("s_cmp_ge_u32", sWAVE, 4, "Lnodw", dw_loads)
        self.cond("s_cmp_eq_u32", sWAVE, 7, "Lskipx0", lambda: self.rows_dma(range(-1, 5)))
        self.sstamp('s0')
        self.srd(sW1, sLD.sub(4, 2), 73728)
        if o.get('pw1', 0):
            def pw1():
                p.salu("s_lshr_b32", sT0, S(2), 3)
                p.salu("s_mul_i32", sT0, sT0, 18 * 128)
                p.valu("v_min_u32", t[5], 17, lane)
                p.valu("v_lshlrev_b32", t[5], 7, t[5])
                p.raw(f"buffer_load_dword {self.tq[4]}, {t[5]}, {sW1}, {sT0} offen")
            self.cond("s_cmp_lg_u32", sWAVE, 7, "Lnopw1", pw1)
        if o.get('pf', 1) == 2:
            self.code_prefetch()
        p.valu("v_lshrrev_b32", self.vW1g, 2, lane)
        p.valu("v_mul_u32_u24", self.vW1g, 768, self.vW1g)
        p.valu("v_and_b32", t[5], 3, lane)
        p.valu("v_lshl_add_u32", self.vW1g, t[5], 4, self.vW1g)
        p.salu("s_and_b32", sT0, sWAVE, 3)
        p.salu("s_lshl_b32", sW1G, sT0, 6)
        p.salu("s_mul_i32", sW1L, sT0, 6144)
        p.salu("s_add_u32", sW1L, sW1L, W1F)
        p.valu("v_mov_b32", self.vCN, CNT)
        p.valu("v_mov_b32", self.vONE, 1)

        tok_a = p.vm_seq
        p.salu("s_add_u32", sT0, sY0, sWAVE)
        p.salu("s_add_u32", sT0, sT0, 1)
        p.salu("s_lshl_b32", sT0, sT0, 9)
        p.salu("s_add_u32", sT0, sT0, sX0)
        p.salu("s_mul_i32", sROWT, sT0, 192)
        p.salu("s_sub_u32", sROWT, sROWT, 256)
        p.salu("s_and_b32", sT0, sWAVE, 1)
        p.salu("s_lshl_b32", sT3, sT0, 4)
        p.salu("s_add_u32", sX0, sX0, sT3)
        p.salu("s_and_b32", sT0, sWAVE, 6)
        p.salu("s_add_u32", sY0, sY0, sT0)
        p.salu("s_mul_i32", sT2, sT0, RP)
        p.salu("s_add_u32", sT2, sT2, W2R)
        m, g = t[11], t[12]
        p.valu("v_and_b32", m, 15, lane)
        p.valu("v_lshrrev_b32", g, 4, lane)
        p.valu("v_mul_u32_u24", t[2], RP, g)
        p.valu("v_add_u32", t[2], sT2, t[2])
        p.valu("v_add_u32", t[1], sT3, m)
        for dx in range(3):
            if dx:
                p.valu("v_add_u32", t[1], 1, t[1])
            p.valu("v_mul_u32_u24", t[3], 192, t[1])
            p.valu("v_bfe_u32", t[4], t[1], 2, 2)
            p.valu("v_lshl_add_u32", t[3], t[4], 4, t[3])
            p.valu("v_add_u32", self.vB[dx], t[2], t[3])
        p.salu("s_mul_i32", sPRIV, sWAVE, 9216)
        p.salu("s_add_u32", sPRIV, sPRIV, W2R)
        p.valu("v_bfe_u32", t[13], m, 2, 1)
        p.valu("v_sub_u32", t[13], g, t[13])
        p.valu("v_lshrrev_b32", t[14], 3, m)
        p.valu("v_and_b32", t[15], 3, m)
        p.valu("v_lshl_add_u32", t[15], t[14], 2, t[15])
        p.valu("v_lshlrev_b32", t[16], 7, t[13])
        p.valu("v_lshl_add_u32", t[16], t[15], 4, t[16])
        p.valu("v_add_u32", t[16], DIAG, t[16])
        p.valu("v_mov_b32", t[15], LDS_BYTES)
        p.valu("v_cmp_gt_u32", "vcc", 3, t[13])
        p.valu("v_cndmask_b32", self.vC[0], t[15], t[16], "vcc")
        p.valu("v_and_b32", t[15], 3, m)
        p.valu("v_mul_u32_u24", self.vC[1], 0x55, t[15])
        self.srd(sW2, sLD.sub(6, 2), 73728)
        self.srd(sGA, sLD.sub(8, 2), 768)
        self.srd(sBE, sLD.sub(10, 2), 768)
        self.srd(sOUT, sLD.sub(12, 2), X_BYTES)
        self.srd(sDBG, sLD.sub(14, 2), 256)
        self.srd(sWS, sTM, WS_BYTES)
        p.valu("v_lshlrev_b32", self.vL, 4, lane)
        p.valu("v_and_b32", t[13], 0x23, lane)
        p.valu("v_bfe_u32", t[14], lane, 2, 2)
        p.valu("v_lshl_add_u32", t[13], t[14], 3, t[13])
        p.valu("v_bfe_u32", t[14], lane, 4, 1)
        p.valu("v_lshl_add_u32", t[13], t[14], 2, t[13])
        p.valu("v_lshlrev_b32", self.vA[0], 4, t[13])
        p.valu("v_add_u32", self.vA[1], 0x10000, self.vA[0])
        p.valu("v_add_u32", self.vA[2], 0x20000, self.vA[0])
        p.salu("s_lshl_b32", sSTAMP, S(2), 3)
        p.salu("s_add_u32", sSTAMP, sSTAMP, sWAVE)
        if o.get('smap', 0):
            p.salu("s_and_b32", sT0, S(2), 7)
            p.salu("s_mul_i32", sT0, sT0, 3 << 10)
            p.salu("s_and_b32", sT1, S(2), 0xF8)
            p.salu("s_add_u32", sT0, sT0, sT1)
            p.salu("s_add_u32", sLNB, sT0, sWAVE)
            p.salu("s_lshl_b32", sLNB, sLNB, 10)
        elif o.get('rot', 0):
            p.salu("s_lshr_b32", sT0, S(2), 5)
            p.salu("s_add_u32", sT0, sT0, S(2))
            p.salu("s_and_b32", sT0, sT0, 7)
            p.salu("s_and_b32", sT1, S(2), 0xF8)
            p.salu("s_or_b32", sT0, sT0, sT1)
            p.salu("s_lshl_b32", sT0, sT0, 3)
            p.salu("s_add_u32", sLNB, sT0, sWAVE)
            p.salu("s_lshl_b32", sLNB, sLNB, 10)
        else:
            p.salu("s_lshl_b32", sLNB, sSTAMP, 10)
        p.salu("s_add_u32", sLNB, sLNB, WS_LN)
        p.salu("s_mul_i32", sSTAMP, sSTAMP, 16 * o.get('stamps', 1))
        p.salu("s_add_u32", sSTAMP, sSTAMP, WS_STAMP)
        p.salu("s_mul_i32", sT3, sX0, 192)
        for ti in range(4):
            p.salu("s_add_u32", sT0, sY0, 8 * ti)
            p.salu("s_mul_i32", sT0, sT0, ROWB)
            p.salu("s_add_u32", sTILE[ti], sT0, sT3)
        p.salu("s_mul_i32", sW2B, sWAVE, 9216)
        p.salu("s_mov_b32", sK, KH * 0x10001)
        p.salu("s_mov_b32", sM, 0xFFF8FFF8)
        p.salu("s_mov_b32", sCNT, 400000)
        p.valu("v_lshrrev_b32", t[28], 5, lane)
        p.valu("v_lshlrev_b32", self.vW1r, 8, t[28])
        for sh, w, up in ((2, 2, 6), (4, 1, 5), (0, 1, 4), (1, 1, 3)):
            p.valu("v_bfe_u32", t[28], lane, sh, w)
            p.valu("v_lshl_add_u32", self.vW1r, t[28], up, self.vW1r)
        p.valu("v_add_u32", self.vW1r, sW1L, self.vW1r)
        p.valu("v_add_u32", self.vW1w, sW1L, self.vA[0])
        later = p.vm_seq - tok_a
        self.sstamp('s0')

        def young():
            self.gelu_table(tid)

        def old():
            for r in range(4):
                if r < 3:
                    p.valu("v_add_u32", di[r], 256 * r, tid)
                p.valu("v_mul_u32_u24", t[20], 683, di[r])
                p.valu("v_lshrrev_b32", t[20], 16, t[20])
                p.valu("v_mul_u32_u24", t[22], 11, t[20])
                p.valu("v_lshrrev_b32", t[22], 5, t[22])
                p.valu("v_lshrrev_b32", t[23], 5, di[r])
                p.valu("v_bfe_u32", t[21], di[r], 3, 2)
                p.valu("v_bfe_u32", t[24], di[r], 4, 1)
                p.valu("v_xor_b32", t[21], t[21], t[24])
                p.valu("v_sub_u32", t[21], t[21], t[22])
                p.valu("v_mul_i32_i24", t[21], 9, t[21])
                p.valu("v_add_u32", t[23], t[23], t[21])
                p.valu("v_lshrrev_b32", t[21], 1, t[23])
                p.valu("v_mul_u32_u24", t[21], 384 - 16, t[21])
                p.valu("v_lshl_add_u32", t[23], t[23], 3, t[21])
                p.valu("v_lshl_add_u32", t[23], t[22], 7, t[23])
                p.valu("v_and_b32", t[24], 7, di[r])
                p.valu("v_lshl_add_u32", t[23], t[24], 4, t[23])
                p.valu("v_add_u32", ad[r], DIAG, t[23])
            z = V(160, 4)
            for i in range(4):
                p.valu("v_mov_b32", z.sub(i), 0)
            p.raw("s_mov_b64 exec, 1")
            p.ds_write("ds_write_b128", self.vCN, z)
            p.ds_write("ds_write_b128", self.vCN, z, 16)
            p.raw("s_mov_b64 exec, -1")
            p.raw(f"s_waitcnt vmcnt({6 + later})")
            for r in range(4):
                ch = V(164 + 2 * r, 2)
                p.valu("v_and_b32", t[10], 4, di[r])
                p.valu("v_cmp_eq_u32", "vcc", 0, t[10])
                p.valu("v_cndmask_b32", ch.sub(0), 0, dv[r], "vcc")
                p.valu("v_sub_u32", ch.sub(1), dv[r], ch.sub(0))
                p.ds_write("ds_write_b64", ad[r], ch)
            p.raw("s_waitcnt lgkmcnt(0)")
        self.cond("s_cmp_lt_u32", sWAVE, 4, "Lnoy", young)
        self.cond("s_cmp_ge_u32", sWAVE, 4, "Lnoo", old)
        self.sstamp('s0')
        p.barrier()
        self.sstamp('s0')

        def young2():
            p.valu("v_subrev_u32", tid, 256, tid)
            self.gelu_table(tid)
        self.cond("s_cmp_lt_u32", sWAVE, 4, "Lnoy2", young2)
        self.sstamp('s0')
        p.vm_done = p.vm_seq
        self.nstamp += 4

    def w1_dma(self, u):
        p = self.p
        g, x = divmod(u, 6)
        p.salu("s_add_u32", "m0", sW1L, g * 24576 + x * 1024)
        p.salu("s_add_u32", sT0, sW1G, (2 * (x % 3) + x // 3) * 12288 + g * 256)
        return p.dma(self.vW1g, sW1, sT0)

    def sentinels(self):
        p, lane = self.p, self.vLane
        t = [V(100 + i) for i in range(16)]
        sv = V(104, 4)

        def bias():
            p.salu("s_lshl_b32", sT1, sT0, 1)
            p.valu("v_mul_u32_u24", t[0], 192, lane)
            p.valu("v_lshlrev_b32", t[1], 1, lane)
            for i in range(6):
                p.salu("s_add_u32", sT2, sT1, 64 * 192 * i)
                p.raw(f"buffer_load_ushort {t[2 + i]}, {t[0]}, {sW2}, {sT2} offen")
                p.raw(f"buffer_load_ushort {t[8 + i]}, {t[1]}, {sBE}, 0 offen offset:{128 * i}")

        def body():
            for i in range(4):
                p.valu("v_mov_b32", sv.sub(i), -1)
            p.valu("v_lshlrev_b32", t[0], 12, lane)
            p.valu("v_add_u32", t[1], 64 * 4096, t[0])
            p.valu("v_cmp_gt_u32", "vcc", 32, lane)
            p.valu("v_mov_b32", t[2], OOB_V)
            p.valu("v_cndmask_b32", t[1], t[2], t[1], "vcc")
            p.salu("s_lshl_b32", sT0, S(2), 4)
            p.raw(f"buffer_store_dwordx4 {sv}, {t[0]}, {sWS}, {sT0} offen sc1")
            p.raw(f"buffer_store_dwordx4 {sv}, {t[1]}, {sWS}, {sT0} offen sc1")
            p.salu("s_add_u32", sT0, sT0, WS_TOT)
            p.salu("s_cmp_lt_u32", S(2), 96)
            p.salu("s_cselect_b32", sT0, sT0, OOB_S)
            p.valu("v_lshlrev_b32", t[2], 11, lane)
            p.raw(f"s_mov_b64 exec, {hex((1 << REP) - 1)}")
            p.raw(f"buffer_store_dwordx4 {sv}, {t[2]}, {sWS}, {sT0} offen sc1")
            p.raw("s_mov_b64 exec, -1")
            p.salu("s_sub_u32", sT0, S(2), 96)
            p.salu("s_cmp_lt_u32", sT0, 96)
            p.raw("s_cbranch_scc0 Lnobias")
            bias()
            p.lines.append("Lnobias:")
            p.nop(2)
        self.cond("s_cmp_lg_u32", sWAVE, 7, "Lnosent", body)
        self.sent_tok = p.vm_seq

    def code_prefetch(self):
        p, lane = self.p, self.vLane
        t = [V(100 + i) for i in range(16)]

        def body():
            p.raw(f"s_getpc_b64 {sEX}")
            p.lines.append("Lpc:")
            p.salu("s_lshr_b32", sT0, S(2), 3)
            p.salu("s_and_b32", sT0, sT0, 15)
            p.salu("s_lshl_b32", sT0, sT0, 13)
            p.valu("v_lshlrev_b32", t[2], 7, lane)
            p.valu("v_add_u32", t[2], sT0, t[2])
            p.valu("v_min_u32", t[2], "Lend-Lpc", t[2])
            if self.o.get('pf', 1):
                p.raw(f"global_load_dword {self.tq[4]}, {t[2]}, {sEX}")
        self.cond("s_cmp_lg_u32", sWAVE, 7, "Lnopf", body)

    def code_again(self, a, tag):
        p = self.p

        def body():
            p.raw(f"s_getpc_b64 {sTM}")
            p.lines.append(f"Lcq{tag}:")
            p.salu("s_lshr_b32", sT0, S(2), 3)
            p.salu("s_and_b32", sT0, sT0, self.o.get('cam', 15))
            p.salu("s_mul_i32", sT0, sT0, 3072)
            p.valu("v_lshl_add_u32", a, self.vLane, 7, sT0)
            p.valu("v_min_u32", a, f"Lend-Lcq{tag}", a)
            p.salu("s_mov_b32", "m0", CNT + 32)
            p.raw("s_mov_b64 exec, 0xffffff")
            p.raw(f"global_load_lds_dword {a}, {sTM}")
            p.raw("s_mov_b64 exec, -1")
            p.vm_seq += 1
        self.cond("s_cmp_lg_u32", sWAVE, self.o.get('caw', 7), f"Lcp{tag}", body)

    def bias_finish(self):
        p = self.p
        t = [V(100 + i) for i in range(16)]

        def body():
            p.salu("s_sub_u32", sT0, S(2), 96)
            p.salu("s_cmp_lt_u32", sT0, 96)
            p.raw("s_cbranch_scc0 Lnobias2")
            p.raw(f"s_waitcnt vmcnt({p.vm_seq - self.sent_tok})")
            for i in range(12):
                p.valu("v_lshlrev_b32", t[2 + i], 16, t[2 + i])
            p.valu("v_mul_f32", t[0], t[2], t[8])
            for i in range(1, 6):
                p.valu("v_fmac_f32", t[0], t[2 + i], t[8 + i], rmw=True)
            self.lane_sum64(t[0], t[1])
            p.salu("s_lshl_b32", sT1, sT0, 2)
            p.salu("s_add_u32", sT1, sT1, WS_TOT + 1536)
            p.valu("v_lshlrev_b32", t[15], 11, self.vLane)
            p.raw(f"s_mov_b64 exec, {hex((1 << REP) - 1)}")
            p.raw(f"buffer_store_dword {t[0]}, {t[15]}, {sWS}, {sT1} offen sc1")
            p.raw("s_mov_b64 exec, -1")
        self.cond("s_cmp_lg_u32", sWAVE, 7, "Lnobias2", body)
        self.sent_tok = p.vm_seq

    def init_counter(self):
        p = self.p

        def body():
            p.raw(f"s_waitcnt vmcnt({p.vm_seq - self.sent_tok})")
            p.raw(f"v_mov_b32 {self.tq[4]}, 1")
            p.raw("s_mov_b64 exec, 1")
            p.raw(f"buffer_atomic_add {self.tq[4]}, {self.vL}, {sDBG}, 0 offen")
            p.raw("s_mov_b64 exec, -1")
        self.cond("s_cmp_lg_u32", sWAVE, 7, "Lnoinit", body)

    def ln_stats(self):
        p, C, ls = self.p, self.CA, self.ls
        s2, q2 = ls[0], ls[1]
        ops = [lambda: p.valu("v_pk_add_f32", s2, C.sub(0, 2), C.sub(2, 2)),
               lambda: p.valu("v_pk_mul_f32", q2, C.sub(0, 2), C.sub(0, 2))]
        for i in range(1, 24):
            if i >= 2:
                ops.append(lambda i=i: p.valu("v_pk_add_f32", s2, s2, C.sub(2 * i, 2)))
            ops.append(lambda i=i: p.valu("v_pk_fma_f32", q2, C.sub(2 * i, 2), C.sub(2 * i, 2), q2))
        return ops

    def ln_stats_plain(self, rs):
        p, ls = self.p, self.ls
        C = [self.CA.sub(r) for r in rs]
        ops = []
        for i in range(48):
            s_, q_ = ls[0].sub(i % 2), ls[1].sub(i % 2)
            if i < 2:
                ops.append((4, lambda i=i, q_=q_: p.valu("v_mul_f32", q_, C[i], C[i])))
            else:
                ops.append((4, lambda i=i, s_=s_: p.valu("v_add_f32", s_, C[i - 2] if i < 4 else s_, C[i])))
                ops.append((4, lambda i=i, q_=q_: p.valu("v_fmac_f32", q_, C[i], C[i], rmw=True)))
        return ops

    def ln_scalar(self):
        p, ls = self.p, self.ls
        s, s1, q, q1, rs, off = [ls[i // 2].sub(i % 2) for i in range(6)]
        return [
            (4, lambda: p.valu("v_add_f32", s, s, s1)),
            (4, lambda: p.valu("v_add_f32", q, q, q1)),
            (4, lambda: p.swap32(s, q)),
            (4, lambda: p.valu("v_add_f32", s, s, q)),
            (4, lambda: p.valu("v_mul_f32", s, f2u(1.0 / 96), s)),
            (4, lambda: p.valu("v_mov_b32", q, s)),
            (4, lambda: p.swap32(s, q)),
            (4, lambda: p.valu("v_fma_f32", q, f"-{s}", s, q)),
            (4, lambda: p.valu("v_max_f32", q, 0, q)),
            (4, lambda: p.valu("v_add_f32", q, f2u(1e-5), q)),
            (8, lambda: p.valu("v_rsq_f32", q, q)),
            (4, lambda: p.valu("v_mul_f32", rs, f2u(GA), q)),
            (4, lambda: p.valu("v_mul_f32", off, s, rs)),
        ]

    def ln_norm(self):
        p, C, ro = self.p, self.CA, self.ls[2]
        return [lambda i=i: p.valu("v_pk_fma_f32", C.sub(2 * i, 2), C.sub(2 * i, 2), ro, ro,
                                   mods="op_sel:[0,0,1] op_sel_hi:[1,0,1] neg_lo:[0,0,1] neg_hi:[0,0,1]")
                for i in range(24)]

    def ln_pack(self, t):
        p, C = self.p, self.CA
        return [(4, lambda i=i: p.valu("v_cvt_pk_bf16_f32", self.LN[t].sub(i), C.sub(2 * i), C.sub(2 * i + 1)))
                for i in range(24)]

    def conv_items(self, ti, gate=None):
        p = self.p
        seq = [(cl, dx, cq) for cl in (0, 1, 3, 2) for dx in range(3) for cq in range(3)]
        state = [2 * (ti % 2)] * 3
        items = [dict(reads=[rd128(self.vA[2], 0xFFF0)], w=0.5,
                      emit=[(lambda z, k=k: p.mfma(self.CA.sub(16 * k, 16), z, z, 0)) for k in range(3)])]
        for pr in (range(18) if ti % 2 == 0 else range(17, -1, -1)):
            reads, em = [rd128(self.vC[0], pr * 384)], []
            for k, h in enumerate((0, 1) if ti % 2 == 0 else (1, 0)):
                cl, dx, cq = seq[2 * pr + h]
                hook = None
                if state[dx] != cl:
                    hook = (lambda dx=dx, d=16 * (cl ^ state[dx]): p.valu("v_xor_b32", self.vB[dx], d, self.vB[dx]))
                    state[dx] = cl
                rb_ = rd128(self.vB[dx], 64 * cq, self.rb, hook)
                rb_['after'] = gate
                reads.append(rb_)
                acc = self.CA.sub(4 * (4 * cq + cl), 4)
                em.append(lambda a, *b, acc=acc, h=h, k=k: p.smfmac(acc, a.sub(2 * h, 2), b[k], self.vC[1]))
            items.append(dict(reads=reads, w=self.o.get('cw', 0.5), emit=em))
        return items

    def gemm1_32(self, j, ln, pixel_lane, need):
        p, y = self.p, self.Y
        items = []
        for s6 in range(6):
            b = ln.sub(4 * s6, 4)
            if pixel_lane:
                e = (lambda w, b=b, s6=s6: p.mfma(y, w, b, y if s6 else 0))
            else:
                e = (lambda w, b=b, s6=s6: p.mfma(y, b, w, y if s6 else 0))
            items.append(dict(reads=[self.frag(W1F + (j * 6 + 3 * (s6 & 1) + (s6 >> 1)) * 1024)], emit=e, need=need))
        return items

    def period_fill(self, y, n, G=None, sq=None, first=False, tag=None, ph=1, fl=False):
        o, ge = self.o, self.ge
        a, d = ge.front(n, o.get('grp', 2), G is None)
        if fl:
            d = d[:len(d) // 2] + [(0, self.flush)] + d[len(d) // 2:] + [(0, self.flush)]
        t0, t1 = split_cost(a + ge.mid(n), o.get(f'ds{ph}', 96 if ph == 1 else 64))
        if G is not None:
            ba, bd = ge.back_pack(G, n)
            if tag:
                ba, bd = [x + (tag,) for x in ba], [x + (tag,) for x in bd]
            t1a, t1b = split_cost(t1, sum(x[0] for x in t1) - o.get(f'de{ph}', 32 if ph == 1 else 16))
            return ge.cvts(y, n) + merge(t0, d) + t1a + merge(t1b, bd) + ba
        ba, bd = ge.back_stat(sq, None, n, first, o.get('mix', 1))
        tl = t1 + ba
        t1a, t1b = split_cost(tl, sum(x[0] for x in tl) - o.get('des', 64))
        return ge.cvts(y, n) + merge(t0, d) + t1a + merge(t1b, bd)

    def period_def(self, W, y, n, G, par, late, now=False, ph=1):
        o = self.o
        assert n == 5 and len(W) >= 19
        lo = W[5 * par:5 * par + 5]
        ge = Gelu(self, [r for i in range(n) for r in (lo[i], G[i])] + W[10:], sK, sM, 0)
        a, d = ge.front(n, o.get('grpd', 1))
        ba, bd = ge.back_pack(G, n)
        t = a + ge.mid(n)
        tot = sum(x[0] for x in t + ba)
        mark = (0, lambda: None)
        if now:
            d = d + [(0, self.flush)]
            t0, t1 = split_cost(t, 64)
            t1a, t1b = split_cost(t1, sum(x[0] for x in t1) - 24)
            fill = ge.cvts(y, n) + merge(merge(t0, late + [mark]), d) + t1a + merge(t1b, bd) + ba
            bd = []
        else:
            t0, t1 = split_cost(t + ba, tot * o.get(f'dm{ph}', 50) // 100)
            u = merge(t0, late + [mark]) + t1
            u0, u1 = split_cost(u, sum(x[0] for x in u) * o.get(f'dd{ph}', 90) // 100)
            fill = ge.cvts(y, n) + merge(u0, d) + u1
        return fill, mark, bd

    @staticmethod
    def mix_in(s, ops, lo=8):
        s['fill'] = s['fill'][:lo] + merge(s['fill'][lo:], ops)

    @staticmethod
    def spread(segs, s0, fns, per):
        for k, f in enumerate(fns):
            segs[s0 + k // per]['vm'].append(f)

    def ladder(self, segs, a, b, fr):
        for f, lv in zip(fr, range(len(fr) - 1, -1, -1)):
            h = a + f * (b - a)
            if h < len(segs):
                insert_at(segs, h, lambda lv=lv: self.setprio(lv))

    def jitter(self, segs, tag):
        j = self.o.get('x_jit')
        if not j:
            return
        p = self.p
        for k, s_ in enumerate(segs):
            if (k * 7 + j) % 3 == 0:
                w = (k * 5 + j) % 8
                s_['end'].append(lambda k=k, w=w: self.cond("s_cmp_lg_u32", sWAVE, w, f"Ljit{tag}_{k}", lambda: p.raw(f"s_sleep {20 + 13 * ((k + j) % 5)}")))

    def swaps(self, a, b):
        return [(8, lambda i=i: self.p.swap16(a.sub(i), b.sub(i))) for i in range(4)]

    def ws_frag(self, f, fn):
        p = self.p
        if f == 0:
            return fn(sLNB)
        p.salu("s_add_u32", sT3, sLNB, f << self.fsh)
        return fn(sT3)

    def spill_ln(self, ti):
        p = self.p
        return [lambda k=k: self.ws_frag(6 * ti + k, lambda so: p.buf_store(
            "buffer_store_dwordx4", self.LN[ti].sub(4 * k, 4), self.vL, sWS, so, flags=self.o.get(f'ssf{ti}', 'sc1'))) for k in range(6)]

    def touch(self, kind, ti, a, part=None):
        p, lane = self.p, self.vLane
        if kind == 'x':
            p.valu("v_lshrrev_b32", a, 1, lane)
            p.valu("v_lshlrev_b32", a, 7, a)
            p.raw("s_mov_b64 exec, 0xaaaaaaaa")
            p.salu("s_mov_b32", "exec_hi", 0xAAAAAAAA)
            p.valu("v_add_u32", a, ROWB, a)
            srd, so, n = sX, sTILE[ti], 48
        elif kind == 'l':
            p.valu("v_mul_u32_u24", a, (1 << (self.fsh - 3)) + 128, lane)
            p.valu("v_and_b32", a, (7 << self.fsh) | 0x380, a)
            p.salu("s_add_u32", sT3, sLNB, (6 * ti) << self.fsh)
            srd, so, n = sWS, sT3, 48
        else:
            p.valu("v_lshlrev_b32", a, 7, lane)
            p.salu("s_add_u32", sT3, sROWT, (8 * ti + (4 if kind == 'R' else 0)) * ROWB)
            srd, so, n = sX, sT3, 52
        k, m = part or (0, 1)
        mask = ((1 << (n * (k + 1) // m)) - 1) & ~((1 << (n * k // m)) - 1)
        p.salu("s_mov_b32", "exec_lo", mask & 0xFFFFFFFF)
        p.salu("s_mov_b32", "exec_hi", mask >> 32)
        assert n * (k + 1) // m - n * k // m <= 24
        p.salu("s_mov_b32", "m0", CNT + 32 - 4 * (n * k // m))
        p.nop(1)
        p.raw(f"buffer_load_dword {a}, {srd}, {so} offen lds")
        p.vm_seq += 1
        p.raw("s_mov_b64 exec, -1")

    def touches(self, segs, spec, a, base=0):
        for e in str(spec).split(','):
            if e in ('', 'n'):
                continue
            what, pos = e.split('@')
            pos = [float(x) for x in pos.split('/')] + [1, 1]
            for k in range(int(pos[1])):
                segs[base + int(pos[0] + k * pos[2])]['end'].append(lambda what=what, k=k, m=int(pos[1]): self.touch(what[0], int(what[1]), a, (k, m)))

    def w2_addr(self, a, b):
        p, lane = self.p, self.vLane
        p.valu("v_lshrrev_b32", a, 2, lane)
        p.valu("v_mul_u32_u24", a, 192, a)
        p.valu("v_and_b32", b, 3, lane)
        p.valu("v_lshl_add_u32", a, b, 4, a)

    def w2_fetch(self, a, u):
        p = self.p
        p.salu("s_add_u32", "m0", sPRIV, u * 1024)
        p.salu("s_add_u32", sT0, sW2B, (u // 3) * 3072 + (u % 3) * 64)
        p.dma(a, sW2, sT0)

    def startup_routines(self):
        main = self.p

        def w1_transform(us, fr):
            p = self.p
            off = lambda u: (u // 6) * 24576 + (u % 6) * 1024
            for k, u in enumerate(us):
                for i in range(2):
                    p.ds_read("ds_read_b64_tr_b16", fr[k].sub(2 * i, 2), self.vW1r, off(u) + i * 512)
            for k, u in enumerate(us):
                p.ds_write("ds_write_b128", self.vW1w, fr[k], off(u))
            p.wait_all(vm=False)

        for name in ("Lconv0", "Lln0", "Lw1a", "Lw1i", "Lw1b", "Lw1c", "Lpre", "Lrb", "Lw1f"):
            self.p = p = Prog()
            p.lines.append(f"{name}:")
            if name == "Lw1a":
                w1_transform(range(6), [V(148 + 4 * u, 4) for u in range(6)])
            elif name == "Lpre":
                for it, a in zip(self.conv_items(0)[1:], self.A0):
                    for op, addr, off, so, n in it['reads'][0]['parts']:
                        p.ds_read(op, a.sub(so, n), addr, off)
                for r in self.CA.regs():
                    p.valu("v_mov_b32", V(r), 0)
                p.wait_all(vm=False)
            elif name == "Lrb":
                self.rows_dma(range(5, 9))
            elif name == "Lw1f":
                for u in range(6):
                    self.w1_dma(u)
            elif name == "Lw1i":
                for u in range(6, 18):
                    self.w1_dma(u)
            elif name in ("Lw1b", "Lw1c"):
                u0 = 6 if name == "Lw1b" else 12
                w1_transform(range(u0, u0 + 6), [V(72 + 4 * u, 4) for u in range(6)])
            elif name == "Lconv0":
                s = seg()
                rb0 = self.rb + self.ring1
                for it, a in zip(self.conv_items(0)[1:], self.A0):
                    for rd in it['reads'][1:]:
                        rd['ring'] = rb0
                    s['mf'].append(dict(reads=it['reads'][1:], emit=[(lambda *b, a=a, e=e: e(a, *b)) for e in it['emit']]))
                s['cl'] = 1
                self.run([s], self.ring1)
                p.nop(12)
            else:
                for f in self.ln_stats():
                    f()
                for _, f in self.ln_scalar():
                    f()
                for f in self.ln_norm():
                    f()
                for _, f in self.ln_pack(0):
                    f()
                p.nop(2)
            p.raw(f"s_setpc_b64 {sRET}")
            main.lines += p.lines
        self.p = main

    def phase1(self):
        p, o, lane = self.p, self.o, self.vLane

        def su(n):
            if o.get('fine') == 'su' and n not in ('s_setprio 3', 's_setprio 2', 'Lpre', 'Lln0', 'Lw1b', 'Lw1c'):
                self.sstamp('su')

        def call_if(older, names, tag):
            self.cond("s_cmp_lt_u32" if older else "s_cmp_ge_u32", sWAVE, 4, tag,
                      lambda: [(p.raw(n if n.startswith("s_") else f"s_call_b64 {sRET}, {n}"), su(n)) for n in names], 0)

        def act(n):
            if n.startswith("+"):
                self.signal(int(n[1:]))
            elif n.startswith("?"):
                off, tg = ints(n[1:])
                self.lds_spin(self.vCN, self.vEV, off, tg, f"sw{off}{tg}")
            else:
                p.raw(n if n.startswith("s_") else f"s_call_b64 {sRET}, {n}")
                su(n)

        def seq_if(older, names, tag):
            self.cond("s_cmp_lt_u32" if older else "s_cmp_ge_u32", sWAVE, 4, tag, lambda: [act(n) for n in names], 0)

        p.raw("s_setprio 2")
        vw = lambda n: f"s_waitcnt vmcnt({n})"
        seq_if(True, ["Lpre", "Lrb", vw(4), f"+{E_ROWA}", f"?{E_ROWA},8", "Lconv0", f"+{E_FREE}", "Lln0", vw(0), f"+{E_ROW}", "Lw1i"], "Lsu0")
        seq_if(False, [f"s_setprio {o.get('sp', 3)}", "Lw1f", vw(6), f"+{E_ROWA}", "Lrb", vw(4), "Lw1a", f"+{E_W1}", "Lpre", vw(0),
                       f"+{E_ROW}", f"?{E_ROW},8", "Lconv0", f"+{E_FREE}", "Lln0"], "Lsu2")
        w1_tok = p.vm_seq
        p.raw("s_branch Lgo")
        self.startup_routines()
        p.lines.append("Lgo:")
        act(f"?{E_W1},4")
        if o.get('pf', 1) == 1:
            self.code_prefetch()
        self.stamp(192)
        self.pad('padsu')
        p.lds_age = o.get('age1', 24)
        NG = len(self.JG)
        NS = 49 + NG
        P = [seg() for _ in range(NS)]
        c0s = [o.get('c1', 6), o.get('cn', 2), o.get('cn', 2)]
        conv = {}

        def landed():
            assert self.nrow % 8 == 0 and self.nrow > self.nready, (self.nrow, self.nready)
            self.nready = self.nrow
            self.cond("s_cmp_eq_u32", sWAVE, 7, f"Lrdy{self.nrow}", lambda: p.wait(vm=self.x_tok))
            self.signal(E_ROW)

        gate = {}

        def check(pos, off, target, name=None):
            insert_at(P, pos - o.get('evl', 0.3), lambda: self.gq.append(lambda: self.ev_read(off)))
            insert_at(P, pos, lambda: (self.flush(), self.ev_wait(off, target), gate.__setitem__(name, True)))

        def advance_rows():
            a, b = V(174), V(175)
            p.valu("v_add_u32", a, 8 * RP - W2R, self.vB[0])
            p.valu("v_subrev_u32", b, 10 * RP, a)
            p.valu("v_min_u32", a, a, b)
            p.valu("v_add_u32", a, W2R, a)
            p.valu("v_sub_u32", b, a, self.vB[0])
            for k in range(3):
                p.valu("v_add_u32", self.vB[k], b, self.vB[k])

        for ti in range(1, 4):
            s0, first = 12 * (ti - 1), c0s[ti - 1]
            for k, it in enumerate(self.conv_items(ti, gate=lambda ti=ti: gate.get(('r', ti)))):
                conv.setdefault(s0 + first + max(k - 1, 0) * (10 - first) // 18, []).append(it)
        ndc, ndn, ndk = ints(o.get('ndc', '4,5')), ints(o.get('ndn', 5)), ints(o.get('ndk', '5,6'))
        late = []
        nd0 = ints(o.get('nd0', 'n'))
        ndx = dict(zip(ints(o.get('ndx', '10,6,11,6'))[::2], ints(o.get('ndx', '10,6,11,6'))[1::2]))
        hs = o.get('hs', 0)
        dk = o.get('dk', 0) and not hs
        packed = lambda e: 36 - self.nk <= e < 48 + NG or (hs and 24 <= e < 28)
        dest = lambda e: V(56 + 8 * (e % 2), 8) if e < 28 else (self.S2[e - 24] if e < 36 else (self.S3[e - 36] if e < 48 else self.S2[self.JG[e - 48]]))
        for s in range(NS):
            S_ = P[s]
            e = s - 1
            if 0 <= e < 36 and not packed(e):
                n = ndc[(s + 3) % len(ndc)] if s in conv else ndn[s % len(ndn)]
                if s < len(nd0):
                    n = nd0[s]
                elif s % 12 in ndx:
                    n = ndx[s % 12]
                self.ge.W = self.W + ([V(174), V(175), V(176), V(177)] if n < 4 else [])
                if o.get('dfr', 95) and not hs and e < 34:
                    assert 4 <= n <= (6 if s > 5 else 5)
                    self.ge.W = (regs(V(178, 12)) if e % 2 else regs(V(136, 8), V(176, 2), V(190, 2))) + self.W[8:]
                    ge = self.ge
                    a, d = ge.front(n, o.get('grpd', 1), True)
                    ba, bd = ge.back_stat(self.SQ[e % 12], None, n, e < 12, o.get('mix', 1))
                    t = a + ge.mid(n) + ba
                    if e == 33:
                        t0, t1 = split_cost(t, 96)
                        t1a, t1b = split_cost(t1, sum(x[0] for x in t1) - 64)
                        S_['fill'] = ge.cvts(regs(self.Y), n) + merge(merge(t0, late), d) + t1a + merge(t1b, bd)
                    else:
                        ta, tb = split_cost(t, sum(x[0] for x in t) * o.get('dl0', 0) // 100)
                        t0, t1 = split_cost(ta + merge(tb, late), sum(x[0] for x in t + late) * o.get('dfr', 95) // 100)
                        S_['rg'] = o.get('rgc', 1) if s in conv else o.get('rgn', 1)
                        S_['fill'] = ge.cvts(regs(self.Y), n) + merge(t0, d) + t1
                    late = bd
                else:
                    S_['fill'] = self.period_fill(regs(self.Y), n, sq=self.SQ[e % 12], first=e < 12)
                self.ge = Gelu(self, self.W, sK, sM, 0)
            elif packed(e) and dk:
                S_['fill'], nlate, late = self.period_def(self.W, regs(self.Y), 5, regs(dest(e)), e % 2, late if e > 34 else [], now=e in (47, 47 + NG))
            elif packed(e):
                S_['fill'] = self.period_fill(regs(self.Y), (o.get('nd35', 6) if s == 35 else ndk[s % len(ndk)]) if e < 48 else o.get('ndg', 5), G=regs(dest(e)), fl=e == 47 + NG)
            g1 = []
            if s < 48:
                g1 = self.gemm1_32(s % 12, self.LN[s // 12], packed(s), 8 if s else 0)
            elif s < 48 + NG:
                g1 = self.gemm1_32(self.JG[s - 48], self.LN[2], True, 8)
            if s >= 35:
                S_['ring'] = self.ring2
            ex = conv.get(s, [])
            tr = []
            if packed(s - 2) and s - 2 < 48:
                G, j = dest(s - 2), (s - 2) % 12
                sq = self.SQ[j]
                D0, idf = (self.D0, self.idf) if s >= 36 else (V(176, 16), [V(48, 4), V(52, 4)])
                tr = [dict(reads=[], tag='tr' if q else None, w=0.5,
                           emit=(lambda q=q, G=G, D0=D0, idf=idf: p.mfma(D0, G.sub(4 * q, 4), idf[q], D0 if q else 0, 'f16'))) for q in range(2)]
                ops = [(4, lambda i=i, sq=sq, D0=D0: p.valu("v_fmac_f32", sq, D0.sub(i), D0.sub(i), rmw=True), 'tr') for i in range(16)]
                if s >= 38 and j % 2:
                    a_, b_ = self.SQ[j - 1], sq
                    ops += [(8, lambda a_=a_, b_=b_: p.swap32(a_, b_)), (4, lambda a_=a_, b_=b_: p.valu("v_add_f32", a_, a_, b_)),
                            (0, lambda a_=a_, j=j: p.ds_write("ds_write_b32", self.vTAB, a_, TABO + (j - 1) * 128))]
                if s == 49:
                    S_['fill'] = S_['fill'][:18] + ops + [(0, self.arrive)] + S_['fill'][18:]
                elif dk:
                    for it in tr:
                        it['mark'] = nlate
                    at = next(i for i, x in enumerate(S_['fill']) if x is nlate)
                    self.mix_in(S_, ops, min(at + o.get('trl', 14), len(S_['fill'])))
                    S_['trpos'] = o.get('trp', 4) if s < 48 else 2
                else:
                    self.mix_in(S_, ops, 18)
                if s < 36:
                    S_['vm'] += [lambda q=q, G=G, j=j: self.ws_frag(12 + 2 * j + q, lambda so: p.buf_store(
                        "buffer_store_dwordx4", G.sub(4 * q, 4), self.vL, sWS, so, flags=o.get('ssf', 'sc1'))) for q in range(2)]
            if ex:
                nf, nl = (0 if tr else 1), 1
                mid = ex[nf:len(ex) - nl]
                m = []
                for k in range(6):
                    m.append(g1[k])
                    if k < 5:
                        m += mid[k * len(mid) // 5:(k + 1) * len(mid) // 5]
                S_['mf'] = tr + ex[:nf] + m + ex[len(ex) - nl:]
                S_['cl'] = o.get('clc', 1)
            else:
                k = S_.get('trpos', 0)
                S_['mf'] = g1[:k] + tr + g1[k:]
                S_['head'], S_['tail'] = (0 if tr and not k else 32), o.get('t1', 24)
        p.salu("s_add_u32", sYB, sYB, 8 * ROWB)
        P[0]['end'].append(advance_rows)
        P[o.get('wb', 2)]['end'].append(lambda: seq_if(True, [vw(6 + p.vm_seq - w1_tok), 'Lw1b', f'+{E_W1B}'], 'Lsu5'))
        P[o.get('wc', 4)]['end'].append(lambda: seq_if(True, [vw(p.vm_seq - w1_tok), 'Lw1c', f'+{E_ROWA}'], 'Lsu6'))
        extra = {}
        for ti in range(1, 4):
            s0 = 12 * (ti - 1)
            P[s0 + 9]['tail'] = 32
            if o.get('lnp', 0) & 4:
                first, order = c0s[ti - 1], ((0, 1, 3, 2) if ti % 2 == 0 else (2, 3, 1, 0))
                rs = [16 * cq + 4 * cl + i for cl in order for cq in range(3) for i in range(4)]
                ops = self.ln_stats_plain(rs)
                ends = [first + ((9 * (k + 1) + 1) // 2 - 1) * (10 - first) // 18 + 1 for k in range(4)]
                for k in range(4):
                    part = ops[max(0, 24 * k - 2):24 * k + 22]
                    span = range(ends[k], max(ends[k] + 1, ends[k + 1])) if k < 3 else [10]
                    for m, q in enumerate(span):
                        extra.setdefault(s0 + q, []).extend(part[m * len(part) // len(span):(m + 1) * len(part) // len(span)])
                extra[s0 + 10] += self.ln_scalar()
            elif o.get('lnp', 0) & 1:
                self.mix_in(P[s0 + 10], self.ln_stats_plain(range(48)) + self.ln_scalar())
            else:
                P[s0 + 9]['pb'] += self.ln_stats()
                self.mix_in(P[s0 + 10], self.ln_scalar())
            P[s0 + 9]['mf'][-1]['post'] = lambda: self.signal(E_FREE)
            if ti < 3:
                P[s0 + 9]['end'].append(advance_rows)
            if o.get('lnp', 0) & 2:
                ro = self.ls[2]
                nm = [(4, lambda i=i: p.valu("v_fma_f32", self.CA.sub(i), self.CA.sub(i), ro.sub(0), f"-{ro.sub(1)}")) for i in range(48)]
                pk = self.ln_pack(ti)
                self.mix_in(P[s0 + 11], nm + pk)
            else:
                P[s0 + 10]['pb'] += self.ln_norm()
                self.mix_in(P[s0 + 11], self.ln_pack(ti))
        for q, ops in extra.items():
            self.mix_in(P[q], ops)
        for it in P[4]['mf']:
            it['reads'][0]['after'] = lambda: gate.get('w1')
        check(o.get('wck', 3.5), E_W1B, 4, 'w1')
        for it in P[8]['mf']:
            it['reads'][0]['after'] = lambda: gate.get('w2')
        check(o.get('wck2', 7.0), E_ROWA, 12, 'w2')
        for ti in range(3):
            d0 = o.get('f0', 2) if ti == 0 else 12 * ti - 12 + o.get('fn', 11)
            check(d0, E_FREE, 8 * (ti + 1))
            fns = [lambda r=r: self.row_dma_fast(r) for r in range(8 * ti + 9, 8 * ti + 17)]
            self.spread(P, d0, fns, o.get('per0', 8) if ti == 0 else o.get('pern', 8))
            c = 12 * ti + c0s[ti]
            insert_at(P, c - o.get('sgl', 1.2), landed)
            check(c - o.get('ckl', 0.4), E_ROW, 8 * (ti + 2), ('r', ti + 1))
        assert o.get('fn', 11) <= 11
        check(24 + o.get('fn', 11), E_FREE, 32)
        for ti, d in ((0, 14), (1, 30 if hs else 25)):
            for k, f in enumerate(self.spill_ln(ti)[0 if ti else 2 * self.kl:]):
                at = int(o.get(f'sl{ti}', d) + k * o.get(f'sls{ti}', 0.8 if hs and ti else 1))
                assert at <= (min(34, ints(o.get('rs', '36,39,42'))[0]) if ti else (22 if hs else 34))
                P[at]['vm'].append(f)
        P[o.get('sent', 6)]['end'].append(self.sentinels)
        P[17]['end'].append(self.bias_finish)
        P[24]['end'].append(self.init_counter)
        u = self.tq[1]
        P[33]['end'].append(lambda: self.w2_addr(u, self.vX))
        self.spread(P, 24 + o.get('fn', 11), [lambda k=k: self.w2_fetch(u, k) for k in range(7)], 3)
        self.mix_in(P[35], self.ident32(self.idf, V(192, 4)))
        if hs:
            self.mix_in(P[24], self.ident32([V(48, 4), V(52, 4)], V(176, 4)))
            P[46 + NG]['end'].append(self.reload_map)
            ld = self.reload_ln(0, [self.LN[2].sub(4 * k, 4) for k in range(6)])
            P[48 + NG]['pre'].append(lambda: self.cond("s_cmp_eq_u32", sWAVE, 0, "Lnorl0", lambda: [f() for f in ld]))
        self.mix_in(P[37], self.tab_addr())
        for k, v in enumerate(self.KL):
            self.mix_in(P[36 + k], [(4, lambda i=i, k=k, v=v: p.valu("v_mov_b32", v.sub(i), self.LN[0].sub(8 * k + i))) for i in range(8)])
        for s in range(49, NS):
            P[s]['end'].append(lambda s=s: self.poll_point(s))
        P[48 + NG - o.get('w2b', 3)]['end'] += [lambda: self.lds_spin(self.W[0], self.W[1], 4, 1, "w2"), lambda: self.w2_addr(self.W[0], self.W[1]),
                                                   lambda: self.w2_fetch(self.W[0], 7), lambda: self.w2_fetch(self.W[0], 8)]
        assert not dk
        for k, f in zip(ints(o.get('rs', '36,39,42')), self.role_steps()):
            P[k]['end'].append(f)
        self.touches(P, o.get('t1s', 'r2@7/3/1,r3@18/3/1'), self.tq[1])
        self.touches(P, o.get('t3s', 'n'), V(86))
        for k in ints(o.get('ca1', 'n')):
            P[k]['end'].append(lambda k=k: self.code_again(self.W[0], f'a{k}'))
        fr = flts(o.get('pf1', '0,0.5,0.85'))
        marks = [0] + list(range(o.get('l1a', 6), NS, o.get('lc', 2))) + [NS]
        for a, b in zip(marks, marks[1:]):
            self.ladder(P, a, b, fr)
        self.jitter(P, 1)
        if o.get('fine') == 'p1':
            for k in ints(o.get('ss1', '2,4,5,9,12,14,15,21,26,27,33,41')):
                P[k]['end'].append(lambda: self.sstamp('p1'))
        self.imm = o.get('imm1', 99)
        self.run(P, self.ring1)
        p.lds_age = 0

    def tab_addr(self):
        p, lane, a, b = self.p, self.vLane, self.vTAB, V(87)
        return [(4, f) for f in (lambda: p.valu("v_and_b32", a, 0x33, lane), lambda: p.valu("v_bfe_u32", b, lane, 2, 1),
                                 lambda: p.valu("v_lshl_add_u32", a, b, 3, a), lambda: p.valu("v_bfe_u32", b, lane, 3, 1),
                                 lambda: p.valu("v_lshl_add_u32", a, b, 2, a), lambda: p.valu("v_lshl_add_u32", a, a, 2, sPRIV))]

    def arrive(self):
        p, lane = self.p, self.vLane
        self.flush()
        age, p.lds_age = p.lds_age, 0
        p.raw("s_setprio 3")
        t = [V(240 + i) for i in range(8)]
        p._mem_issue([], [t[2].b])
        p.raw("s_mov_b64 exec, 1")
        p.raw(f"ds_add_rtn_u32 {t[2]}, {self.vCN}, {self.vONE}")
        p.raw("s_mov_b64 exec, -1")
        p.raw("s_waitcnt lgkmcnt(0)")
        p.lgkm_done = p.lgkm_seq
        p.valu("v_readfirstlane_b32", sT0, t[2])

        def publish():
            pv = [V(176 + 8 * w, 8) for w in range(4)] + [V(156, 8)]
            p.valu("v_min_u32", t[3], 47, lane)
            p.valu("v_lshlrev_b32", t[4], 5, t[3])
            p.valu("v_add_u32", t[4], W2R + TABO, t[4])
            rd = lambda v, w: [p.ds_read("ds_read_b128", v.sub(4 * k, 4), t[4], 9216 * w + 16 * k) for k in range(2)]
            add = lambda x, y: [p.valu("v_add_f32", x.sub(i), x.sub(i), y.sub(i)) for i in range(8)]
            for w in range(5):
                rd(pv[w], w)
            p.valu("v_lshlrev_b32", t[6], 13, t[3])
            p.valu("v_add_u32", t[7], 4096, t[6])
            add(pv[0], pv[1])
            rd(pv[1], 5)
            add(pv[2], pv[3])
            rd(pv[3], 6)
            add(pv[0], pv[2])
            rd(pv[2], 7)
            add(pv[4], pv[1])
            add(pv[3], pv[2])
            add(pv[4], pv[3])
            add(pv[0], pv[4])
            for i in range(8):
                p.valu("v_min_u32", pv[1].sub(i), -2, pv[0].sub(i))
            p.salu("s_lshl_b32", sT0, S(2), 4)
            p.buf_store("buffer_store_dwordx4", pv[1].sub(0, 4), t[6], sWS, sT0, flags="sc1")
            p.buf_store("buffer_store_dwordx4", pv[1].sub(4, 4), t[7], sWS, sT0, flags="sc1")
            p.ds_write("ds_write_b32", self.vCN, self.vONE, 4)
            p.nop(2)
        self.cond("s_cmp_lg_u32", sT0, 7, "Lnopub", publish)
        self.stamp(192)
        rv, tv, gv, t = self.poll_regs()
        p.salu("s_mov_b32", sROLE, 0)

        def role():
            if not self.g7:
                p.valu("v_lshlrev_b32", t[0], 2, lane)
                for i in range(3):
                    p.raw(f"buffer_load_dword {gv[i]}, {t[0]}, {sGA}, 0 offen offset:{256 * i}")
            p.salu("s_cmp_lt_u32", S(2), 96)
            p.salu("s_cselect_b32", sROLE, 1, 2)
            for r in rv:
                for i in range(4):
                    p.valu("v_mov_b32", r.sub(i), -1)
            p.raw(f"s_call_b64 {sRET}, Lpoll1")
        self.cond("s_cmp_lg_u32", sWAVE, 0, "Lnorole", role)
        p.raw(f"s_setprio {self.prio}")
        p.lds_age = age

    def role_steps(self):
        p, lane = self.p, self.vLane
        gv = self.poll_regs()[2]
        t = [V(80 + i) for i in range(8)]

        def a():
            p.valu("v_mov_b32", t[2], 0)
            p.raw(f"buffer_load_dword {t[3]}, {t[2]}, {sDBG}, 0 offen sc1")

        def b():
            p.valu("v_mov_b32", t[2], 0)
            p.lines.append("Lpi:")
            p.raw("s_waitcnt vmcnt(0)")
            p.raw(f"v_readfirstlane_b32 {sT0}, {t[3]}")
            self.spin_guard("Lpix")
            p.raw(f"s_cmp_ge_u32 {sT0}, 256")
            p.raw("s_cbranch_scc1 Lpix")
            p.raw(f"buffer_load_dword {t[3]}, {t[2]}, {sDBG}, 0 offen sc1")
            p.raw("s_branch Lpi")
            p.lines.append("Lpix:")
            p.valu("v_min_u32", t[0], 47, lane)
            p.valu("v_lshlrev_b32", t[0], 3, t[0])
            p.salu("s_and_b32", sT1, S(2), REP - 1)
            p.salu("s_lshl_b32", sT1, sT1, 11)
            p.salu("s_add_u32", sT1, sT1, WS_TOT + 1536)
            p.raw(f"buffer_load_dwordx2 {V(84, 2)}, {t[0]}, {sWS}, {sT1} offen sc1")

        def c():
            p.valu("v_min_u32", t[0], 47, lane)
            p.valu("v_lshlrev_b32", t[0], 3, t[0])
            p.valu("v_add_u32", t[1], BT0, t[0])
            p.valu("v_add_u32", t[0], BT1 - 256, t[0])
            p.valu("v_cmp_gt_u32", "vcc", 32, lane)
            p.valu("v_cndmask_b32", t[0], t[0], t[1], "vcc")
            p.raw("s_waitcnt vmcnt(0)")
            p.ds_write("ds_write_b64", t[0], V(84, 2))
        return [lambda f=f, k=k: self.cond("s_cmp_lg_u32", sWAVE, 0, f"Lrs{k}", f) for k, f in enumerate((a, b, c))]

    def ident32(self, idf, tmp):
        p, lane = self.p, self.vLane
        a, b, c = tmp.sub(0), tmp.sub(1), tmp.sub(2)
        ops = [lambda: p.valu("v_and_b32", a, 1, lane),
               lambda: p.valu("v_lshlrev_b32", a, 4, a),
               lambda: p.valu("v_mov_b32", b, 0x3C00),
               lambda: p.valu("v_lshlrev_b32", a, a, b),
               lambda: p.valu("v_lshrrev_b32", b, 3, lane),
               lambda: p.valu("v_xor_b32", b, b, lane),
               lambda: p.valu("v_and_b32", b, 4, b),
               lambda: p.valu("v_bfe_u32", c, lane, 3, 2),
               lambda: p.valu("v_lshl_add_u32", b, b, 1, 0),
               lambda: p.valu("v_lshl_add_u32", b, c, 1, b),
               lambda: p.valu("v_bfe_u32", c, lane, 1, 1),
               lambda: p.valu("v_add_u32", b, b, c)]
        for i in range(8):
            ops.append(lambda i=i: (p.valu("v_cmp_eq_u32", "vcc", i, b), p.valu("v_cndmask_b32", idf[i // 4].sub(i % 4), 0, a, "vcc")))
        return [(4, f) for f in ops]

    def poll_regs(self):
        rv = [V(156, 4), V(160, 4), V(164, 4), V(240, 4)]
        tv = V(156, 6)
        gv = [V(244), V(245), V(246)]
        t = [V(247), V(255), V(162), V(163), V(164), V(165), V(166), V(167)]
        if self.g7:
            rv[3] = V(252, 4)
            gv = [V(162), V(163), V(164)]
            t = [V(250), V(250), V(165), V(166), V(167), V(252), V(253)]
        return rv, tv, gv, t

    def poll_loads(self, p, reducer):
        rv, tv, gv, t = self.poll_regs()
        if reducer:
            p.valu("v_lshlrev_b32", t[0], 4, self.vLane)
            p.salu("s_lshl_b32", sT1, S(2), 12)
            for i in range(4):
                p.buf_load("buffer_load_dwordx4", rv[i], t[0], sWS, sT1, 1024 * i, flags="sc1")
        else:
            if self.g7:
                p.valu("v_lshlrev_b32", t[0], 2, self.vLane)
                for i in range(3):
                    p.buf_load("buffer_load_dword", gv[i], t[0], sGA, 0, 256 * i)
            p.valu("v_lshlrev_b32", t[0], 3, self.vLane)
            p.salu("s_and_b32", sT1, S(2), REP - 1)
            p.salu("s_lshl_b32", sT1, sT1, 11)
            p.salu("s_add_u32", sT1, sT1, WS_TOT)
            for i in range(3):
                p.buf_load("buffer_load_dwordx2", tv.sub(2 * i, 2), t[0], sWS, sT1, 512 * i, flags="sc1")

    def poll_routine(self):
        main, self.p = self.p, Prog()
        p = self.p
        rv, tv, gv, t = self.poll_regs()
        ret = f"s_setpc_b64 {sRET}"
        p.lines.append("Lpoll:")
        p.raw("s_waitcnt vmcnt(0)")
        p.lines.append("Lpoll1:")
        p.salu("s_cmp_eq_u32", sROLE, 2)
        p.raw("s_cbranch_scc1 LpollC")
        allr = [rv[i].sub(k) for i in range(4) for k in range(4)]
        p.valu("v_max_u32", t[1], allr[0], allr[1])
        for i in range(2, 16, 2):
            p.valu("v_max3_u32", t[1], t[1], allr[i], allr[i + 1])
        p.valu("v_cmp_eq_u32", "vcc", -1, t[1])
        p.nop(5)
        p.raw("s_cbranch_vccz LpollR")
        self.poll_loads(p, True)
        p.raw(ret)
        self.p = p2 = Prog()
        p2.lines.append("LpollR:")
        p2.raw("s_setprio 3")
        for k in range(4):
            p2.valu("v_add_f32", rv[0].sub(k), rv[0].sub(k), rv[1].sub(k))
            p2.valu("v_add_f32", rv[3].sub(k), rv[2].sub(k), rv[3].sub(k))
            p2.valu("v_add_f32", rv[3].sub(k), rv[0].sub(k), rv[3].sub(k))
        vs, ts = regs(rv[3]), regs(rv[0])
        for r in (8, 4, 2, 1):
            for v in vs:
                p2.valu("v_add_f32_dpp", v, v, v, mods=f"row_ror:{r} row_mask:0xf bank_mask:0xf")
        for sw in (p2.swap16, p2.swap32):
            for v, u in zip(vs, ts):
                p2.valu("v_mov_b32", u, v)
            for v, u in zip(vs, ts):
                sw(v, u)
            for v, u in zip(vs, ts):
                p2.valu("v_add_f32", v, v, u)
        for v in vs:
            p2.valu("v_min_u32", v, -2, v)
        p2.salu("s_lshl_b32", sT1, S(2), 4)
        p2.salu("s_add_u32", sT1, sT1, WS_TOT)
        p2.valu("v_lshlrev_b32", t[1], 11, self.vLane)
        p2.raw(f"s_mov_b64 exec, {hex((1 << REP) - 1)}")
        p2.buf_store("buffer_store_dwordx4", rv[3], t[1], sWS, sT1, flags="sc1")
        p2.raw("s_mov_b64 exec, -1")
        p2.salu("s_cmp_eq_u32", sWAVE, 0)
        p2.salu("s_cselect_b32", sROLE, 2, 0)
        p2.raw("s_cbranch_scc0 LpollRx")
        self.poll_loads(p2, False)
        p2.lines.append("LpollRx:")
        p2.raw(ret)
        self.p = p3 = Prog()
        p3.lines.append("LpollC:")
        p3.valu("v_max3_u32", t[1], tv.sub(0), tv.sub(1), tv.sub(2))
        p3.valu("v_max3_u32", t[1], t[1], tv.sub(3), tv.sub(4))
        p3.valu("v_max_u32", t[1], t[1], tv.sub(5))
        p3.valu("v_cmp_eq_u32", "vcc", -1, t[1])
        p3.nop(5)
        p3.raw("s_cbranch_vccz LpollS")
        self.poll_loads(p3, False)
        p3.raw(ret)
        self.p = p4 = Prog()
        p4.lines.append("LpollS:")
        p4.raw("s_setprio 3")
        p4.salu("s_mov_b32", sT0, f2u(1.0 / (GA * GA)))
        p4.valu("v_mov_b32", t[2], f2u(1e-6))
        for i in range(6):
            p4.valu("v_fma_f32", tv.sub(i), tv.sub(i), sT0, t[2])
        for i in range(6):
            p4.valu("v_sqrt_f32", tv.sub(i), tv.sub(i))
        p4.valu("v_add_f32", t[3], tv.sub(0), tv.sub(1))
        for i in range(2, 6):
            p4.valu("v_add_f32", t[3], t[3], tv.sub(i))
        self.lane_sum64(t[3], t[1])
        p4.salu("s_mov_b32", sT0, f2u(1.0 / 384))
        p4.valu("v_fma_f32", t[3], t[3], sT0, t[2])
        p4.valu("v_rcp_f32", t[3], t[3])
        p4.valu("v_mov_b32", t[2], f2u(1.0 / GA))
        p4.valu("v_mul_f32", t[3], t[3], t[2])
        for i in range(3):
            p4.valu("v_lshlrev_b32", t[4], 16, gv[i])
            p4.valu("v_and_b32", t[5], 0xFFFF0000, gv[i])
            p4.valu("v_mul_f32", tv.sub(2 * i), tv.sub(2 * i), t[3])
            p4.valu("v_mul_f32", tv.sub(2 * i + 1), tv.sub(2 * i + 1), t[3])
            p4.valu("v_fma_f32", t[4], t[4], tv.sub(2 * i), t[2])
            p4.valu("v_fma_f32", t[5], t[5], tv.sub(2 * i + 1), t[2])
            p4.valu("v_cvt_pk_f16_f32", gv[i], t[4], t[5])
        p4.salu("s_mov_b32", sROLE, 0)
        p4.raw(ret)
        self.p = main
        for q in (p, p2, p3, p4):
            main.lines += q.lines

    def poll_point(self, k):
        p = self.p

        def body():
            if self.o.get('nb', 1):
                p.raw(f"s_getreg_b32 {sT0}, hwreg(HW_REG_IB_STS, 0, 4)")
                p.raw(f"s_cmp_lg_u32 {sT0}, 0")
                p.raw(f"s_cbranch_scc1 Lpp{k}")
            p.raw(f"s_call_b64 {sRET}, Lpoll")
            p.raw(f"s_setprio {self.prio}")
        self.cond("s_cmp_eq_u32", sROLE, 0, f"Lpp{k}", body)

    def gap(self):
        p, o, lane = self.p, self.o, self.vLane
        rv, tv, gv, t = self.poll_regs()
        self.stamp(224)
        p.raw("s_setprio 2")
        fr = [V(120 + 4 * u, 4) for u in range(9)]
        u = [V(224 + i) for i in range(4)]
        p.valu("v_lshrrev_b32", u[1], 5, lane)
        p.valu("v_lshl_add_u32", u[0], u[1], 9, sPRIV)
        p.valu("v_lshl_add_u32", u[2], u[1], 4, sPRIV)
        p.valu("v_and_b32", u[1], 15, lane)
        p.valu("v_lshl_add_u32", u[0], u[1], 4, u[0])
        p.valu("v_bfe_u32", u[1], lane, 4, 1)
        p.valu("v_lshl_add_u32", u[0], u[1], 3, u[0])
        if o.get('hs', 0):
            p.raw(f"s_waitcnt vmcnt({6 + (1 if o.get('stamps') else 0)})")
            self.cond("s_cmp_lg_u32", sWAVE, 0, "Lw0w", lambda: p.raw("s_waitcnt vmcnt(0)"))
        else:
            p.raw("s_waitcnt vmcnt(0)")
            p.vm_done = p.vm_seq
        for k in range(9):
            for i in range(2):
                p.ds_read("ds_read_b64_tr_b16", fr[k].sub(2 * i, 2), u[0], k * 1024 + i * 256)

        def lane_maps():
            g, n = u[1], u[3]
            p.valu("v_lshrrev_b32", g, 4, lane)
            p.valu("v_and_b32", n, 15, lane)
            p.valu("v_mul_u32_u24", self.vG, 192, n)
            p.valu("v_lshl_add_u32", self.vG, g, 4, self.vG)
            p.valu("v_lshlrev_b32", self.vBias, 5, g)
            p.valu("v_and_b32", self.vR, 0x2F, lane)
            p.valu("v_lshlrev_b32", self.vR, 4, self.vR)
            p.valu("v_and_b32", g, 1, g)
            p.valu("v_mul_u32_u24", n, 3072, g)
            p.valu("v_add_u32", self.vA[0], n, self.vR)
            p.valu("v_add_u32", self.vA[1], 0x10000, self.vA[0])
            p.valu("v_add_u32", self.vA[2], 0x20000, self.vA[0])
            p.valu("v_lshl_add_u32", self.vR, g, self.fsh, self.vR)
        if not self.g7:
            lane_maps()
        p.valu("v_mov_b32", u[1], CNT)
        p.valu("v_mov_b32", u[3], 1)
        for G in self.S3[:2]:
            for _, f in self.swaps(G.sub(0, 4), G.sub(4, 4)):
                f()
        p.wait_all(vm=False)
        p.raw("s_mov_b64 exec, 1")
        p.raw(f"ds_add_u32 {u[1]}, {u[3]} offset:8")
        p.raw("s_mov_b64 exec, -1")
        p.lgkm_seq += 1
        w = [V(228 + i) for i in range(4)]
        for k in range(36):
            f, a, b = V(120 + k), w[2 * (k % 2)], w[2 * (k % 2) + 1]
            p.valu("v_lshlrev_b32", a, 16, f)
            p.valu("v_and_b32", b, 0xFFFF0000, f)
            p.valu("v_cvt_pk_f16_f32", f, a, b)
            if k % 12 == 11:
                self.prio = 2
                self.poll_point(900 + k)
        p.valu("v_lshl_add_u32", u[0], lane, 4, sPRIV)
        for k, G in enumerate(self.S3[2:o.get('nsw', 2)]):
            for _, f in self.swaps(G.sub(0, 4), G.sub(4, 4)):
                f()
            if k % 4 == 3:
                self.poll_point(950 + k)
        for e in str(o.get('tb4', 'n')).split(','):
            if e != 'n':
                self.cond("s_cmp_eq_u32", sWAVE, 0, f"Ltb{e}", lambda: [self.touch(e[0], int(e[1]), w[0], (k, 2)) for k in range(2)])

        for i in range(3):
            p.valu("v_add_u32", w[i], 64 * i, lane)
            p.valu("v_mul_u32_u24", w[3], 2731, w[i])
            p.valu("v_lshrrev_b32", w[3], 16, w[3])
            p.valu("v_mul_u32_u24", w[3], 9216 - 96, w[3])
            p.valu("v_lshl_add_u32", w[i], w[i], 2, w[3])
            p.valu("v_add_u32", w[i], W2R, w[i])

        def helper():
            p.salu("s_cmp_ge_u32", S(2), 96)
            p.raw("s_cbranch_scc1 Lnohelp")
            p.salu("s_mov_b32", sROLE, 1)
            for r in rv:
                for i in range(4):
                    p.valu("v_mov_b32", r.sub(i), -1)
        if o.get('nred', 1) > 1:
            p.salu("s_sub_u32", sT0, sWAVE, 1)
            self.cond("s_cmp_ge_u32", sT0, o['nred'] - 1, "Lnohelp", helper)
        p.cond_begin()
        p.lines.append("Lspin:")
        p.salu("s_cmp_eq_u32", sROLE, 0)
        p.raw("s_cbranch_scc1 Lspinx")
        self.spin_guard("Lspinx")
        p.raw(f"s_call_b64 {sRET}, Lpoll")
        p.raw("s_branch Lspin")
        p.lines.append("Lspinx:")
        p.cond_end()

        def finish():
            self.lds_spin(t[5], t[6], 8, 8, "rr")
            for i in range(3):
                p.ds_write("ds_write_b32", w[i], gv[i])
        self.cond("s_cmp_lg_u32", sWAVE, 0, "Lnofin", finish)
        p.raw("s_waitcnt lgkmcnt(0)")
        p.lgkm_done = p.lgkm_seq
        self.stamp(228)
        p.barrier()
        self.stamp(228)
        if o.get('hs', 0):
            ld = self.reload_ln(0, [self.LN[2].sub(4 * k, 4) for k in range(6)])
            for r in self.LN[2].regs():
                p.p_vm[r] = None
            self.cond("s_cmp_lg_u32", sWAVE, 0, "Lrl0w", lambda: [f() for f in ld])
        sc = [V(156, 4), V(160, 4), V(164, 4)]
        for k in range(3):
            p.ds_read("ds_read_b128", sc[k], u[2], 32 * k)
        if self.g7:
            lane_maps()
        p.wait_all(vm=False)
        for k in range(9):
            for i in range(4):
                p.valu("v_pk_mul_f16", fr[k].sub(i), fr[k].sub(i), sc[k // 3].sub(i))
            wb = o.get('wbits', 0)
            for r_ in (regs(fr[k]) if wb else []):
                p.valu("v_add_u32", r_, (1 << (wb - 1)) * 0x10001, r_)
                p.valu("v_and_b32", r_, (0xFFFF & ~((1 << wb) - 1)) * 0x10001, r_)
            tok = p.ds_write("ds_write_b128", u[0], fr[k], k * 1024)
        if self.g7:
            for k in range(12):
                T, b = k // 4, k % 2
                p.ds_read("ds_read_b128", V(120 + 4 * k, 4), self.vBias, (BT0 + 128 * T if T < 2 else BT1) + 16 * b)
        p.wait(lgkm=tok)
        self.pad('padb5')
        p.barrier()
        if o.get('x_rel'):
            p.raw("s_memrealtime s[100:101]")
            p.raw("s_waitcnt lgkmcnt(0)")
        self.stamp(228)

    def load_x1(self, dst, ti, k):
        p = self.p
        if k % 2:
            p.salu("s_add_u32", sT3, sTILE[ti], ROWB)
        if 'X' in self.o.get('x_no', ''):
            return
        if 'x' in self.o.get('x_lin', ''):
            p.buf_load("buffer_load_dwordx4", dst, self.vO, sX, sT3 if k % 2 else sTILE[ti], 128 * (k // 2), flags=self.o.get('xlf', ''))
            return
        p.buf_load("buffer_load_dwordx4", dst, self.vG, sX, sT3 if k % 2 else sTILE[ti], 64 * (k // 2), flags='nt' if f'{ti}{k // 2}' in str(self.o.get('xnt', '')).split(',') else '')

    def reload_ln(self, ti, dst):
        p = self.p
        if 'L' in self.o.get('x_no', '') and ti == 1:
            return []
        return [lambda k=k: self.ws_frag(6 * ti + (k & ~1), lambda so: p.buf_load(
            "buffer_load_dwordx4", dst[k], self.vR, sWS, so, 256 * (k & 1), flags=self.o.get('rlf', 'nt'))) for k in range(6)]

    def reload_map(self):
        p, lane = self.p, self.vLane
        p.valu("v_and_b32", self.vR, 0x2F, lane)
        p.valu("v_lshlrev_b32", self.vR, 4, self.vR)
        p.valu("v_bfe_u32", self.vBias, lane, 4, 1)
        p.valu("v_lshl_add_u32", self.vR, self.vBias, self.fsh, self.vR)

    def out_map(self):
        p = self.p
        p.valu("v_and_b32", self.vO, 1, self.vLane)
        p.valu("v_lshlrev_b32", self.vO, 7, self.vO)
        p.valu("v_sub_u32", self.vO, self.vG, self.vO)
        p.salu("s_mov_b32", sEV.sub(0), 0x55555555)
        p.salu("s_mov_b32", sEV.sub(1), 0x55555555)

    def early_loads(self):
        self.load_x1(V(240, 4), 3, self.po[0])
        self.load_x1(V(244, 4), 3, self.po[1])

    def gemm1_16(self, j, ln, y, need):
        p = self.p
        return [dict(reads=[self.frag(W1F + (j * 6 + u) * 1024 + 256 * b)], need=need,
                     emit=[(lambda w, u=u, b=b, r=r: p.mfma(y[2 * r + b], w, ln[2 * u + r], y[2 * r + b] if u else 0)) for r in range(2)])
                for u in range(3) for b in range(2)]

    def gemm2_16(self, j, users, tag=None):
        p = self.p
        items = []
        for T in range(3):
            for b in range(2):
                reads = [self.frag(W2R + (j * 6 + T) * 1024 + 256 * b)]
                if any(f for _, _, f in users):
                    reads.append(rd128(self.vBias, (BT0 + 128 * T if T < 2 else BT1) + 16 * b))
                em = []
                for acc, G, f in users:
                    for r in range(2):
                        d = acc[2 * T + r].sub(4 * b, 4)
                        em.append(lambda w, c=None, d=d, G=G, r=r, f=f: p.mfma(d, w, G.sub(4 * r, 4), c if f else d, 'f16'))
                items.append(dict(reads=reads, emit=em, tag=tag if (T, b) == (2, 1) else None))
        return items

    def resid_item(self, acc, k, x):
        p = self.p
        return dict(reads=[], emit=[(lambda b=b: p.mfma(acc[k].sub(4 * b, 4), self.id16.sub(2 - 2 * b, 4), x, acc[k].sub(4 * b, 4))) for b in range(2)])

    def ident16(self):
        p, lane, I = self.p, self.vLane, self.id16
        a, b = I.sub(0), I.sub(1)
        ops = [lambda: p.valu("v_and_b32", a, 1, lane),
               lambda: p.valu("v_lshlrev_b32", a, 4, a),
               lambda: p.valu("v_mov_b32", b, 0x3F80),
               lambda: p.valu("v_lshlrev_b32", a, a, b),
               lambda: p.valu("v_lshrrev_b32", b, 2, lane),
               lambda: p.valu("v_xor_b32", b, b, lane),
               lambda: p.valu("v_and_b32", b, 12, b),
               lambda: p.valu("v_and_b32", I.sub(4), 2, lane),
               lambda: p.valu("v_or_b32", b, b, I.sub(4)),
               lambda: (p.valu("v_cmp_eq_u32", "vcc", 0, b), p.valu("v_cndmask_b32", I.sub(2), 0, a, "vcc")),
               lambda: (p.valu("v_cmp_eq_u32", "vcc", 2, b), p.valu("v_cndmask_b32", I.sub(3), 0, a, "vcc"))]
        ops += [lambda i=i: p.valu("v_mov_b32", I.sub(i), 0) for i in (0, 1, 4, 5)]
        return [(4, f) for f in ops]

    def pack_row(self, acc, r, dst=None):
        p = self.p
        a = [acc[2 * T + r] for T in range(3)]
        X, Y, Z = dst or (a[0].sub(0, 4), a[1].sub(4, 4), a[2].sub(0, 4))
        q = "quad_perm:[1,0,3,2] row_mask:0xf bank_mask:0xf"
        ops = [(4, lambda v=v, i=i: p.valu("v_cvt_pk_bf16_f32", v.sub(i), v.sub(2 * i), v.sub(2 * i + 1))) for v in (a[1], a[0], a[2]) for i in range(4)]
        ops.append((0, lambda: p.salu("s_mov_b64", "vcc", sEV)))
        ops += [(4, lambda i=i: p.valu("v_cndmask_b32", Y.sub(i), a[0].sub(i), a[2].sub(i), "vcc")) for i in range(4)]
        ops += [(4, lambda i=i: p.valu("v_cndmask_b32_dpp", X.sub(i), a[1].sub(i), a[0].sub(i), "vcc", mods=q)) for i in range(4)]
        ops.append((0, lambda: p.salu("s_not_b64", "vcc", sEV)))
        ops += [(4, lambda i=i: p.valu("v_cndmask_b32_dpp", Z.sub(i), a[1].sub(i), a[2].sub(i), "vcc", mods=q)) for i in range(4)]
        return ops, (X, Y, Z)

    def store_line(self, v, ti, r, k):
        p = self.p
        if 'O' in self.o.get('x_no', ''):
            return
        if r:
            p.salu("s_add_u32", sT3, sTILE[ti], ROWB)
        p.buf_store("buffer_store_dwordx4", v, self.vO, sOUT, sT3 if r else sTILE[ti], 128 * k, flags=self.o.get('osf1' if ti == 1 else 'osf', 'sc1'))

    def phase2(self):
        p, o = self.p, self.o
        S3, S2, J2 = self.S3, self.S2, self.J2
        hs = o.get('hs', 0)
        C2_ = [] if hs else [j for j in range(12) if j not in J2]
        half = lambda v: [v.sub(0, 4), v.sub(4, 4)]
        A = [V(120 + 8 * i, 8) for i in range(6)]
        kl = self.kl
        g7 = self.g7
        assert not g7 or (kl and not hs)
        st2 = [S2[j] for j in J2] + S3[6 - kl + g7:6]
        xs = half(S3[g7]) + half(S3[1 + g7]) + half(st2[6])
        self.id16 = S3[2 + g7].sub(0, 6)
        R0 = [x for v in self.KL + S3[3 + g7:6 - kl + g7] for x in half(v)]
        B = S3[6:12]
        Y = half(st2[0]) + half(st2[1])
        W = regs(st2[2], st2[3], st2[4].sub(0, 4))
        G = st2[5]
        d2 = o.get('d2', 0) and not hs
        GG = [G, st2[6]] if d2 else [G, G]
        ext = half(st2[7])
        ring0 = self.ring2[:2] + (half(S3[0]) if g7 else [V(240, 4), V(244, 4)])
        ring3 = ring0 + ext
        R1 = [self.LN[2].sub(4 * k, 4) for k in range(6)]
        self.ge = Gelu(self, W, sK, sM, 0)
        seq = [(2, j) for j in C2_] + [(0, j) for j in ints(o.get('o0j', '0,1,2,4,3,5,6,7,8,9,10,11'))] + [(1, j) for j in range(12)]
        NE = len(seq)
        pre = [seg() for _ in range(10)]
        for j in range(12):
            pre[j // 2]['mf'] += self.gemm2_16(j, [(A, S3[j], j == 0 and not g7)])
        if g7:
            r00 = ring0[:2]
            for it in pre[0]['mf'][:6]:
                it['reads'][0]['ring'] = r00
            pre[0]['free_from'] = {v.b: 5 for v in ring0[2:]}
        for k, j in enumerate(J2):
            pre[(6, 6, 7, 7, 8, 8, 8, 9)[k]]['mf'] += self.gemm2_16(j, [(B, S2[j], k == 0)])
        for j in range(o.get('nsw', 2), 12):
            pre[j // 2 - 1]['fill'] += self.swaps(*half(S3[j]))
        for k, j in enumerate(J2):
            pre[(5, 5, 4, 3, 7, 7, 7, 8)[k]]['fill'] += self.swaps(*half(S2[j]))
        if hs:
            HB = S3[3:6] + [st2[6]]
            rl = [lambda k=k: self.ws_frag(12 + (k & ~1), lambda so: p.buf_load(
                "buffer_load_dwordx4", HB[k // 2].sub(4 * (k & 1), 4), self.vR, sWS, so, 256 * (k & 1), flags=o.get('rlf', 'nt'))) for k in range(8)]
            pre[9]['vm'] += rl[6:]
            R0, R1 = R1, R0
        else:
            for k in range(3):
                pre[(0, 1, 5)[k]]['fill'] += self.swaps(R1[2 * k], R1[2 * k + 1])
            for k in range(kl):
                pre[(6, 8, 8)[k]]['fill'] += self.swaps(R0[2 * k], R0[2 * k + 1])
            rl = self.reload_ln(0, R0)[2 * kl:]
        pre[2 + g7]['vm'] += rl[:2]
        for k in range(2, 6 - 2 * kl):
            pre[int(o.get('rl0', 3 + g7) + (k - 2) * o.get('rl0s', 0.5))]['vm'].append(rl[k])
        pre[2]['fill'] += self.ident16()
        pre[5]['pre'].append(self.out_map)
        g1 = self.gemm1_16(seq[0][1], R0 if hs else R1, Y, 0)
        for k in range(2):
            m = pre[7 + k]['mf']
            pre[7 + k]['mf'] = [x for i in range(3) for x in m[4 * i:4 * i + 2] + [g1[3 * k + i]] + m[4 * i + 2:4 * i + 4]] + m[12:]
        NP = NE + 2
        P = [seg() for _ in range(NP)]
        P[0] = pre.pop()
        for s in pre + P:
            s['cl'] = 1
        acc = {2: B, 0: A, 1: B, 3: A}
        lns = {2: R1, 0: R0, 1: R1}
        nds = ints(o.get('nd2', '5'))
        yl = regs(*Y)
        ex = [[] for _ in range(NP)]
        late = []
        for s in range(NP):
            S_ = P[s]
            a = self.gemm1_16(seq[s + 1][1], lns[seq[s + 1][0]], Y, 8) if s + 1 < NE else []
            b = list(S_['mf'])
            if 1 <= s <= NE:
                ti, j = seq[s - 1]
                users = [(acc[ti], GG[(s - 1) % 2], ti != 2 and (s == 1 or seq[s - 2][0] != ti))]
                if hs and ti == 0 and j < 4:
                    users.append((B, HB[j], False))
                b = self.gemm2_16(j, users, 'g')
            if s < NE and d2:
                S_['fill'], mk, late = self.period_def(W, yl, 5, regs(GG[s % 2]), s % 2, late, now=s == NE - 1, ph=2)
                if s:
                    for it in b:
                        it['mark'] = mk
            elif s < NE:
                S_['fill'] = self.period_fill(yl, 6 if s in ints(o.get('nd6', 'n' if hs else f'0,{7 + kl - g7},{12 + kl - g7},{19 + kl - g7},{24 + kl - g7}')) else nds[s % len(nds)], G=regs(G), tag='g' if s else None, ph=2)
            S_['ab'] = (a, b)
            S_['tail'] = o.get('t2', 0 if d2 else 32)
            if d2 and 1 <= s < NE:
                S_['head'] = o.get('h2', 32)
        n2 = len(C2_)
        allseg = pre + P
        base = len(pre)
        minl = o.get('minl', 2)
        xs += [st2[4].sub(4, 4)] + R0
        avail = {0: -8, 1: -8, 2: -8, 3: -8, 4: 0, 5: 0, 6: 0}
        avail.update({7 + k: n2 + 11 for k in range(6)})
        hat = {j: seq.index((0, j)) + 1 for j in range(4)}
        if hs:
            avail[4] = avail[5] = hat[3] + 1
        if d2:
            del avail[4], avail[5]
        if kl - g7 == 2:
            avail[4] = avail[5] = -6
        if g7:
            avail[2] = avail[3] = -7
        kl -= g7
        done = {}
        gl, gu = o.get('gl', 1), o.get('gu', 1)
        po = self.po
        want = [(-8, -6 + i // 2, 3, k) for i, k in enumerate(po)]
        rest = []
        for ti, d in (((2, '-4,0.8,1,1'), (0, '7,1.4,12,1.3'), (1, '15,1.1,19,1')) if hs else ((2, f'-4,0.8,{1 + kl},1'), (0, f'{10 + kl},1.6,{16 + kl},1.4'), (1, f'{19 + kl},1.1,{23 + kl},1'))):
            l0, ls_, u0, us = flts(o.get(f'x{ti}', d))
            rest += [(math.floor(l0 + (i - i % gl) * ls_), math.floor(u0 + (i - i % gu) * us), ti, k) for i, k in enumerate(po)]
        want += sorted(rest, key=lambda w: w[:3])
        log = []
        for i, (at, s, ti, k) in enumerate(want):
            if True:
                ok = [b_ for b_ in avail if avail[b_] <= at]
                bi = max(ok, key=lambda b_: (avail[b_], b_)) if ok else min(avail, key=lambda b_: (avail[b_], b_))
                at = max(avail[bi], at)
                s = max(s, at + minl)
                f = lambda buf=xs[bi], ti=ti, k=k: self.load_x1(buf, ti, k)
                vm = allseg[base + at]['vm']
                if gl > 1 and log and log[-1][0] == ti and log[-1][2] == at and i > 2:
                    vm[-1] = (lambda f0=vm[-1], f=f: (f0(), f()))
                else:
                    vm.append(f)
            it = self.resid_item(acc[ti], k, xs[bi])
            (allseg[base + s]['mf'] if s < 0 else ex[s]).append(it)
            avail[bi] = s + 1
            done[(ti, k)] = s
            log.append((ti, k, at, s))
        if o.get('show'):
            print('x (tile, piece, load, use)', log)
        first = {3: -9, 2: -3, 0: n2 + 1, 1: n2 + 13}
        assert all(done[(ti, k)] > first[ti] for ti, k in done), done
        last = {3: -4, 2: max(hat.values()) if hs else n2, 0: n2 + 12, 1: NE}
        free = {3: n2, 2: n2 + 12, 0: NP - 1, 1: NP - 1}
        r1_free = [hat[k // 2] + 1 for k in range(6)] if hs else [n2 - 1] * 6
        olog = []
        for ti, d in (((3, '-3,0.7'), (2, '6,1.3'), (0, '15,1.7'), (1, '25,0')) if hs else ((3, '-3,1'), (2, f'{7 + kl},1.8'), (0, f'{19 + kl},1.7'), (1, f'{29 + kl},0'))):
            o0, st = flts(o.get(f'o{ti}', d))
            for r in range(2):
                ts = [math.floor(o0 + (3 * r + k) * st) for k in range(3)]
                s = min(max([ts[0], last[ti] + 1] + [done[(ti, 2 * T + r)] + 1 for T in range(3)]), free[ti])
                ts = [max(t_, s) for t_ in ts]
                dst = None
                if ts[2] > free[ti]:
                    assert ti == 3 and s >= n2 - 1 and not hs
                    dst = R1[3 * r:3 * r + 3]
                    r1_free[3 * r:3 * r + 3] = [t_ + 1 for t_ in ts]
                ops, V3 = self.pack_row(acc[ti], r, dst)
                for k in range(3):
                    f = lambda v=V3[k], ti=ti, r=r, k=k: self.store_line(v, ti, r, k)
                    if ts[k] == s:
                        ops.append((0, lambda f=f: self.gq.append(f)))
                    else:
                        allseg[base + ts[k]]['vm'].append(f)
                olog.append((ti, r, s, ts))
                if s < 0:
                    allseg[base + s]['fill'] += ops
                    allseg[base + s]['head'] = -24
                elif s < NE:
                    f = P[s]['fill']
                    assert not P[s].get('packed')
                    P[s]['packed'] = True
                    cut = next((i for i, x in enumerate(f) if len(x) > 2), len(f) - 8)
                    P[s]['fill'] = f[:8] + merge(f[8:cut - 4], ops) + f[cut - 4:]
                else:
                    P[s]['fill'] += ops + [(0, self.flush)]
        if o.get('show'):
            print('out (tile, row, pack, stores)', olog)
        for k, f in enumerate(self.reload_ln(1, R1)):
            t_ = max(int(o.get('rl1', 2 if hs else 3 + kl) + k * o.get('rl1s', 1)), r1_free[k])
            assert t_ <= n2 + 9
            P[t_]['vm'].append(f)
        for s in range(NP):
            a, b = P[s].pop('ab')
            src = {'a': a, 'b': b, 'x': ex[s]}
            P[s]['mf'] = [src[c].pop(0) for c in ((o.get('ord', 'aaxaaxaabbbbbb') if d2 and s else 'bbabxababbxaaa') + 'x' * 6) if src[c]]
            if d2 and s == 0:
                P[s]['tail'] = 32
            assert not any(src.values())
            if s == NE and o.get('rf', 1):
                its = [it for it in P[s]['mf'] if it['reads']]
                keep = []
                A_ = dict(reads=[it['reads'][0] for it in its], tag='r0',
                          emit=[(lambda *w, k=k, it=it: (keep.append(w[k]), it['emit'][0](w[k]))) for k, it in enumerate(its)])
                B_ = dict(reads=[], emit=[(lambda k=k, it=it: it['emit'][1](keep[k])) for k, it in enumerate(its)])
                P[s]['mf'] = [it for it in P[s]['mf'] if not it['reads']] + [A_, B_]
                f = P[s + 1]['fill']
                h = next(i for i, x in enumerate(f) if x[1] == self.flush) + 1
                P[s]['fill'] += [x + ('r0',) for x in f[:h]]
                P[s + 1]['fill'] = f[h:]
                P[s]['tail'] = 0
            if s >= 1:
                P[s]['ring'] = ring3
        n_pre = sum(len(s['mf']) for s in pre + P[:1])
        for s in P[1:]:
            s['free_from'] = {v.b: n_pre - 1 for v in ext}
        self.touches(allseg, o.get('t2s', 'n'), S3[2 + g7].sub(7), base)
        for k in ints(o.get('ca2', 'n')):
            P[k]['end'].append(lambda k=k: self.code_again(W[0], f'b{k}'))
        lc = o.get('lc2', 3)
        for a in range(o.get('l2a', 0), NP - o.get('l2e', 8), lc):
            self.ladder(P, a, a + lc, flts(o.get('pf2', '0,0.4,0.7,0.9')))
        for k in ints(o.get('ssp', '0,6,12,18,24' if o.get('dbg') else '0,3,6,10,14,18,22,24')):
            P[k]['end'].append(self.sstamp)
        p.raw(f"s_setprio {o.get('pp', 3)}")
        p.lds_age = o.get('age2', 24)
        self.imm = o.get('imm2', 99)
        self.run(allseg, ring0)
        if o.get('stamps'):
            p.raw('s_waitcnt vmcnt(0)')
        self.stamp(96)
        self.sstamp_flush(100)
        self.mark_flush()
        self.pad('padend')

    def build(self):
        self.alloc()
        self.vW1g, self.vW1r, self.vW1w = V(189), V(190), V(191)
        self.p.lines.append("Lmain:")
        self.prologue()
        self.phase1()
        self.gap()
        self.phase2()
        self.p.raw("s_endpgm")
        self.poll_routine()
        self.p.lines.append("Lend:")
        self.p.raw("s_endpgm")
        return self.p


HEADER = open('standalone__modern_conv_block_convnext_v2__vision.s.ref').read().split('; Override launch')[0]


def wrap(p):
    return f"""{HEADER}; Generated by gen/gen2.py (hand-written generator; see gen/asmgen.py, gen/engine.py, gen/gelu.py)
; @launch grid=(256,1,1) block=(512,1,1) lds={LDS_BYTES}
.amdgcn_target "amdgcn-amd-amdhsa--gfx950"
.text
.globl {NAME}
.p2align 8
.type {NAME},@function
{NAME}:
{p.text()}
.section .rodata,"a"
.p2align 6
.amdhsa_kernel {NAME}
  .amdhsa_next_free_vgpr 256
  .amdhsa_next_free_sgpr 102
  .amdhsa_accum_offset 256
  .amdhsa_group_segment_fixed_size 0
  .amdhsa_kernarg_size 72
  .amdhsa_user_sgpr_count 2
  .amdhsa_user_sgpr_kernarg_segment_ptr 1
  .amdhsa_system_sgpr_workgroup_id_x 1
.end_amdhsa_kernel
"""


def generate(out, args):
    opt = {}
    for a in args:
        k, v = a.split('=')
        try:
            opt[k] = int(v)
        except ValueError:
            try:
                opt[k] = float(v)
            except ValueError:
                opt[k] = v
    g = Gen(opt)
    p = g.build()
    from align import align_dp
    al = align_dp(p.lines)
    open(out, 'w').write(wrap(p))
    print(out, 'align', al, 'instructions', sum(p.stats.values()), 'stamps', g.nstamp,
          {k: v for k, v in p.stats.items() if k in ('s_nop', 's_waitcnt', 'ds_read_b128') or 'mfma' in k})


if __name__ == '__main__':
    generate(sys.argv[1], sys.argv[2:])
```

```python
import sys, os
from gen2 import generate
pre, common = sys.argv[1], sys.argv[2].split()
fs = []
for k, v in enumerate(sys.argv[3:], 1):
    f = f't/{pre}{k}.s'
    if os.path.exists(f): os.remove(f)
    d = dict(a.split('=') for a in common + v.split())
    generate(f, [f'{a}={b}' for a, b in d.items()])
    fs.append(f't/{pre}{k}.s')
print(' '.join(fs)); print(', '.join(f'"{f}"' for f in fs))
```

```python
import math
import struct
import sys

from gelu import *

NAME = 'standalone__modern_conv_block_convnext_v2__vision_kernel'


def f2u(x):
    return struct.unpack('<I', struct.pack('<f', x))[0]


C2 = -2 * math.sqrt(2 / math.pi) * math.log2(math.e)
C1 = C2 * 0.044715
KH = 0x44EA
GK = 4.9140625
GA = C2 / GK
GC = C1 / GA ** 3

H0, H1 = 0x1F00, 0x3F00
BT0, BT1 = H0, H1
CNT = H1 + 128
E_ROW, E_FREE, E_W1, E_W1B, E_ROWA = 12, 16, 20, 24, 28
W1F = 16384
W2R = 90112
RP = 6656
DIAG = W2R + 10 * RP
TABO = 7168
LDS_BYTES = 163840
WS_TOT = 96 * 256 * 16
WS_STAMP = 1 << 20
WS_LN = 4 << 20
WS_BYTES = 80 << 20
OOB_V = 0x80000000
OOB_S = 0x40000000
X_BYTES = 512 * 512 * 96 * 2
ROWB = 512 * 192
REP = 8

sX, sOUT, sW1, sW2, sDW, sGA, sBE, sWS, sDBG = [S(4 + 4 * i, 4) for i in range(9)]
sWAVE, sX0, sY0, sT0, sT1, sT2, sT3 = [S(40 + i) for i in range(7)]
sK, sM = S(48), S(49)
sYB, sXM, sROWT = S(66), S(67), S(47)
sW1L, sW1G = S(77), S(3)
sRED = S(3)
sTILE = [S(68 + i) for i in range(4)]
sPRIV = S(72)
sSTAMP = S(73)
sEX = S(74, 2)
sEV = sEX
sCNT = S(76)
sROLE = S(77)
sRET = S(78, 2)
sLNB, sW2B = S(80), S(82)
sLD = S(80, 16)
sTM = S(96, 2)
sRT = S(98, 2)


def ints(s):
    return [int(x) for x in str(s).split(',') if x not in ('', 'n')]


def flts(s):
    return [float(x) for x in str(s).split(',') if x not in ('', 'n')]


class Gen(Engine):
    def __init__(self, opt):
        super().__init__(opt)
        self.nstamp = 0
        self.ss = []
        self.mk = []
        self.nrow = self.nready = 0

    def stamp(self, tb):
        if not self.o.get('stamps'):
            self.nmk = getattr(self, 'nmk', 0) + 1
            if True:
                self.mark()
            return
        p = self.p
        t = V(tb, 4)
        p.raw(f"s_memtime {sTM}")
        p.raw(f"s_memrealtime {sRT}")
        p.raw("s_waitcnt lgkmcnt(0)")
        p.lgkm_done = p.lgkm_seq
        for i in range(4):
            p.valu("v_mov_b32", t.sub(i), S(sTM.b + i))
        p.raw("s_mov_b64 exec, 1")
        p.buf_store("buffer_store_dwordx4", t, self.vA[0], sWS, sSTAMP, 16 * self.nstamp)
        p.raw("s_mov_b64 exec, -1")
        p.nop(2)
        self.nstamp += 1

    def mark(self):
        if not self.o.get('dbg'):
            return
        p = self.p
        r = S((84, 86, 88, 90, 92, 94, 50, 52, 54, 56, 58, 60, 62, 64)[len(self.mk)], 2)
        self.mk.append(r)
        p.raw(f"s_memrealtime {r}")
        p.raw("s_waitcnt lgkmcnt(0)")
        p.lgkm_done = p.lgkm_seq

    def mark_flush(self):
        if not self.o.get('dbg'):
            return
        p = self.p
        p.raw("s_waitcnt vmcnt(0)")
        self.mark()
        p.salu("s_and_b32", sT0, S(2), 0x78)
        p.salu("s_and_b32", sT1, sWAVE, 3)
        p.salu("s_or_b32", sT0, sT0, sT1)
        p.salu("s_cmp_lg_u32", sT0, 0)
        p.raw("s_cbranch_scc1 Lend")
        p.raw("s_mov_b64 exec, 1")
        p.salu("s_not_b32", sT0, S(100))
        p.valu("v_mov_b32", V(96), sT0)
        p.raw(f"buffer_atomic_umax v96, {self.vA[0]}, {sDBG}, 0 offen offset:4")
        for k, r in enumerate(self.mk):
            p.valu("v_mov_b32", V(97 + k), r.sub(0))
            p.raw(f"buffer_atomic_umax v{97 + k}, {self.vA[0]}, {sDBG}, 0 offen offset:{8 + 4 * k}")

    def pad(self, where):
        t = self.o.get('x_' + where)
        if not t:
            return
        p = self.p
        p.raw("s_waitcnt vmcnt(0) lgkmcnt(0)")
        p.lines.append(f"Lpad{where}:")
        p.raw("s_sleep 2")
        p.raw("s_memrealtime s[98:99]")
        p.raw("s_waitcnt lgkmcnt(0)")
        p.salu("s_sub_u32", S(98), S(98), S(100))
        p.salu("s_cmp_lt_u32", S(98), t)
        p.raw(f"s_cbranch_scc1 Lpad{where}")
        p.lgkm_done, p.vm_done = p.lgkm_seq, p.vm_seq

    def sstamp(self, where='p2'):
        if not self.o.get('stamps') or self.o.get('fine', 'p2') != where:
            if where == 'p2':
                self.mark()
            return
        p = self.p
        k = len(self.ss)
        self.ss.append(S((50, 52, 54, 56, 58, 60, 84, 86, 88, 90, 92, 94)[k], 2))
        p.raw(f"s_memtime {self.ss[-1]}")
        p.raw("s_waitcnt lgkmcnt(0)")
        p.lgkm_done = p.lgkm_seq

    def sstamp_flush(self, tb):
        p = self.p
        t = V(tb, 4)
        if self.o.get('stamps'):
            for i in range(4):
                p.valu("v_mov_b32", t.sub(i), S(62 + i))
            p.raw("s_mov_b64 exec, 1")
            p.buf_store("buffer_store_dwordx4", t, self.vA[0], sWS, sSTAMP, 0)
            p.raw("s_mov_b64 exec, -1")
            p.nop(2)
            p.raw("s_getreg_b32 s100, hwreg(HW_REG_XCC_ID)")
            p.raw("s_getreg_b32 s101, hwreg(HW_REG_HW_ID)")
            self.ss.append(S(100, 2))
        for r in self.ss:
            p.valu("v_mov_b32", t.sub(0), r.sub(0))
            p.valu("v_mov_b32", t.sub(1), r.sub(1))
            p.valu("v_mov_b32", t.sub(2), sRT.sub(0))
            p.valu("v_mov_b32", t.sub(3), sRT.sub(1))
            p.raw("s_mov_b64 exec, 1")
            p.buf_store("buffer_store_dwordx4", t, self.vA[0], sWS, sSTAMP, 16 * self.nstamp)
            p.raw("s_mov_b64 exec, -1")
            p.nop(2)
            self.nstamp += 1

    def frag(self, byte, ring=None):
        return rd128(self.vA[byte >> 16], byte & 0xFFFF, ring)

    def srd(self, d, ptr, nbytes):
        p = self.p
        p.salu("s_mov_b32", d.sub(0), ptr.sub(0))
        p.salu("s_and_b32", d.sub(1), ptr.sub(1), 0xFFFF)
        p.salu("s_mov_b32", d.sub(2), nbytes)
        p.salu("s_mov_b32", d.sub(3), 0x20000)

    def row_off(self, dst, base, delta):
        p = self.p
        p.salu("s_add_i32", sT0, base, delta)
        p.salu("s_mul_i32", sT1, sT0, ROWB)
        p.salu("s_cmp_lt_u32", sT0, 512)
        p.salu("s_cselect_b32", dst, sT1, OOB_S)

    def lane_sum64(self, v, t):
        p = self.p
        for r in (8, 4, 2, 1):
            p.valu("v_add_f32_dpp", v, v, v, mods=f"row_ror:{r} row_mask:0xf bank_mask:0xf")
        p.valu("v_mov_b32", t, v)
        p.swap16(v, t)
        p.valu("v_add_f32", v, v, t)
        p.valu("v_mov_b32", t, v)
        p.swap32(v, t)
        p.valu("v_add_f32", v, v, t)

    def cond(self, cmp, a, b, label, body, skip_on=1):
        p = self.p
        p.salu(cmp, a, b)
        p.raw(f"s_cbranch_scc{skip_on} {label}")
        p.cond_begin()
        body()
        tok = p.cond_end()
        p.lines.append(f"{label}:")
        return tok

    def spin_guard(self, exit_label):
        p = self.p
        p.salu("s_cmp_eq_u32", sCNT, 0)
        p.salu("s_cbranch_scc1", exit_label)
        p.salu("s_sub_u32", sCNT, sCNT, 1)

    def lds_spin(self, a, t, off, target, tag):
        p = self.p
        p.valu("v_mov_b32", a, CNT)
        p._mem_issue([a.b], [t.b])
        p.lines.append(f"L{tag}w:")
        p.raw(f"ds_read_b32 {t}, {a} offset:{off}")
        p.raw("s_waitcnt lgkmcnt(0)")
        p.lgkm_done = p.lgkm_seq
        p.raw(f"v_readfirstlane_b32 {sT0}, {t}")
        self.spin_guard(f"L{tag}x")
        p.raw(f"s_cmp_lt_u32 {sT0}, {target}")
        p.raw(f"s_cbranch_scc0 L{tag}x")
        p.raw("s_sleep 2")
        p.raw(f"s_branch L{tag}w")
        p.lines.append(f"L{tag}x:")

    def signal(self, off):
        p = self.p
        p.raw("s_mov_b64 exec, 1")
        p.raw(f"ds_add_u32 {self.vCN}, {self.vONE} offset:{off}")
        p.raw("s_mov_b64 exec, -1")
        p.lgkm_seq += 1

    def ev_read(self, off):
        assert getattr(self, 'ev_open', None) is None
        self.ev_open = off
        self.p.ds_read("ds_read_b32", self.vEV, self.vCN, off)

    def ev_wait(self, off, target):
        p = self.p
        assert self.ev_open == off
        self.ev_open = None
        self.nev = getattr(self, 'nev', 0) + 1
        tag = f"Lev{self.nev}"
        p.valu("v_readfirstlane_b32", sT0, self.vEV)

        def slow():
            p.lines.append(f"{tag}w:")
            p.raw("s_sleep 1")
            p.raw(f"ds_read_b32 {self.vEV}, {self.vCN} offset:{off}")
            p.raw("s_waitcnt lgkmcnt(0)")
            p.raw(f"v_readfirstlane_b32 {sT0}, {self.vEV}")
            self.spin_guard(tag)
            p.raw(f"s_cmp_lt_u32 {sT0}, {target}")
            p.raw(f"s_cbranch_scc1 {tag}w")
        self.cond("s_cmp_ge_u32", sT0, target, tag, slow)

    def alloc(self):
        o = self.o
        self.S3 = [V(8 * i, 8) for i in range(12)]
        self.CA = V(0, 48)
        self.LN = [V(48, 24), V(72, 24), V(96, 24), V(168, 24)]
        self.Y = V(120, 16)
        self.W = regs(V(136, 20))
        self.SQ = [V(156 + i) for i in range(12)]
        self.ls = [V(168, 2), V(170, 2), V(172, 2)]
        self.rb = [V(192 + 4 * i, 4) for i in range(o.get('nrb', 6))]
        self.D0 = V(192, 16)
        self.A0 = [V(48 + 4 * i, 4) for i in range(18)]
        self.idf = [V(240, 4), V(244, 4)]
        self.ring2 = [V(224 + 4 * i, 4) for i in range(4)]
        self.ring1 = self.ring2 + [V(216, 4), V(220, 4)]
        self.vX, self.vL = V(240), V(241)
        self.vB = [V(242), V(243), V(244)]
        self.vC = [V(245), V(246)]
        self.tq = [V(247), V(252), V(253), V(254), V(255)]
        self.vCN, self.vONE, self.vEV = V(253), V(254), V(247)
        self.vA = [V(248), V(249), V(250)]
        self.vLane = V(251)
        self.vG, self.vR, self.vBias = V(252), V(253), V(254)
        self.g7 = 1 if o.get('g7', 0 if o.get('hs') else 2) else 0
        self.kl = o.get('kl', 0 if o.get('hs') else 2)
        keep, dst = [V(208, 8), V(216, 8)], [V(168 + 8 * k, 8) for k in range(5)] + [V(240, 8)] * self.g7 + [V(232, 8)]
        if o.get('g7', 0 if o.get('hs') else 2) == 2:
            keep.insert(0, self.S3[11])
            self.S3[11] = dst.pop(0)
        self.KL, keep = keep[:self.kl], keep[self.kl:]
        self.nk = len(keep)
        self.JG = list(range(12 - self.nk - len(dst), 12 - self.nk))
        self.J2 = self.JG + list(range(12 - self.nk, 12))
        self.S2 = dict(zip(self.J2, dst + keep))
        self.vTAB = V(255)
        self.ge = Gelu(self, self.W, sK, sM, 0)
        self.po = ints(o.get('po', '0,2,4,1,3,5'))
        self.vO = V(255)
        self.fsh = 18 if o.get('smap', 0) else 21

    def rows_dma(self, rows):
        p = self.p
        for r in rows:
            p.salu("s_add_u32", "m0", sXM, ((r + 1) % 10) * RP)
            if r > 0:
                p.salu("s_add_u32", sT2, sYB, r * ROWB)
            p.dma(self.vX, sX, sT3 if r < 0 else (sT2 if r else sYB), flags='nt' if r < self.o.get('ntrows', 9) else '')

    def row_dma_fast(self, r):
        p = self.p
        p.salu("s_add_u32", "m0", sXM, ((r + 1) % 10) * RP)
        p.salu("s_add_u32", sYB, sYB, ROWB)
        self.nrow += 1
        self.x_tok = p.dma(self.vX, sX, sYB, flags='nt' if r < self.o.get('ntrows', 9) else '')

    def gelu_table(self, tid):
        p = self.p
        y = [V(0 + i) for i in range(8)]
        t = [V(8 + i) for i in range(8)]
        r = [V(16 + i) for i in range(8)]
        a, b = V(24), V(25)
        pn, pp = V(28, 4), V(32, 4)
        p.valu("v_lshlrev_b32", a, 6, tid)
        p.salu("s_mov_b32", sT0, f2u(GC))
        p.valu("v_mov_b32", b, f2u(GK))
        for i in range(8):
            p.valu("v_add_u32", y[i], 0x8004 + 8 * i, a)
        for i in range(8):
            p.valu("v_cvt_f32_f16", y[i], y[i])
        for i in range(8):
            p.valu("v_mul_f32", t[i], y[i], y[i])
        for i in range(8):
            p.valu("v_fma_f32", t[i], t[i], sT0, b)
        for i in range(8):
            p.valu("v_mul_f32", t[i], y[i], t[i])
        for i in range(8):
            p.valu("v_exp_f32", t[i], t[i])
        for i in range(8):
            p.valu("v_add_f32", r[i], "1.0", t[i])
        for i in range(8):
            p.valu("v_rcp_f32", r[i], r[i])
        for i in range(8):
            p.valu("v_mul_f32", y[i], y[i], r[i])
        for i in range(8):
            p.valu("v_mul_f32", t[i], t[i], y[i])
        for i in range(4):
            p.valu("v_cvt_pk_f16_f32", pn.sub(i), y[2 * i], y[2 * i + 1])
            p.valu("v_cvt_pk_f16_f32", pp.sub(i), f"-{t[2 * i]}", f"-{t[2 * i + 1]}")
        tb = self.o.get('tbits', 0)
        for r_ in (regs(pn, pp) if tb else []):
            p.valu("v_add_u32", r_, (1 << (tb - 1)) * 0x10001, r_)
            p.valu("v_and_b32", r_, (0xFFFF & ~((1 << tb) - 1)) * 0x10001, r_)
        p.valu("v_lshlrev_b32", a, 4, tid)
        p.valu("v_mov_b32", b, LDS_BYTES)
        p.salu("s_movk_i32", sT0, 496)
        p.valu("v_cmp_gt_u32", "vcc", sT0, tid)
        p.valu("v_cndmask_b32", a, b, a, "vcc")
        p.ds_write("ds_write_b128", a, pp)
        p.ds_write("ds_write_b128", a, pn, 8192)

    def prologue(self):
        p, o = self.p, self.o
        p.salu("s_cmp_ge_u32", S(2), 256)
        p.raw("s_cbranch_scc1 Lend")
        p.raw(f"s_load_dwordx16 {sLD}, s[0:1], 0")
        p.raw(f"s_load_dwordx2 {sTM}, s[0:1], 64")
        if o.get('dbg') or any(k.startswith('x_pad') for k in o):
            p.raw("s_memrealtime s[100:101]")
        if o.get('stamps'):
            p.raw("s_memtime s[62:63]")
            p.raw("s_memrealtime s[64:65]")
        lane = self.vLane
        tid = V(199)
        t = [V(120 + i) for i in range(40)]
        if o.get('pf0', 1):
            p.raw(f"s_getpc_b64 {sEX}")
            p.lines.append("Lpc0:")
            p.raw(f"s_sub_u32 {sEX.sub(0)}, {sEX.sub(0)}, Lpc0-Lmain")
            p.raw(f"s_subb_u32 {sEX.sub(1)}, {sEX.sub(1)}, 0")
            p.valu("v_lshlrev_b32", t[39], 7, V(0))
            p.salu("s_movk_i32", sT0, o.get('pf0n', 64))
            p.valu("v_cmp_gt_u32", "vcc", sT0, V(0))
            p.raw(f"s_and_saveexec_b64 {sRET}, vcc")
            p.raw("s_cbranch_execz Lpf0x")
            p.raw(f"global_load_dword {self.tq[4]}, {t[39]}, {sEX}")
            p.lines.append("Lpf0x:")
            p.raw(f"s_mov_b64 exec, {sRET}")
        p.valu("v_mov_b32", tid, V(0))
        p.valu("v_and_b32", lane, 63, V(0))
        p.valu("v_lshrrev_b32", t[0], 6, V(0))
        p.valu("v_readfirstlane_b32", sWAVE, t[0])
        mw = o.get('mw', 4)
        p.salu("s_and_b32", sT0, S(2), 7)
        p.salu("s_lshr_b32", sT1, S(2), 3)
        p.salu("s_and_b32", sX0, sT0, (16 >> mw) - 1)
        p.salu("s_lshl_b32", sX0, sX0, mw)
        p.salu("s_and_b32", sT2, sT1, (1 << mw) - 1)
        p.salu("s_add_u32", sX0, sX0, sT2)
        p.salu("s_lshr_b32", sY0, sT0, 4 - mw)
        p.salu("s_lshl_b32", sY0, sY0, 5 - mw)
        p.salu("s_lshr_b32", sT2, sT1, mw)
        p.salu("s_add_u32", sY0, sY0, sT2)
        p.salu("s_lshl_b32", sX0, sX0, 5)
        p.salu("s_lshl_b32", sY0, sY0, 5)
        p.salu("s_lshl_b32", sXM, sWAVE, 6)
        p.salu("s_cmp_eq_u32", sWAVE, 6)
        p.salu("s_cselect_b32", sXM, 352, sXM)
        p.valu("v_add_u32", t[5], sXM, lane)
        p.valu("v_mul_u32_u24", t[1], 5462, t[5])
        p.valu("v_lshrrev_b32", t[1], 16, t[1])
        p.valu("v_mul_u32_u24", t[2], 12, t[1])
        p.valu("v_sub_u32", t[2], t[5], t[2])
        p.valu("v_bfe_u32", t[3], t[1], 2, 2)
        p.valu("v_xor_b32", t[2], t[2], t[3])
        p.valu("v_add_u32", t[3], sX0, t[1])
        p.valu("v_subrev_u32", t[3], 1, t[3])
        p.valu("v_mul_u32_u24", t[4], 192, t[3])
        p.valu("v_lshl_add_u32", t[4], t[2], 4, t[4])
        p.valu("v_mov_b32", self.vX, OOB_V)
        p.salu("s_movk_i32", sT0, 512)
        p.valu("v_cmp_gt_u32", "vcc", sT0, t[3])
        p.valu("v_cndmask_b32", t[4], self.vX, t[4], "vcc")
        p.valu("v_cmp_gt_u32", "vcc", 34, t[1])
        p.valu("v_cndmask_b32", self.vX, self.vX, t[4], "vcc")
        self.row_off(sT3, sY0, -1)
        p.salu("s_mul_i32", sYB, sY0, ROWB)
        p.salu("s_mov_b32", sX.sub(2), X_BYTES)
        p.salu("s_mov_b32", sX.sub(3), 0x20000)
        p.salu("s_lshl_b32", sXM, sXM, 4)
        p.salu("s_add_u32", sXM, sXM, W2R)
        p.salu("s_cmp_eq_u32", sWAVE, 7)
        p.salu("s_cselect_b32", sXM, LDS_BYTES, sXM)
        dv, di, ad = t[6:10], t[32:36], t[36:40]
        p.valu("v_lshlrev_b32", t[10], 1, tid)
        p.valu("v_add_u32", di[3], 768, tid)
        p.valu("v_min_u32", di[3], 863, di[3])
        p.valu("v_lshlrev_b32", t[11], 1, di[3])
        p.raw("s_waitcnt lgkmcnt(0)")
        self.sstamp('s0')
        p.salu("s_mov_b32", sX.sub(0), sLD.sub(0))
        p.salu("s_and_b32", sX.sub(1), sLD.sub(1), 0xFFFF)

        def dw_loads():
            self.srd(sDW, sLD.sub(2, 2), 1728)
            for r in range(4):
                p.raw(f"buffer_load_ushort {dv[r]}, {t[10 + r // 3]}, {sDW}, 0 offen offset:{512 * (r % 3)}")
        self.cond("s_cmp_ge_u32", sWAVE, 4, "Lnodw", dw_loads)
        self.cond("s_cmp_eq_u32", sWAVE, 7, "Lskipx0", lambda: self.rows_dma(range(-1, 5)))
        self.sstamp('s0')
        self.srd(sW1, sLD.sub(4, 2), 73728)
        if o.get('pw1', 0):
            def pw1():
                p.salu("s_lshr_b32", sT0, S(2), 3)
                p.salu("s_mul_i32", sT0, sT0, 18 * 128)
                p.valu("v_min_u32", t[5], 17, lane)
                p.valu("v_lshlrev_b32", t[5], 7, t[5])
                p.raw(f"buffer_load_dword {self.tq[4]}, {t[5]}, {sW1}, {sT0} offen")
            self.cond("s_cmp_lg_u32", sWAVE, 7, "Lnopw1", pw1)
        if o.get('pf', 1) == 2:
            self.code_prefetch()
        p.valu("v_lshrrev_b32", self.vW1g, 2, lane)
        p.valu("v_mul_u32_u24", self.vW1g, 768, self.vW1g)
        p.valu("v_and_b32", t[5], 3, lane)
        p.valu("v_lshl_add_u32", self.vW1g, t[5], 4, self.vW1g)
        p.salu("s_and_b32", sT0, sWAVE, 3)
        p.salu("s_lshl_b32", sW1G, sT0, 6)
        p.salu("s_mul_i32", sW1L, sT0, 6144)
        p.salu("s_add_u32", sW1L, sW1L, W1F)
        p.valu("v_mov_b32", self.vCN, CNT)
        p.valu("v_mov_b32", self.vONE, 1)

        tok_a = p.vm_seq
        p.salu("s_add_u32", sT0, sY0, sWAVE)
        p.salu("s_add_u32", sT0, sT0, 1)
        p.salu("s_lshl_b32", sT0, sT0, 9)
        p.salu("s_add_u32", sT0, sT0, sX0)
        p.salu("s_mul_i32", sROWT, sT0, 192)
        p.salu("s_sub_u32", sROWT, sROWT, 256)
        p.salu("s_and_b32", sT0, sWAVE, 1)
        p.salu("s_lshl_b32", sT3, sT0, 4)
        p.salu("s_add_u32", sX0, sX0, sT3)
        p.salu("s_and_b32", sT0, sWAVE, 6)
        p.salu("s_add_u32", sY0, sY0, sT0)
        p.salu("s_mul_i32", sT2, sT0, RP)
        p.salu("s_add_u32", sT2, sT2, W2R)
        m, g = t[11], t[12]
        p.valu("v_and_b32", m, 15, lane)
        p.valu("v_lshrrev_b32", g, 4, lane)
        p.valu("v_mul_u32_u24", t[2], RP, g)
        p.valu("v_add_u32", t[2], sT2, t[2])
        p.valu("v_add_u32", t[1], sT3, m)
        for dx in range(3):
            if dx:
                p.valu("v_add_u32", t[1], 1, t[1])
            p.valu("v_mul_u32_u24", t[3], 192, t[1])
            p.valu("v_bfe_u32", t[4], t[1], 2, 2)
            p.valu("v_lshl_add_u32", t[3], t[4], 4, t[3])
            p.valu("v_add_u32", self.vB[dx], t[2], t[3])
        p.salu("s_mul_i32", sPRIV, sWAVE, 9216)
        p.salu("s_add_u32", sPRIV, sPRIV, W2R)
        p.valu("v_bfe_u32", t[13], m, 2, 1)
        p.valu("v_sub_u32", t[13], g, t[13])
        p.valu("v_lshrrev_b32", t[14], 3, m)
        p.valu("v_and_b32", t[15], 3, m)
        p.valu("v_lshl_add_u32", t[15], t[14], 2, t[15])
        p.valu("v_lshlrev_b32", t[16], 7, t[13])
        p.valu("v_lshl_add_u32", t[16], t[15], 4, t[16])
        p.valu("v_add_u32", t[16], DIAG, t[16])
        p.valu("v_mov_b32", t[15], LDS_BYTES)
        p.valu("v_cmp_gt_u32", "vcc", 3, t[13])
        p.valu("v_cndmask_b32", self.vC[0], t[15], t[16], "vcc")
        p.valu("v_and_b32", t[15], 3, m)
        p.valu("v_mul_u32_u24", self.vC[1], 0x55, t[15])
        self.srd(sW2, sLD.sub(6, 2), 73728)
        self.srd(sGA, sLD.sub(8, 2), 768)
        self.srd(sBE, sLD.sub(10, 2), 768)
        self.srd(sOUT, sLD.sub(12, 2), X_BYTES)
        self.srd(sDBG, sLD.sub(14, 2), 256)
        self.srd(sWS, sTM, WS_BYTES)
        p.valu("v_lshlrev_b32", self.vL, 4, lane)
        p.valu("v_and_b32", t[13], 0x23, lane)
        p.valu("v_bfe_u32", t[14], lane, 2, 2)
        p.valu("v_lshl_add_u32", t[13], t[14], 3, t[13])
        p.valu("v_bfe_u32", t[14], lane, 4, 1)
        p.valu("v_lshl_add_u32", t[13], t[14], 2, t[13])
        p.valu("v_lshlrev_b32", self.vA[0], 4, t[13])
        p.valu("v_add_u32", self.vA[1], 0x10000, self.vA[0])
        p.valu("v_add_u32", self.vA[2], 0x20000, self.vA[0])
        p.salu("s_lshl_b32", sSTAMP, S(2), 3)
        p.salu("s_add_u32", sSTAMP, sSTAMP, sWAVE)
        if o.get('smap', 0):
            p.salu("s_and_b32", sT0, S(2), 7)
            p.salu("s_mul_i32", sT0, sT0, 3 << 10)
            p.salu("s_and_b32", sT1, S(2), 0xF8)
            p.salu("s_add_u32", sT0, sT0, sT1)
            p.salu("s_add_u32", sLNB, sT0, sWAVE)
            p.salu("s_lshl_b32", sLNB, sLNB, 10)
        elif o.get('rot', 0):
            p.salu("s_lshr_b32", sT0, S(2), 5)
            p.salu("s_add_u32", sT0, sT0, S(2))
            p.salu("s_and_b32", sT0, sT0, 7)
            p.salu("s_and_b32", sT1, S(2), 0xF8)
            p.salu("s_or_b32", sT0, sT0, sT1)
            p.salu("s_lshl_b32", sT0, sT0, 3)
            p.salu("s_add_u32", sLNB, sT0, sWAVE)
            p.salu("s_lshl_b32", sLNB, sLNB, 10)
        else:
            p.salu("s_lshl_b32", sLNB, sSTAMP, 10)
        p.salu("s_add_u32", sLNB, sLNB, WS_LN)
        p.salu("s_mul_i32", sSTAMP, sSTAMP, 16 * o.get('stamps', 1))
        p.salu("s_add_u32", sSTAMP, sSTAMP, WS_STAMP)
        p.salu("s_mul_i32", sT3, sX0, 192)
        for ti in range(4):
            p.salu("s_add_u32", sT0, sY0, 8 * ti)
            p.salu("s_mul_i32", sT0, sT0, ROWB)
            p.salu("s_add_u32", sTILE[ti], sT0, sT3)
        p.salu("s_mul_i32", sW2B, sWAVE, 9216)
        p.salu("s_mov_b32", sK, KH * 0x10001)
        p.salu("s_mov_b32", sM, 0xFFF8FFF8)
        p.salu("s_mov_b32", sCNT, 400000)
        p.valu("v_lshrrev_b32", t[28], 5, lane)
        p.valu("v_lshlrev_b32", self.vW1r, 8, t[28])
        for sh, w, up in ((2, 2, 6), (4, 1, 5), (0, 1, 4), (1, 1, 3)):
            p.valu("v_bfe_u32", t[28], lane, sh, w)
            p.valu("v_lshl_add_u32", self.vW1r, t[28], up, self.vW1r)
        p.valu("v_add_u32", self.vW1r, sW1L, self.vW1r)
        p.valu("v_add_u32", self.vW1w, sW1L, self.vA[0])
        later = p.vm_seq - tok_a
        self.sstamp('s0')

        def young():
            self.gelu_table(tid)

        def old():
            for r in range(4):
                if r < 3:
                    p.valu("v_add_u32", di[r], 256 * r, tid)
                p.valu("v_mul_u32_u24", t[20], 683, di[r])
                p.valu("v_lshrrev_b32", t[20], 16, t[20])
                p.valu("v_mul_u32_u24", t[22], 11, t[20])
                p.valu("v_lshrrev_b32", t[22], 5, t[22])
                p.valu("v_lshrrev_b32", t[23], 5, di[r])
                p.valu("v_bfe_u32", t[21], di[r], 3, 2)
                p.valu("v_bfe_u32", t[24], di[r], 4, 1)
                p.valu("v_xor_b32", t[21], t[21], t[24])
                p.valu("v_sub_u32", t[21], t[21], t[22])
                p.valu("v_mul_i32_i24", t[21], 9, t[21])
                p.valu("v_add_u32", t[23], t[23], t[21])
                p.valu("v_lshrrev_b32", t[21], 1, t[23])
                p.valu("v_mul_u32_u24", t[21], 384 - 16, t[21])
                p.valu("v_lshl_add_u32", t[23], t[23], 3, t[21])
                p.valu("v_lshl_add_u32", t[23], t[22], 7, t[23])
                p.valu("v_and_b32", t[24], 7, di[r])
                p.valu("v_lshl_add_u32", t[23], t[24], 4, t[23])
                p.valu("v_add_u32", ad[r], DIAG, t[23])
            z = V(160, 4)
            for i in range(4):
                p.valu("v_mov_b32", z.sub(i), 0)
            p.raw("s_mov_b64 exec, 1")
            p.ds_write("ds_write_b128", self.vCN, z)
            p.ds_write("ds_write_b128", self.vCN, z, 16)
            p.raw("s_mov_b64 exec, -1")
            p.raw(f"s_waitcnt vmcnt({6 + later})")
            for r in range(4):
                ch = V(164 + 2 * r, 2)
                p.valu("v_and_b32", t[10], 4, di[r])
                p.valu("v_cmp_eq_u32", "vcc", 0, t[10])
                p.valu("v_cndmask_b32", ch.sub(0), 0, dv[r], "vcc")
                p.valu("v_sub_u32", ch.sub(1), dv[r], ch.sub(0))
                p.ds_write("ds_write_b64", ad[r], ch)
            p.raw("s_waitcnt lgkmcnt(0)")
        self.cond("s_cmp_lt_u32", sWAVE, 4, "Lnoy", young)
        self.cond("s_cmp_ge_u32", sWAVE, 4, "Lnoo", old)
        self.sstamp('s0')
        p.barrier()
        self.sstamp('s0')

        def young2():
            p.valu("v_subrev_u32", tid, 256, tid)
            self.gelu_table(tid)
        self.cond("s_cmp_lt_u32", sWAVE, 4, "Lnoy2", young2)
        self.sstamp('s0')
        p.vm_done = p.vm_seq
        self.nstamp += 4

    def w1_dma(self, u):
        p = self.p
        g, x = divmod(u, 6)
        p.salu("s_add_u32", "m0", sW1L, g * 24576 + x * 1024)
        p.salu("s_add_u32", sT0, sW1G, (2 * (x % 3) + x // 3) * 12288 + g * 256)
        return p.dma(self.vW1g, sW1, sT0)

    def sentinels(self):
        p, lane = self.p, self.vLane
        t = [V(100 + i) for i in range(16)]
        sv = V(104, 4)

        def bias():
            p.salu("s_lshl_b32", sT1, sT0, 1)
            p.valu("v_mul_u32_u24", t[0], 192, lane)
            p.valu("v_lshlrev_b32", t[1], 1, lane)
            for i in range(6):
                p.salu("s_add_u32", sT2, sT1, 64 * 192 * i)
                p.raw(f"buffer_load_ushort {t[2 + i]}, {t[0]}, {sW2}, {sT2} offen")
                p.raw(f"buffer_load_ushort {t[8 + i]}, {t[1]}, {sBE}, 0 offen offset:{128 * i}")

        def body():
            for i in range(4):
                p.valu("v_mov_b32", sv.sub(i), -1)
            p.valu("v_lshlrev_b32", t[0], 12, lane)
            p.valu("v_add_u32", t[1], 64 * 4096, t[0])
            p.valu("v_cmp_gt_u32", "vcc", 32, lane)
            p.valu("v_mov_b32", t[2], OOB_V)
            p.valu("v_cndmask_b32", t[1], t[2], t[1], "vcc")
            p.salu("s_lshl_b32", sT0, S(2), 4)
            p.raw(f"buffer_store_dwordx4 {sv}, {t[0]}, {sWS}, {sT0} offen sc1")
            p.raw(f"buffer_store_dwordx4 {sv}, {t[1]}, {sWS}, {sT0} offen sc1")
            p.salu("s_add_u32", sT0, sT0, WS_TOT)
            p.salu("s_cmp_lt_u32", S(2), 96)
            p.salu("s_cselect_b32", sT0, sT0, OOB_S)
            p.valu("v_lshlrev_b32", t[2], 11, lane)
            p.raw(f"s_mov_b64 exec, {hex((1 << REP) - 1)}")
            p.raw(f"buffer_store_dwordx4 {sv}, {t[2]}, {sWS}, {sT0} offen sc1")
            p.raw("s_mov_b64 exec, -1")
            p.salu("s_sub_u32", sT0, S(2), 96)
            p.salu("s_cmp_lt_u32", sT0, 96)
            p.raw("s_cbranch_scc0 Lnobias")
            bias()
            p.lines.append("Lnobias:")
            p.nop(2)
        self.cond("s_cmp_lg_u32", sWAVE, 7, "Lnosent", body)
        self.sent_tok = p.vm_seq

    def code_prefetch(self):
        p, lane = self.p, self.vLane
        t = [V(100 + i) for i in range(16)]

        def body():
            p.raw(f"s_getpc_b64 {sEX}")
            p.lines.append("Lpc:")
            p.salu("s_lshr_b32", sT0, S(2), 3)
            p.salu("s_and_b32", sT0, sT0, 15)
            p.salu("s_lshl_b32", sT0, sT0, 13)
            p.valu("v_lshlrev_b32", t[2], 7, lane)
            p.valu("v_add_u32", t[2], sT0, t[2])
            p.valu("v_min_u32", t[2], "Lend-Lpc", t[2])
            if self.o.get('pf', 1):
                p.raw(f"global_load_dword {self.tq[4]}, {t[2]}, {sEX}")
        self.cond("s_cmp_lg_u32", sWAVE, 7, "Lnopf", body)

    def code_again(self, a, tag):
        p = self.p

        def body():
            p.raw(f"s_getpc_b64 {sTM}")
            p.lines.append(f"Lcq{tag}:")
            p.salu("s_lshr_b32", sT0, S(2), 3)
            p.salu("s_and_b32", sT0, sT0, self.o.get('cam', 15))
            p.salu("s_mul_i32", sT0, sT0, 3072)
            p.valu("v_lshl_add_u32", a, self.vLane, 7, sT0)
            p.valu("v_min_u32", a, f"Lend-Lcq{tag}", a)
            p.salu("s_mov_b32", "m0", CNT + 32)
            p.raw("s_mov_b64 exec, 0xffffff")
            p.raw(f"global_load_lds_dword {a}, {sTM}")
            p.raw("s_mov_b64 exec, -1")
            p.vm_seq += 1
        self.cond("s_cmp_lg_u32", sWAVE, self.o.get('caw', 7), f"Lcp{tag}", body)

    def bias_finish(self):
        p = self.p
        t = [V(100 + i) for i in range(16)]

        def body():
            p.salu("s_sub_u32", sT0, S(2), 96)
            p.salu("s_cmp_lt_u32", sT0, 96)
            p.raw("s_cbranch_scc0 Lnobias2")
            p.raw(f"s_waitcnt vmcnt({p.vm_seq - self.sent_tok})")
            for i in range(12):
                p.valu("v_lshlrev_b32", t[2 + i], 16, t[2 + i])
            p.valu("v_mul_f32", t[0], t[2], t[8])
            for i in range(1, 6):
                p.valu("v_fmac_f32", t[0], t[2 + i], t[8 + i], rmw=True)
            self.lane_sum64(t[0], t[1])
            p.salu("s_lshl_b32", sT1, sT0, 2)
            p.salu("s_add_u32", sT1, sT1, WS_TOT + 1536)
            p.valu("v_lshlrev_b32", t[15], 11, self.vLane)
            p.raw(f"s_mov_b64 exec, {hex((1 << REP) - 1)}")
            p.raw(f"buffer_store_dword {t[0]}, {t[15]}, {sWS}, {sT1} offen sc1")
            p.raw("s_mov_b64 exec, -1")
        self.cond("s_cmp_lg_u32", sWAVE, 7, "Lnobias2", body)
        self.sent_tok = p.vm_seq

    def init_counter(self):
        p = self.p

        def body():
            p.raw(f"s_waitcnt vmcnt({p.vm_seq - self.sent_tok})")
            p.raw(f"v_mov_b32 {self.tq[4]}, 1")
            p.raw("s_mov_b64 exec, 1")
            p.raw(f"buffer_atomic_add {self.tq[4]}, {self.vL}, {sDBG}, 0 offen")
            p.raw("s_mov_b64 exec, -1")
        self.cond("s_cmp_lg_u32", sWAVE, 7, "Lnoinit", body)

    def ln_stats(self):
        p, C, ls = self.p, self.CA, self.ls
        s2, q2 = ls[0], ls[1]
        ops = [lambda: p.valu("v_pk_add_f32", s2, C.sub(0, 2), C.sub(2, 2)),
               lambda: p.valu("v_pk_mul_f32", q2, C.sub(0, 2), C.sub(0, 2))]
        for i in range(1, 24):
            if i >= 2:
                ops.append(lambda i=i: p.valu("v_pk_add_f32", s2, s2, C.sub(2 * i, 2)))
            ops.append(lambda i=i: p.valu("v_pk_fma_f32", q2, C.sub(2 * i, 2), C.sub(2 * i, 2), q2))
        return ops

    def ln_stats_plain(self, rs):
        p, ls = self.p, self.ls
        C = [self.CA.sub(r) for r in rs]
        ops = []
        for i in range(48):
            s_, q_ = ls[0].sub(i % 2), ls[1].sub(i % 2)
            if i < 2:
                ops.append((4, lambda i=i, q_=q_: p.valu("v_mul_f32", q_, C[i], C[i])))
            else:
                ops.append((4, lambda i=i, s_=s_: p.valu("v_add_f32", s_, C[i - 2] if i < 4 else s_, C[i])))
                ops.append((4, lambda i=i, q_=q_: p.valu("v_fmac_f32", q_, C[i], C[i], rmw=True)))
        return ops

    def ln_scalar(self):
        p, ls = self.p, self.ls
        s, s1, q, q1, rs, off = [ls[i // 2].sub(i % 2) for i in range(6)]
        return [
            (4, lambda: p.valu("v_add_f32", s, s, s1)),
            (4, lambda: p.valu("v_add_f32", q, q, q1)),
            (4, lambda: p.swap32(s, q)),
            (4, lambda: p.valu("v_add_f32", s, s, q)),
            (4, lambda: p.valu("v_mul_f32", s, f2u(1.0 / 96), s)),
            (4, lambda: p.valu("v_mov_b32", q, s)),
            (4, lambda: p.swap32(s, q)),
            (4, lambda: p.valu("v_fma_f32", q, f"-{s}", s, q)),
            (4, lambda: p.valu("v_max_f32", q, 0, q)),
            (4, lambda: p.valu("v_add_f32", q, f2u(1e-5), q)),
            (8, lambda: p.valu("v_rsq_f32", q, q)),
            (4, lambda: p.valu("v_mul_f32", rs, f2u(GA), q)),
            (4, lambda: p.valu("v_mul_f32", off, s, rs)),
        ]

    def ln_norm(self):
        p, C, ro = self.p, self.CA, self.ls[2]
        return [lambda i=i: p.valu("v_pk_fma_f32", C.sub(2 * i, 2), C.sub(2 * i, 2), ro, ro,
                                   mods="op_sel:[0,0,1] op_sel_hi:[1,0,1] neg_lo:[0,0,1] neg_hi:[0,0,1]")
                for i in range(24)]

    def ln_pack(self, t):
        p, C = self.p, self.CA
        return [(4, lambda i=i: p.valu("v_cvt_pk_bf16_f32", self.LN[t].sub(i), C.sub(2 * i), C.sub(2 * i + 1)))
                for i in range(24)]

    def conv_items(self, ti, gate=None):
        p = self.p
        seq = [(cl, dx, cq) for cl in (0, 1, 3, 2) for dx in range(3) for cq in range(3)]
        state = [2 * (ti % 2)] * 3
        items = [dict(reads=[rd128(self.vA[2], 0xFFF0)], w=0.5,
                      emit=[(lambda z, k=k: p.mfma(self.CA.sub(16 * k, 16), z, z, 0)) for k in range(3)])]
        for pr in (range(18) if ti % 2 == 0 else range(17, -1, -1)):
            reads, em = [rd128(self.vC[0], pr * 384)], []
            for k, h in enumerate((0, 1) if ti % 2 == 0 else (1, 0)):
                cl, dx, cq = seq[2 * pr + h]
                hook = None
                if state[dx] != cl:
                    hook = (lambda dx=dx, d=16 * (cl ^ state[dx]): p.valu("v_xor_b32", self.vB[dx], d, self.vB[dx]))
                    state[dx] = cl
                rb_ = rd128(self.vB[dx], 64 * cq, self.rb, hook)
                rb_['after'] = gate
                reads.append(rb_)
                acc = self.CA.sub(4 * (4 * cq + cl), 4)
                em.append(lambda a, *b, acc=acc, h=h, k=k: p.smfmac(acc, a.sub(2 * h, 2), b[k], self.vC[1]))
            items.append(dict(reads=reads, w=self.o.get('cw', 0.5), emit=em))
        return items

    def gemm1_32(self, j, ln, pixel_lane, need):
        p, y = self.p, self.Y
        items = []
        for s6 in range(6):
            b = ln.sub(4 * s6, 4)
            if pixel_lane:
                e = (lambda w, b=b, s6=s6: p.mfma(y, w, b, y if s6 else 0))
            else:
                e = (lambda w, b=b, s6=s6: p.mfma(y, b, w, y if s6 else 0))
            items.append(dict(reads=[self.frag(W1F + (j * 6 + 3 * (s6 & 1) + (s6 >> 1)) * 1024)], emit=e, need=need))
        return items

    def period_fill(self, y, n, G=None, sq=None, first=False, tag=None, ph=1, fl=False):
        o, ge = self.o, self.ge
        a, d = ge.front(n, o.get('grp', 2), G is None)
        if fl:
            d = d[:len(d) // 2] + [(0, self.flush)] + d[len(d) // 2:] + [(0, self.flush)]
        t0, t1 = split_cost(a + ge.mid(n), o.get(f'ds{ph}', 96 if ph == 1 else 64))
        if G is not None:
            ba, bd = ge.back_pack(G, n)
            if tag:
                ba, bd = [x + (tag,) for x in ba], [x + (tag,) for x in bd]
            t1a, t1b = split_cost(t1, sum(x[0] for x in t1) - o.get(f'de{ph}', 32 if ph == 1 else 16))
            return ge.cvts(y, n) + merge(t0, d) + t1a + merge(t1b, bd) + ba
        ba, bd = ge.back_stat(sq, None, n, first, o.get('mix', 1))
        tl = t1 + ba
        t1a, t1b = split_cost(tl, sum(x[0] for x in tl) - o.get('des', 64))
        return ge.cvts(y, n) + merge(t0, d) + t1a + merge(t1b, bd)

    def period_def(self, W, y, n, G, par, late, now=False, ph=1):
        o = self.o
        assert n == 5 and len(W) >= 19
        lo = W[5 * par:5 * par + 5]
        ge = Gelu(self, [r for i in range(n) for r in (lo[i], G[i])] + W[10:], sK, sM, 0)
        a, d = ge.front(n, o.get('grpd', 1))
        ba, bd = ge.back_pack(G, n)
        t = a + ge.mid(n)
        tot = sum(x[0] for x in t + ba)
        mark = (0, lambda: None)
        if now:
            d = d + [(0, self.flush)]
            t0, t1 = split_cost(t, 64)
            t1a, t1b = split_cost(t1, sum(x[0] for x in t1) - 24)
            fill = ge.cvts(y, n) + merge(merge(t0, late + [mark]), d) + t1a + merge(t1b, bd) + ba
            bd = []
        else:
            t0, t1 = split_cost(t + ba, tot * o.get(f'dm{ph}', 50) // 100)
            u = merge(t0, late + [mark]) + t1
            u0, u1 = split_cost(u, sum(x[0] for x in u) * o.get(f'dd{ph}', 90) // 100)
            fill = ge.cvts(y, n) + merge(u0, d) + u1
        return fill, mark, bd

    @staticmethod
    def mix_in(s, ops, lo=8):
        s['fill'] = s['fill'][:lo] + merge(s['fill'][lo:], ops)

    @staticmethod
    def spread(segs, s0, fns, per):
        for k, f in enumerate(fns):
            segs[s0 + k // per]['vm'].append(f)

    def ladder(self, segs, a, b, fr):
        for f, lv in zip(fr, range(len(fr) - 1, -1, -1)):
            h = a + f * (b - a)
            if h < len(segs):
                insert_at(segs, h, lambda lv=lv: self.setprio(lv))

    def jitter(self, segs, tag):
        j = self.o.get('x_jit')
        if not j:
            return
        p = self.p
        for k, s_ in enumerate(segs):
            if (k * 7 + j) % 3 == 0:
                w = (k * 5 + j) % 8
                s_['end'].append(lambda k=k, w=w: self.cond("s_cmp_lg_u32", sWAVE, w, f"Ljit{tag}_{k}", lambda: p.raw(f"s_sleep {20 + 13 * ((k + j) % 5)}")))

    def swaps(self, a, b):
        return [(8, lambda i=i: self.p.swap16(a.sub(i), b.sub(i))) for i in range(4)]

    def ws_frag(self, f, fn):
        p = self.p
        if f == 0:
            return fn(sLNB)
        p.salu("s_add_u32", sT3, sLNB, f << self.fsh)
        return fn(sT3)

    def spill_ln(self, ti):
        p = self.p
        return [lambda k=k: self.ws_frag(6 * ti + k, lambda so: p.buf_store(
            "buffer_store_dwordx4", self.LN[ti].sub(4 * k, 4), self.vL, sWS, so, flags=self.o.get(f'ssf{ti}', 'sc1'))) for k in range(6)]

    def touch(self, kind, ti, a, part=None):
        p, lane = self.p, self.vLane
        if kind == 'x':
            p.valu("v_lshrrev_b32", a, 1, lane)
            p.valu("v_lshlrev_b32", a, 7, a)
            p.raw("s_mov_b64 exec, 0xaaaaaaaa")
            p.salu("s_mov_b32", "exec_hi", 0xAAAAAAAA)
            p.valu("v_add_u32", a, ROWB, a)
            srd, so, n = sX, sTILE[ti], 48
        elif kind == 'l':
            p.valu("v_mul_u32_u24", a, (1 << (self.fsh - 3)) + 128, lane)
            p.valu("v_and_b32", a, (7 << self.fsh) | 0x380, a)
            p.salu("s_add_u32", sT3, sLNB, (6 * ti) << self.fsh)
            srd, so, n = sWS, sT3, 48
        else:
            p.valu("v_lshlrev_b32", a, 7, lane)
            p.salu("s_add_u32", sT3, sROWT, (8 * ti + (4 if kind == 'R' else 0)) * ROWB)
            srd, so, n = sX, sT3, 52
        k, m = part or (0, 1)
        mask = ((1 << (n * (k + 1) // m)) - 1) & ~((1 << (n * k // m)) - 1)
        p.salu("s_mov_b32", "exec_lo", mask & 0xFFFFFFFF)
        p.salu("s_mov_b32", "exec_hi", mask >> 32)
        assert n * (k + 1) // m - n * k // m <= 24
        p.salu("s_mov_b32", "m0", CNT + 32 - 4 * (n * k // m))
        p.nop(1)
        p.raw(f"buffer_load_dword {a}, {srd}, {so} offen lds")
        p.vm_seq += 1
        p.raw("s_mov_b64 exec, -1")

    def touches(self, segs, spec, a, base=0):
        for e in str(spec).split(','):
            if e in ('', 'n'):
                continue
            what, pos = e.split('@')
            pos = [float(x) for x in pos.split('/')] + [1, 1]
            for k in range(int(pos[1])):
                segs[base + int(pos[0] + k * pos[2])]['end'].append(lambda what=what, k=k, m=int(pos[1]): self.touch(what[0], int(what[1]), a, (k, m)))

    def w2_addr(self, a, b):
        p, lane = self.p, self.vLane
        p.valu("v_lshrrev_b32", a, 2, lane)
        p.valu("v_mul_u32_u24", a, 192, a)
        p.valu("v_and_b32", b, 3, lane)
        p.valu("v_lshl_add_u32", a, b, 4, a)

    def w2_fetch(self, a, u):
        p = self.p
        p.salu("s_add_u32", "m0", sPRIV, u * 1024)
        p.salu("s_add_u32", sT0, sW2B, (u // 3) * 3072 + (u % 3) * 64)
        p.dma(a, sW2, sT0)

    def startup_routines(self):
        main = self.p

        def w1_transform(us, fr):
            p = self.p
            off = lambda u: (u // 6) * 24576 + (u % 6) * 1024
            for k, u in enumerate(us):
                for i in range(2):
                    p.ds_read("ds_read_b64_tr_b16", fr[k].sub(2 * i, 2), self.vW1r, off(u) + i * 512)
            for k, u in enumerate(us):
                p.ds_write("ds_write_b128", self.vW1w, fr[k], off(u))
            p.wait_all(vm=False)

        for name in ("Lconv0", "Lln0", "Lw1a", "Lw1i", "Lw1b", "Lw1c", "Lpre", "Lrb", "Lw1f"):
            self.p = p = Prog()
            p.lines.append(f"{name}:")
            if name == "Lw1a":
                w1_transform(range(6), [V(148 + 4 * u, 4) for u in range(6)])
            elif name == "Lpre":
                for it, a in zip(self.conv_items(0)[1:], self.A0):
                    for op, addr, off, so, n in it['reads'][0]['parts']:
                        p.ds_read(op, a.sub(so, n), addr, off)
                for r in self.CA.regs():
                    p.valu("v_mov_b32", V(r), 0)
                p.wait_all(vm=False)
            elif name == "Lrb":
                self.rows_dma(range(5, 9))
            elif name == "Lw1f":
                for u in range(6):
                    self.w1_dma(u)
            elif name == "Lw1i":
                for u in range(6, 18):
                    self.w1_dma(u)
            elif name in ("Lw1b", "Lw1c"):
                u0 = 6 if name == "Lw1b" else 12
                w1_transform(range(u0, u0 + 6), [V(72 + 4 * u, 4) for u in range(6)])
            elif name == "Lconv0":
                s = seg()
                rb0 = self.rb + self.ring1
                for it, a in zip(self.conv_items(0)[1:], self.A0):
                    for rd in it['reads'][1:]:
                        rd['ring'] = rb0
                    s['mf'].append(dict(reads=it['reads'][1:], emit=[(lambda *b, a=a, e=e: e(a, *b)) for e in it['emit']]))
                s['cl'] = 1
                self.run([s], self.ring1)
                p.nop(12)
            else:
                for f in self.ln_stats():
                    f()
                for _, f in self.ln_scalar():
                    f()
                for f in self.ln_norm():
                    f()
                for _, f in self.ln_pack(0):
                    f()
                p.nop(2)
            p.raw(f"s_setpc_b64 {sRET}")
            main.lines += p.lines
        self.p = main

    def phase1(self):
        p, o, lane = self.p, self.o, self.vLane

        def su(n):
            if o.get('fine') == 'su' and n not in ('s_setprio 3', 's_setprio 2', 'Lpre', 'Lln0', 'Lw1b', 'Lw1c'):
                self.sstamp('su')

        def call_if(older, names, tag):
            self.cond("s_cmp_lt_u32" if older else "s_cmp_ge_u32", sWAVE, 4, tag,
                      lambda: [(p.raw(n if n.startswith("s_") else f"s_call_b64 {sRET}, {n}"), su(n)) for n in names], 0)

        def act(n):
            if n.startswith("+"):
                self.signal(int(n[1:]))
            elif n.startswith("?"):
                off, tg = ints(n[1:])
                self.lds_spin(self.vCN, self.vEV, off, tg, f"sw{off}{tg}")
            else:
                p.raw(n if n.startswith("s_") else f"s_call_b64 {sRET}, {n}")
                su(n)

        def seq_if(older, names, tag):
            self.cond("s_cmp_lt_u32" if older else "s_cmp_ge_u32", sWAVE, 4, tag, lambda: [act(n) for n in names], 0)

        p.raw("s_setprio 2")
        vw = lambda n: f"s_waitcnt vmcnt({n})"
        seq_if(True, ["Lpre", "Lrb", vw(4), f"+{E_ROWA}", f"?{E_ROWA},8", "Lconv0", f"+{E_FREE}", "Lln0", vw(0), f"+{E_ROW}", "Lw1i"], "Lsu0")
        seq_if(False, [f"s_setprio {o.get('sp', 3)}", "Lw1f", vw(6), f"+{E_ROWA}", "Lrb", vw(4), "Lw1a", f"+{E_W1}", "Lpre", vw(0),
                       f"+{E_ROW}", f"?{E_ROW},8", "Lconv0", f"+{E_FREE}", "Lln0"], "Lsu2")
        w1_tok = p.vm_seq
        p.raw("s_branch Lgo")
        self.startup_routines()
        p.lines.append("Lgo:")
        act(f"?{E_W1},4")
        if o.get('pf', 1) == 1:
            self.code_prefetch()
        self.stamp(192)
        self.pad('padsu')
        p.lds_age = o.get('age1', 24)
        NG = len(self.JG)
        NS = 49 + NG
        P = [seg() for _ in range(NS)]
        c0s = [o.get('c1', 6), o.get('cn', 2), o.get('cn', 2)]
        conv = {}

        def landed():
            assert self.nrow % 8 == 0 and self.nrow > self.nready, (self.nrow, self.nready)
            self.nready = self.nrow
            self.cond("s_cmp_eq_u32", sWAVE, 7, f"Lrdy{self.nrow}", lambda: p.wait(vm=self.x_tok))
            self.signal(E_ROW)

        gate = {}

        def check(pos, off, target, name=None):
            insert_at(P, pos - o.get('evl', 0.3), lambda: self.gq.append(lambda: self.ev_read(off)))
            insert_at(P, pos, lambda: (self.flush(), self.ev_wait(off, target), gate.__setitem__(name, True)))

        def advance_rows():
            a, b = V(174), V(175)
            p.valu("v_add_u32", a, 8 * RP - W2R, self.vB[0])
            p.valu("v_subrev_u32", b, 10 * RP, a)
            p.valu("v_min_u32", a, a, b)
            p.valu("v_add_u32", a, W2R, a)
            p.valu("v_sub_u32", b, a, self.vB[0])
            for k in range(3):
                p.valu("v_add_u32", self.vB[k], b, self.vB[k])

        for ti in range(1, 4):
            s0, first = 12 * (ti - 1), c0s[ti - 1]
            for k, it in enumerate(self.conv_items(ti, gate=lambda ti=ti: gate.get(('r', ti)))):
                conv.setdefault(s0 + first + max(k - 1, 0) * (10 - first) // 18, []).append(it)
        ndc, ndn, ndk = ints(o.get('ndc', '4,5')), ints(o.get('ndn', 5)), ints(o.get('ndk', '5,6'))
        late = []
        nd0 = ints(o.get('nd0', 'n'))
        ndx = dict(zip(ints(o.get('ndx', '10,6,11,6'))[::2], ints(o.get('ndx', '10,6,11,6'))[1::2]))
        hs = o.get('hs', 0)
        dk = o.get('dk', 0) and not hs
        packed = lambda e: 36 - self.nk <= e < 48 + NG or (hs and 24 <= e < 28)
        dest = lambda e: V(56 + 8 * (e % 2), 8) if e < 28 else (self.S2[e - 24] if e < 36 else (self.S3[e - 36] if e < 48 else self.S2[self.JG[e - 48]]))
        for s in range(NS):
            S_ = P[s]
            e = s - 1
            if 0 <= e < 36 and not packed(e):
                n = ndc[(s + 3) % len(ndc)] if s in conv else ndn[s % len(ndn)]
                if s < len(nd0):
                    n = nd0[s]
                elif s % 12 in ndx:
                    n = ndx[s % 12]
                self.ge.W = self.W + ([V(174), V(175), V(176), V(177)] if n < 4 else [])
                if o.get('dfr', 95) and not hs and e < 34:
                    assert 4 <= n <= (6 if s > 5 else 5)
                    self.ge.W = (regs(V(178, 12)) if e % 2 else regs(V(136, 8), V(176, 2), V(190, 2))) + self.W[8:]
                    ge = self.ge
                    a, d = ge.front(n, o.get('grpd', 1), True)
                    ba, bd = ge.back_stat(self.SQ[e % 12], None, n, e < 12, o.get('mix', 1))
                    t = a + ge.mid(n) + ba
                    if e == 33:
                        t0, t1 = split_cost(t, 96)
                        t1a, t1b = split_cost(t1, sum(x[0] for x in t1) - 64)
                        S_['fill'] = ge.cvts(regs(self.Y), n) + merge(merge(t0, late), d) + t1a + merge(t1b, bd)
                    else:
                        ta, tb = split_cost(t, sum(x[0] for x in t) * o.get('dl0', 0) // 100)
                        t0, t1 = split_cost(ta + merge(tb, late), sum(x[0] for x in t + late) * o.get('dfr', 95) // 100)
                        S_['rg'] = o.get('rgc', 1) if s in conv else o.get('rgn', 1)
                        S_['fill'] = ge.cvts(regs(self.Y), n) + merge(t0, d) + t1
                    late = bd
                else:
                    S_['fill'] = self.period_fill(regs(self.Y), n, sq=self.SQ[e % 12], first=e < 12)
                self.ge = Gelu(self, self.W, sK, sM, 0)
            elif packed(e) and dk:
                S_['fill'], nlate, late = self.period_def(self.W, regs(self.Y), 5, regs(dest(e)), e % 2, late if e > 34 else [], now=e in (47, 47 + NG))
            elif packed(e):
                S_['fill'] = self.period_fill(regs(self.Y), (o.get('nd35', 6) if s == 35 else ndk[s % len(ndk)]) if e < 48 else o.get('ndg', 5), G=regs(dest(e)), fl=e == 47 + NG)
            g1 = []
            if s < 48:
                g1 = self.gemm1_32(s % 12, self.LN[s // 12], packed(s), 8 if s else 0)
            elif s < 48 + NG:
                g1 = self.gemm1_32(self.JG[s - 48], self.LN[2], True, 8)
            if s >= 35:
                S_['ring'] = self.ring2
            ex = conv.get(s, [])
            tr = []
            if packed(s - 2) and s - 2 < 48:
                G, j = dest(s - 2), (s - 2) % 12
                sq = self.SQ[j]
                D0, idf = (self.D0, self.idf) if s >= 36 else (V(176, 16), [V(48, 4), V(52, 4)])
                tr = [dict(reads=[], tag='tr' if q else None, w=0.5,
                           emit=(lambda q=q, G=G, D0=D0, idf=idf: p.mfma(D0, G.sub(4 * q, 4), idf[q], D0 if q else 0, 'f16'))) for q in range(2)]
                ops = [(4, lambda i=i, sq=sq, D0=D0: p.valu("v_fmac_f32", sq, D0.sub(i), D0.sub(i), rmw=True), 'tr') for i in range(16)]
                if s >= 38 and j % 2:
                    a_, b_ = self.SQ[j - 1], sq
                    ops += [(8, lambda a_=a_, b_=b_: p.swap32(a_, b_)), (4, lambda a_=a_, b_=b_: p.valu("v_add_f32", a_, a_, b_)),
                            (0, lambda a_=a_, j=j: p.ds_write("ds_write_b32", self.vTAB, a_, TABO + (j - 1) * 128))]
                if s == 49:
                    S_['fill'] = S_['fill'][:18] + ops + [(0, self.arrive)] + S_['fill'][18:]
                elif dk:
                    for it in tr:
                        it['mark'] = nlate
                    at = next(i for i, x in enumerate(S_['fill']) if x is nlate)
                    self.mix_in(S_, ops, min(at + o.get('trl', 14), len(S_['fill'])))
                    S_['trpos'] = o.get('trp', 4) if s < 48 else 2
                else:
                    self.mix_in(S_, ops, 18)
                if s < 36:
                    S_['vm'] += [lambda q=q, G=G, j=j: self.ws_frag(12 + 2 * j + q, lambda so: p.buf_store(
                        "buffer_store_dwordx4", G.sub(4 * q, 4), self.vL, sWS, so, flags=o.get('ssf', 'sc1'))) for q in range(2)]
            if ex:
                nf, nl = (0 if tr else 1), 1
                mid = ex[nf:len(ex) - nl]
                m = []
                for k in range(6):
                    m.append(g1[k])
                    if k < 5:
                        m += mid[k * len(mid) // 5:(k + 1) * len(mid) // 5]
                S_['mf'] = tr + ex[:nf] + m + ex[len(ex) - nl:]
                S_['cl'] = o.get('clc', 1)
            else:
                k = S_.get('trpos', 0)
                S_['mf'] = g1[:k] + tr + g1[k:]
                S_['head'], S_['tail'] = (0 if tr and not k else 32), o.get('t1', 24)
        p.salu("s_add_u32", sYB, sYB, 8 * ROWB)
        P[0]['end'].append(advance_rows)
        P[o.get('wb', 2)]['end'].append(lambda: seq_if(True, [vw(6 + p.vm_seq - w1_tok), 'Lw1b', f'+{E_W1B}'], 'Lsu5'))
        P[o.get('wc', 4)]['end'].append(lambda: seq_if(True, [vw(p.vm_seq - w1_tok), 'Lw1c', f'+{E_ROWA}'], 'Lsu6'))
        extra = {}
        for ti in range(1, 4):
            s0 = 12 * (ti - 1)
            P[s0 + 9]['tail'] = 32
            if o.get('lnp', 0) & 4:
                first, order = c0s[ti - 1], ((0, 1, 3, 2) if ti % 2 == 0 else (2, 3, 1, 0))
                rs = [16 * cq + 4 * cl + i for cl in order for cq in range(3) for i in range(4)]
                ops = self.ln_stats_plain(rs)
                ends = [first + ((9 * (k + 1) + 1) // 2 - 1) * (10 - first) // 18 + 1 for k in range(4)]
                for k in range(4):
                    part = ops[max(0, 24 * k - 2):24 * k + 22]
                    span = range(ends[k], max(ends[k] + 1, ends[k + 1])) if k < 3 else [10]
                    for m, q in enumerate(span):
                        extra.setdefault(s0 + q, []).extend(part[m * len(part) // len(span):(m + 1) * len(part) // len(span)])
                extra[s0 + 10] += self.ln_scalar()
            elif o.get('lnp', 0) & 1:
                self.mix_in(P[s0 + 10], self.ln_stats_plain(range(48)) + self.ln_scalar())
            else:
                P[s0 + 9]['pb'] += self.ln_stats()
                self.mix_in(P[s0 + 10], self.ln_scalar())
            P[s0 + 9]['mf'][-1]['post'] = lambda: self.signal(E_FREE)
            if ti < 3:
                P[s0 + 9]['end'].append(advance_rows)
            if o.get('lnp', 0) & 2:
                ro = self.ls[2]
                nm = [(4, lambda i=i: p.valu("v_fma_f32", self.CA.sub(i), self.CA.sub(i), ro.sub(0), f"-{ro.sub(1)}")) for i in range(48)]
                pk = self.ln_pack(ti)
                self.mix_in(P[s0 + 11], nm + pk)
            else:
                P[s0 + 10]['pb'] += self.ln_norm()
                self.mix_in(P[s0 + 11], self.ln_pack(ti))
        for q, ops in extra.items():
            self.mix_in(P[q], ops)
        for it in P[4]['mf']:
            it['reads'][0]['after'] = lambda: gate.get('w1')
        check(o.get('wck', 3.5), E_W1B, 4, 'w1')
        for it in P[8]['mf']:
            it['reads'][0]['after'] = lambda: gate.get('w2')
        check(o.get('wck2', 7.0), E_ROWA, 12, 'w2')
        for ti in range(3):
            d0 = o.get('f0', 2) if ti == 0 else 12 * ti - 12 + o.get('fn', 11)
            check(d0, E_FREE, 8 * (ti + 1))
            fns = [lambda r=r: self.row_dma_fast(r) for r in range(8 * ti + 9, 8 * ti + 17)]
            self.spread(P, d0, fns, o.get('per0', 8) if ti == 0 else o.get('pern', 8))
            c = 12 * ti + c0s[ti]
            insert_at(P, c - o.get('sgl', 1.2), landed)
            check(c - o.get('ckl', 0.4), E_ROW, 8 * (ti + 2), ('r', ti + 1))
        assert o.get('fn', 11) <= 11
        check(24 + o.get('fn', 11), E_FREE, 32)
        for ti, d in ((0, 14), (1, 30 if hs else 25)):
            for k, f in enumerate(self.spill_ln(ti)[0 if ti else 2 * self.kl:]):
                at = int(o.get(f'sl{ti}', d) + k * o.get(f'sls{ti}', 0.8 if hs and ti else 1))
                assert at <= (min(34, ints(o.get('rs', '36,39,42,44,48'))[0]) if ti else (22 if hs else 34))
                P[at]['vm'].append(f)
        P[o.get('sent', 6)]['end'].append(self.sentinels)
        P[17]['end'].append(self.bias_finish)
        P[24]['end'].append(self.init_counter)
        u = self.tq[1]
        P[33]['end'].append(lambda: self.w2_addr(u, self.vX))
        self.spread(P, 24 + o.get('fn', 11), [lambda k=k: self.w2_fetch(u, k) for k in range(7)], 3)
        self.mix_in(P[35], self.ident32(self.idf, V(192, 4)))
        if hs:
            self.mix_in(P[24], self.ident32([V(48, 4), V(52, 4)], V(176, 4)))
            P[46 + NG]['end'].append(self.reload_map)
            ld = self.reload_ln(0, [self.LN[2].sub(4 * k, 4) for k in range(6)])
            P[48 + NG]['pre'].append(lambda: self.cond("s_cmp_eq_u32", sWAVE, 0, "Lnorl0", lambda: [f() for f in ld]))
        self.mix_in(P[37], self.tab_addr())
        for k, v in enumerate(self.KL):
            self.mix_in(P[36 + k], [(4, lambda i=i, k=k, v=v: p.valu("v_mov_b32", v.sub(i), self.LN[0].sub(8 * k + i))) for i in range(8)])
        for s in range(49, NS):
            if s in ints(o.get('pps', '49,50,51,52,53,54,55')):
                P[s]['end'].append(lambda s=s: self.poll_point(s, s < o.get('pr1', 54)))
            for q in range(1, o.get('npp', 1) if s >= 50 else 0):
                insert_at(P, s + q / o['npp'], lambda s=s, q=q: self.poll_point(100 * q + s))
        P[48 + NG - o.get('w2b', 3)]['end'] += [lambda: self.lds_spin(self.W[0], self.W[1], 4, 1, "w2"), lambda: self.w2_addr(self.W[0], self.W[1]),
                                                   lambda: self.w2_fetch(self.W[0], 7), lambda: self.w2_fetch(self.W[0], 8)]
        assert not dk
        for k, f in zip(ints(o.get('rs', '36,39,42,44,48')), self.role_steps()):
            P[k]['end'].append(f)
        self.touches(P, o.get('t1s', 'r2@7/3/1,r3@18/3/1'), self.tq[1])
        self.touches(P, o.get('t3s', 'n'), V(86))
        for k in ints(o.get('ca1', 'n')):
            P[k]['end'].append(lambda k=k: self.code_again(self.W[0], f'a{k}'))
        fr = flts(o.get('pf1', '0,0.5,0.85'))
        marks = [0] + list(range(o.get('l1a', 6), NS, o.get('lc', 2))) + [NS]
        for a, b in zip(marks, marks[1:]):
            self.ladder(P, a, b, fr)
        self.jitter(P, 1)
        if o.get('fine') == 'p1':
            for k in ints(o.get('ss1', '2,4,5,9,12,14,15,21,26,27,33,41')):
                P[k]['end'].append(lambda: self.sstamp('p1'))
        self.imm = o.get('imm1', 99)
        self.run(P, self.ring1)
        p.lds_age = 0

    def tab_addr(self):
        p, lane, a, b = self.p, self.vLane, self.vTAB, V(87)
        return [(4, f) for f in (lambda: p.valu("v_and_b32", a, 0x33, lane), lambda: p.valu("v_bfe_u32", b, lane, 2, 1),
                                 lambda: p.valu("v_lshl_add_u32", a, b, 3, a), lambda: p.valu("v_bfe_u32", b, lane, 3, 1),
                                 lambda: p.valu("v_lshl_add_u32", a, b, 2, a), lambda: p.valu("v_lshl_add_u32", a, a, 2, sPRIV))]

    def arrive(self):
        p, lane = self.p, self.vLane
        self.flush()
        age, p.lds_age = p.lds_age, 0
        p.raw("s_setprio 3")
        t = [V(240 + i) for i in range(8)]
        p._mem_issue([], [t[2].b])
        p.raw("s_mov_b64 exec, 1")
        p.raw(f"ds_add_rtn_u32 {t[2]}, {self.vCN}, {self.vONE}")
        p.raw("s_mov_b64 exec, -1")
        p.raw("s_waitcnt lgkmcnt(0)")
        p.lgkm_done = p.lgkm_seq
        p.valu("v_readfirstlane_b32", sT0, t[2])

        def publish():
            pv = [V(176 + 8 * w, 8) for w in range(4)] + [V(156, 8)]
            p.valu("v_min_u32", t[3], 47, lane)
            p.valu("v_lshlrev_b32", t[4], 5, t[3])
            p.valu("v_add_u32", t[4], W2R + TABO, t[4])
            rd = lambda v, w: [p.ds_read("ds_read_b128", v.sub(4 * k, 4), t[4], 9216 * w + 16 * k) for k in range(2)]
            add = lambda x, y: [p.valu("v_add_f32", x.sub(i), x.sub(i), y.sub(i)) for i in range(8)]
            for w in range(5):
                rd(pv[w], w)
            p.valu("v_lshlrev_b32", t[6], 13, t[3])
            p.valu("v_add_u32", t[7], 4096, t[6])
            add(pv[0], pv[1])
            rd(pv[1], 5)
            add(pv[2], pv[3])
            rd(pv[3], 6)
            add(pv[0], pv[2])
            rd(pv[2], 7)
            add(pv[4], pv[1])
            add(pv[3], pv[2])
            add(pv[4], pv[3])
            add(pv[0], pv[4])
            for i in range(8):
                p.valu("v_min_u32", pv[1].sub(i), -2, pv[0].sub(i))
            p.salu("s_lshl_b32", sT0, S(2), 4)
            p.buf_store("buffer_store_dwordx4", pv[1].sub(0, 4), t[6], sWS, sT0, flags="sc1")
            p.buf_store("buffer_store_dwordx4", pv[1].sub(4, 4), t[7], sWS, sT0, flags="sc1")
            p.ds_write("ds_write_b32", self.vCN, self.vONE, 4)
            p.nop(2)
        self.cond("s_cmp_lg_u32", sT0, 7, "Lnopub", publish)
        self.stamp(192)
        rv, tv, gv, t = self.poll_regs()
        p.salu("s_mov_b32", sROLE, 0)

        def role():
            if not self.g7:
                p.valu("v_lshlrev_b32", t[0], 2, lane)
                for i in range(3):
                    p.raw(f"buffer_load_dword {gv[i]}, {t[0]}, {sGA}, 0 offen offset:{256 * i}")
            if not self.o.get('dyn', 1):
                p.salu("s_mov_b32", sRED, S(2))
            p.salu("s_cmp_lt_u32", sRED, 96)
            p.salu("s_cselect_b32", sROLE, 1, 2)
            for r in rv:
                for i in range(4):
                    p.valu("v_mov_b32", r.sub(i), -1)
            if self.g7:
                p.raw("s_cbranch_scc1 Lrole1")
                p.raw(f"s_call_b64 {sRET}, LpollG")
                p.raw("s_branch Lnorole")
                p.lines.append("Lrole1:")
            p.raw(f"s_call_b64 {sRET}, Lpoll1")
        self.cond("s_cmp_lg_u32", sWAVE, 0, "Lnorole", role)
        p.raw(f"s_setprio {self.prio}")
        p.lds_age = age

    def role_steps(self):
        p, lane = self.p, self.vLane
        gv = self.poll_regs()[2]
        t = [V(80 + i) for i in range(8)]

        def a():
            p.valu("v_mov_b32", t[2], 0)
            p.raw(f"buffer_load_dword {t[3]}, {t[2]}, {sDBG}, 0 offen sc1")

        def b():
            p.valu("v_mov_b32", t[2], 0)
            p.lines.append("Lpi:")
            p.raw("s_waitcnt vmcnt(0)")
            p.raw(f"v_readfirstlane_b32 {sT0}, {t[3]}")
            self.spin_guard("Lpix")
            p.raw(f"s_cmp_ge_u32 {sT0}, 256")
            p.raw("s_cbranch_scc1 Lpix")
            p.raw(f"buffer_load_dword {t[3]}, {t[2]}, {sDBG}, 0 offen sc1")
            p.raw("s_branch Lpi")
            p.lines.append("Lpix:")
            p.valu("v_min_u32", t[0], 47, lane)
            p.valu("v_lshlrev_b32", t[0], 3, t[0])
            p.salu("s_and_b32", sT1, S(2), REP - 1)
            p.salu("s_lshl_b32", sT1, sT1, 11)
            p.salu("s_add_u32", sT1, sT1, WS_TOT + 1536)
            p.raw(f"buffer_load_dwordx2 {V(84, 2)}, {t[0]}, {sWS}, {sT1} offen sc1")

        def c():
            p.valu("v_min_u32", t[0], 47, lane)
            p.valu("v_lshlrev_b32", t[0], 3, t[0])
            p.valu("v_add_u32", t[1], BT0, t[0])
            p.valu("v_add_u32", t[0], BT1 - 256, t[0])
            p.valu("v_cmp_gt_u32", "vcc", 32, lane)
            p.valu("v_cndmask_b32", t[0], t[0], t[1], "vcc")
            p.raw("s_waitcnt vmcnt(0)")
            p.ds_write("ds_write_b64", t[0], V(84, 2))
        def d():
            p.valu("v_mov_b32", V(250), 1)
            p.valu("v_mov_b32", t[2], 0)
            p.raw("s_mov_b64 exec, 1")
            p.raw(f"buffer_atomic_add v250, {t[2]}, {sDBG}, 0 offen offset:128 sc0")
            p.raw("s_mov_b64 exec, -1")

        def e():
            p.raw("s_waitcnt vmcnt(0)")
            p.valu("v_readfirstlane_b32", sRED, V(250))
            p.salu("s_and_b32", sRED, sRED, 255)
        return [lambda f=f, k=k: self.cond("s_cmp_lg_u32", sWAVE, 0, f"Lrs{k}", f) for k, f in enumerate((a, b, c, d, e)[:5 if self.o.get('dyn', 1) else 3])]

    def ident32(self, idf, tmp):
        p, lane = self.p, self.vLane
        a, b, c = tmp.sub(0), tmp.sub(1), tmp.sub(2)
        ops = [lambda: p.valu("v_and_b32", a, 1, lane),
               lambda: p.valu("v_lshlrev_b32", a, 4, a),
               lambda: p.valu("v_mov_b32", b, 0x3C00),
               lambda: p.valu("v_lshlrev_b32", a, a, b),
               lambda: p.valu("v_lshrrev_b32", b, 3, lane),
               lambda: p.valu("v_xor_b32", b, b, lane),
               lambda: p.valu("v_and_b32", b, 4, b),
               lambda: p.valu("v_bfe_u32", c, lane, 3, 2),
               lambda: p.valu("v_lshl_add_u32", b, b, 1, 0),
               lambda: p.valu("v_lshl_add_u32", b, c, 1, b),
               lambda: p.valu("v_bfe_u32", c, lane, 1, 1),
               lambda: p.valu("v_add_u32", b, b, c)]
        for i in range(8):
            ops.append(lambda i=i: (p.valu("v_cmp_eq_u32", "vcc", i, b), p.valu("v_cndmask_b32", idf[i // 4].sub(i % 4), 0, a, "vcc")))
        return [(4, f) for f in ops]

    def poll_regs(self):
        rv = [V(156, 4), V(160, 4), V(164, 4), V(240, 4)]
        tv = V(156, 6)
        gv = [V(244), V(245), V(246)]
        t = [V(247), V(255), V(162), V(163), V(164), V(165), V(166), V(167)]
        if self.g7:
            rv[3] = V(252, 4)
            gv = [V(162), V(163), V(164)]
            t = [V(250), V(250), V(165), V(166), V(167), V(252), V(253)]
        return rv, tv, gv, t

    def poll_loads(self, p, reducer, gamma=False):
        rv, tv, gv, t = self.poll_regs()
        if reducer:
            p.valu("v_lshlrev_b32", t[0], 4, self.vLane)
            p.salu("s_lshl_b32", sT1, sRED, 12)
            for i in range(4):
                p.buf_load("buffer_load_dwordx4", rv[i], t[0], sWS, sT1, 1024 * i, flags=self.o.get('prf', 'sc1').replace('+', ' '))
        else:
            if self.g7 and gamma:
                p.valu("v_lshlrev_b32", t[0], 2, self.vLane)
                for i in range(3):
                    p.buf_load("buffer_load_dword", gv[i], t[0], sGA, 0, 256 * i)
            p.valu("v_lshlrev_b32", t[0], 3, self.vLane)
            p.salu("s_and_b32", sT1, S(2), REP - 1)
            p.salu("s_lshl_b32", sT1, sT1, 11)
            p.salu("s_add_u32", sT1, sT1, WS_TOT)
            for i in range(3):
                p.buf_load("buffer_load_dwordx2", tv.sub(2 * i, 2), t[0], sWS, sT1, 512 * i, flags=self.o.get('pcf', 'sc1').replace('+', ' '))

    def poll_routine(self):
        main, self.p = self.p, Prog()
        p = self.p
        rv, tv, gv, t = self.poll_regs()
        ret = f"s_setpc_b64 {sRET}"
        p.lines.append("Lpoll:")
        p.raw("s_waitcnt vmcnt(0)")
        p.lines.append("Lpoll1:")
        p.salu("s_cmp_eq_u32", sROLE, 2)
        p.raw("s_cbranch_scc1 LpollC")
        allr = [rv[i].sub(k) for i in range(4) for k in range(4)]
        p.valu("v_max_u32", t[1], allr[0], allr[1])
        for i in range(2, 16, 2):
            p.valu("v_max3_u32", t[1], t[1], allr[i], allr[i + 1])
        p.valu("v_cmp_eq_u32", "vcc", -1, t[1])
        p.nop(5)
        p.raw("s_cbranch_vccz LpollR")
        self.poll_loads(p, True)
        p.raw(ret)
        self.p = p2 = Prog()
        p2.lines.append("LpollR:")
        p2.raw("s_setprio 3")
        for k in range(4):
            p2.valu("v_add_f32", rv[0].sub(k), rv[0].sub(k), rv[1].sub(k))
            p2.valu("v_add_f32", rv[3].sub(k), rv[2].sub(k), rv[3].sub(k))
            p2.valu("v_add_f32", rv[3].sub(k), rv[0].sub(k), rv[3].sub(k))
        vs, ts = regs(rv[3]), regs(rv[0])
        for r in (8, 4, 2, 1):
            for v in vs:
                p2.valu("v_add_f32_dpp", v, v, v, mods=f"row_ror:{r} row_mask:0xf bank_mask:0xf")
        for sw in (p2.swap16, p2.swap32):
            for v, u in zip(vs, ts):
                p2.valu("v_mov_b32", u, v)
            for v, u in zip(vs, ts):
                sw(v, u)
            for v, u in zip(vs, ts):
                p2.valu("v_add_f32", v, v, u)
        for v in vs:
            p2.valu("v_min_u32", v, -2, v)
        p2.salu("s_lshl_b32", sT1, sRED, 4)
        p2.salu("s_add_u32", sT1, sT1, WS_TOT)
        p2.valu("v_lshlrev_b32", t[1], 11, self.vLane)
        p2.raw(f"s_mov_b64 exec, {hex((1 << REP) - 1)}")
        p2.buf_store("buffer_store_dwordx4", rv[3], t[1], sWS, sT1, flags="sc1")
        p2.raw("s_mov_b64 exec, -1")
        p2.salu("s_cmp_eq_u32", sWAVE, 0)
        p2.salu("s_cselect_b32", sROLE, 2, 0)
        p2.raw("s_cbranch_scc0 LpollRx")
        p2.lines.append("LpollG:")
        p2.nop(2)
        self.poll_loads(p2, False, True)
        p2.lines.append("LpollRx:")
        p2.raw(ret)
        self.p = p3 = Prog()
        p3.lines.append("LpollC:")
        p3.valu("v_max3_u32", t[1], tv.sub(0), tv.sub(1), tv.sub(2))
        p3.valu("v_max3_u32", t[1], t[1], tv.sub(3), tv.sub(4))
        p3.valu("v_max_u32", t[1], t[1], tv.sub(5))
        p3.valu("v_cmp_eq_u32", "vcc", -1, t[1])
        p3.nop(5)
        p3.raw("s_cbranch_vccz LpollS")
        self.poll_loads(p3, False)
        p3.raw(ret)
        self.p = p4 = Prog()
        p4.lines.append("LpollS:")
        p4.raw("s_setprio 3")
        p4.salu("s_mov_b32", sT0, f2u(1.0 / (GA * GA)))
        p4.valu("v_mov_b32", t[2], f2u(1e-6))
        for i in range(6):
            p4.valu("v_fma_f32", tv.sub(i), tv.sub(i), sT0, t[2])
        for i in range(6):
            p4.valu("v_sqrt_f32", tv.sub(i), tv.sub(i))
        p4.valu("v_add_f32", t[3], tv.sub(0), tv.sub(1))
        for i in range(2, 6):
            p4.valu("v_add_f32", t[3], t[3], tv.sub(i))
        self.lane_sum64(t[3], t[1])
        p4.salu("s_mov_b32", sT0, f2u(1.0 / 384))
        p4.valu("v_fma_f32", t[3], t[3], sT0, t[2])
        p4.valu("v_rcp_f32", t[3], t[3])
        p4.valu("v_mov_b32", t[2], f2u(1.0 / GA))
        p4.valu("v_mul_f32", t[3], t[3], t[2])
        for i in range(3):
            p4.valu("v_lshlrev_b32", t[4], 16, gv[i])
            p4.valu("v_and_b32", t[5], 0xFFFF0000, gv[i])
            p4.valu("v_mul_f32", tv.sub(2 * i), tv.sub(2 * i), t[3])
            p4.valu("v_mul_f32", tv.sub(2 * i + 1), tv.sub(2 * i + 1), t[3])
            p4.valu("v_fma_f32", t[4], t[4], tv.sub(2 * i), t[2])
            p4.valu("v_fma_f32", t[5], t[5], tv.sub(2 * i + 1), t[2])
            p4.valu("v_cvt_pk_f16_f32", gv[i], t[4], t[5])
        p4.salu("s_mov_b32", sROLE, 0)
        p4.raw(ret)
        self.p = main
        for q in (p, p2, p3, p4):
            main.lines += q.lines

    def poll_point(self, k, red=False):
        p = self.p

        def body():
            if self.o.get('nb', 1):
                p.raw(f"s_getreg_b32 {sT0}, hwreg(HW_REG_IB_STS, 0, 4)")
                p.raw(f"s_cmp_lg_u32 {sT0}, 0")
                p.raw(f"s_cbranch_scc1 Lpp{k}")
            p.raw(f"s_call_b64 {sRET}, Lpoll")
            p.raw(f"s_setprio {self.prio}")
        if red:
            self.cond("s_cmp_lg_u32", sROLE, 1, f"Lpp{k}", body)
        else:
            self.cond("s_cmp_eq_u32", sROLE, 0, f"Lpp{k}", body)

    def gap(self):
        p, o, lane = self.p, self.o, self.vLane
        rv, tv, gv, t = self.poll_regs()
        self.stamp(224)
        p.raw("s_setprio 2")
        fr = [V(120 + 4 * u, 4) for u in range(9)]
        u = [V(224 + i) for i in range(4)]
        p.valu("v_lshrrev_b32", u[1], 5, lane)
        p.valu("v_lshl_add_u32", u[0], u[1], 9, sPRIV)
        p.valu("v_lshl_add_u32", u[2], u[1], 4, sPRIV)
        p.valu("v_and_b32", u[1], 15, lane)
        p.valu("v_lshl_add_u32", u[0], u[1], 4, u[0])
        p.valu("v_bfe_u32", u[1], lane, 4, 1)
        p.valu("v_lshl_add_u32", u[0], u[1], 3, u[0])
        if o.get('hs', 0):
            p.raw(f"s_waitcnt vmcnt({6 + (1 if o.get('stamps') else 0)})")
            self.cond("s_cmp_lg_u32", sWAVE, 0, "Lw0w", lambda: p.raw("s_waitcnt vmcnt(0)"))
        else:
            p.raw("s_waitcnt vmcnt(0)")
            p.vm_done = p.vm_seq
        for k in range(9):
            for i in range(2):
                p.ds_read("ds_read_b64_tr_b16", fr[k].sub(2 * i, 2), u[0], k * 1024 + i * 256)

        def lane_maps():
            g, n = u[1], u[3]
            p.valu("v_lshrrev_b32", g, 4, lane)
            p.valu("v_and_b32", n, 15, lane)
            p.valu("v_mul_u32_u24", self.vG, 192, n)
            p.valu("v_lshl_add_u32", self.vG, g, 4, self.vG)
            p.valu("v_lshlrev_b32", self.vBias, 5, g)
            p.valu("v_and_b32", self.vR, 0x2F, lane)
            p.valu("v_lshlrev_b32", self.vR, 4, self.vR)
            p.valu("v_and_b32", g, 1, g)
            p.valu("v_mul_u32_u24", n, 3072, g)
            p.valu("v_add_u32", self.vA[0], n, self.vR)
            p.valu("v_add_u32", self.vA[1], 0x10000, self.vA[0])
            p.valu("v_add_u32", self.vA[2], 0x20000, self.vA[0])
            p.valu("v_lshl_add_u32", self.vR, g, self.fsh, self.vR)
        if not self.g7:
            lane_maps()
        p.valu("v_mov_b32", u[1], CNT)
        p.valu("v_mov_b32", u[3], 1)
        for G in self.S3[:2]:
            for _, f in self.swaps(G.sub(0, 4), G.sub(4, 4)):
                f()
        p.wait_all(vm=False)
        p.raw("s_mov_b64 exec, 1")
        p.raw(f"ds_add_u32 {u[1]}, {u[3]} offset:8")
        p.raw("s_mov_b64 exec, -1")
        p.lgkm_seq += 1
        w = [V(228 + i) for i in range(4)]
        def to_f16(k):
            f, a, b = V(120 + k), w[2 * (k % 2)], w[2 * (k % 2) + 1]
            p.valu("v_lshlrev_b32", a, 16, f)
            p.valu("v_and_b32", b, 0xFFFF0000, f)
            p.valu("v_cvt_pk_f16_f32", f, a, b)
        ncv = o.get('ncv', 36)
        self.prio = 2
        for k in range(ncv):
            to_f16(k)
            if k % 12 == 11:
                self.poll_point(900 + k)
        p.valu("v_lshl_add_u32", u[0], lane, 4, sPRIV)
        for k, G in enumerate(self.S3[2:o.get('nsw', 2)]):
            for _, f in self.swaps(G.sub(0, 4), G.sub(4, 4)):
                f()
            if k % 4 == 3:
                self.poll_point(950 + k)
        for e in str(o.get('tb4', 'n')).split(','):
            if e != 'n':
                self.cond("s_cmp_eq_u32", sWAVE, 0, f"Ltb{e}", lambda: [self.touch(e[0], int(e[1]), w[0], (k, 2)) for k in range(2)])

        for i in range(3):
            p.valu("v_add_u32", w[i], 64 * i, lane)
            p.valu("v_mul_u32_u24", w[3], 2731, w[i])
            p.valu("v_lshrrev_b32", w[3], 16, w[3])
            p.valu("v_mul_u32_u24", w[3], 9216 - 96, w[3])
            p.valu("v_lshl_add_u32", w[i], w[i], 2, w[3])
            p.valu("v_add_u32", w[i], W2R, w[i])

        def helper():
            p.salu("s_cmp_ge_u32", S(2), 96)
            p.raw("s_cbranch_scc1 Lnohelp")
            p.salu("s_mov_b32", sROLE, 1)
            for r in rv:
                for i in range(4):
                    p.valu("v_mov_b32", r.sub(i), -1)
        if o.get('nred', 1) > 1:
            p.salu("s_sub_u32", sT0, sWAVE, 1)
            self.cond("s_cmp_ge_u32", sT0, o['nred'] - 1, "Lnohelp", helper)
        p.cond_begin()
        p.lines.append("Lspin:")
        p.salu("s_cmp_eq_u32", sROLE, 0)
        p.raw("s_cbranch_scc1 Lspinx")
        self.spin_guard("Lspinx")
        p.raw(f"s_call_b64 {sRET}, Lpoll")
        if o.get('bo'):
            p.raw(f"s_sleep {o['bo']}")
        p.raw("s_branch Lspin")
        p.lines.append("Lspinx:")
        p.cond_end()

        def finish():
            self.lds_spin(t[5], t[6], 8, 8, "rr")
            for i in range(3):
                p.ds_write("ds_write_b32", w[i], gv[i])
        self.cond("s_cmp_lg_u32", sWAVE, 0, "Lnofin", finish)
        p.raw("s_waitcnt lgkmcnt(0)")
        p.lgkm_done = p.lgkm_seq
        self.stamp(228)
        p.barrier()
        self.stamp(228)
        if o.get('hs', 0):
            ld = self.reload_ln(0, [self.LN[2].sub(4 * k, 4) for k in range(6)])
            for r in self.LN[2].regs():
                p.p_vm[r] = None
            self.cond("s_cmp_lg_u32", sWAVE, 0, "Lrl0w", lambda: [f() for f in ld])
        sc = [V(156, 4), V(160, 4), V(164, 4)]
        for k in range(3):
            p.ds_read("ds_read_b128", sc[k], u[2], 32 * k)
        if self.g7:
            lane_maps()
        p.wait_all(vm=False)
        for k in range(9):
            for i in range(4):
                if 4 * k + i >= ncv:
                    to_f16(4 * k + i)
            for i in range(4):
                p.valu("v_pk_mul_f16", fr[k].sub(i), fr[k].sub(i), sc[k // 3].sub(i))
            wb = o.get('wbits', 0)
            for r_ in (regs(fr[k]) if wb else []):
                p.valu("v_add_u32", r_, (1 << (wb - 1)) * 0x10001, r_)
                p.valu("v_and_b32", r_, (0xFFFF & ~((1 << wb) - 1)) * 0x10001, r_)
            tok = p.ds_write("ds_write_b128", u[0], fr[k], k * 1024)
        if self.g7:
            for k in range(12):
                T, b = k // 4, k % 2
                p.ds_read("ds_read_b128", V(120 + 4 * k, 4), self.vBias, (BT0 + 128 * T if T < 2 else BT1) + 16 * b)
        p.wait(lgkm=tok)
        self.pad('padb5')
        p.barrier()
        if o.get('x_rel'):
            p.raw("s_memrealtime s[100:101]")
            p.raw("s_waitcnt lgkmcnt(0)")
        self.stamp(228)

    def load_x1(self, dst, ti, k):
        p = self.p
        if k % 2:
            p.salu("s_add_u32", sT3, sTILE[ti], ROWB)
        if 'X' in self.o.get('x_no', ''):
            return
        if 'x' in self.o.get('x_lin', ''):
            p.buf_load("buffer_load_dwordx4", dst, self.vO, sX, sT3 if k % 2 else sTILE[ti], 128 * (k // 2), flags=self.o.get('xlf', ''))
            return
        p.buf_load("buffer_load_dwordx4", dst, self.vG, sX, sT3 if k % 2 else sTILE[ti], 64 * (k // 2), flags='nt' if f'{ti}{k // 2}' in str(self.o.get('xnt', '')).split(',') else '')

    def reload_ln(self, ti, dst):
        p = self.p
        if 'L' in self.o.get('x_no', '') and ti == 1:
            return []
        return [lambda k=k: self.ws_frag(6 * ti + (k & ~1), lambda so: p.buf_load(
            "buffer_load_dwordx4", dst[k], self.vR, sWS, so, 256 * (k & 1), flags=self.o.get('rlf', 'nt'))) for k in range(6)]

    def reload_map(self):
        p, lane = self.p, self.vLane
        p.valu("v_and_b32", self.vR, 0x2F, lane)
        p.valu("v_lshlrev_b32", self.vR, 4, self.vR)
        p.valu("v_bfe_u32", self.vBias, lane, 4, 1)
        p.valu("v_lshl_add_u32", self.vR, self.vBias, self.fsh, self.vR)

    def out_map(self):
        p = self.p
        p.valu("v_and_b32", self.vO, 1, self.vLane)
        p.valu("v_lshlrev_b32", self.vO, 7, self.vO)
        p.valu("v_sub_u32", self.vO, self.vG, self.vO)
        p.salu("s_mov_b32", sEV.sub(0), 0x55555555)
        p.salu("s_mov_b32", sEV.sub(1), 0x55555555)

    def early_loads(self):
        self.load_x1(V(240, 4), 3, self.po[0])
        self.load_x1(V(244, 4), 3, self.po[1])

    def gemm1_16(self, j, ln, y, need):
        p = self.p
        return [dict(reads=[self.frag(W1F + (j * 6 + u) * 1024 + 256 * b)], need=need,
                     emit=[(lambda w, u=u, b=b, r=r: p.mfma(y[2 * r + b], w, ln[2 * u + r], y[2 * r + b] if u else 0)) for r in range(2)])
                for u in range(3) for b in range(2)]

    def gemm2_16(self, j, users, tag=None):
        p = self.p
        items = []
        for T in range(3):
            for b in range(2):
                reads = [self.frag(W2R + (j * 6 + T) * 1024 + 256 * b)]
                if any(f for _, _, f in users):
                    reads.append(rd128(self.vBias, (BT0 + 128 * T if T < 2 else BT1) + 16 * b))
                em = []
                for acc, G, f in users:
                    for r in range(2):
                        d = acc[2 * T + r].sub(4 * b, 4)
                        em.append(lambda w, c=None, d=d, G=G, r=r, f=f: p.mfma(d, w, G.sub(4 * r, 4), c if f else d, 'f16'))
                items.append(dict(reads=reads, emit=em, tag=tag if (T, b) == (2, 1) else None))
        return items

    def resid_item(self, acc, k, x):
        p = self.p
        return dict(reads=[], emit=[(lambda b=b: p.mfma(acc[k].sub(4 * b, 4), self.id16.sub(2 - 2 * b, 4), x, acc[k].sub(4 * b, 4))) for b in range(2)])

    def ident16(self):
        p, lane, I = self.p, self.vLane, self.id16
        a, b = I.sub(0), I.sub(1)
        ops = [lambda: p.valu("v_and_b32", a, 1, lane),
               lambda: p.valu("v_lshlrev_b32", a, 4, a),
               lambda: p.valu("v_mov_b32", b, 0x3F80),
               lambda: p.valu("v_lshlrev_b32", a, a, b),
               lambda: p.valu("v_lshrrev_b32", b, 2, lane),
               lambda: p.valu("v_xor_b32", b, b, lane),
               lambda: p.valu("v_and_b32", b, 12, b),
               lambda: p.valu("v_and_b32", I.sub(4), 2, lane),
               lambda: p.valu("v_or_b32", b, b, I.sub(4)),
               lambda: (p.valu("v_cmp_eq_u32", "vcc", 0, b), p.valu("v_cndmask_b32", I.sub(2), 0, a, "vcc")),
               lambda: (p.valu("v_cmp_eq_u32", "vcc", 2, b), p.valu("v_cndmask_b32", I.sub(3), 0, a, "vcc"))]
        ops += [lambda i=i: p.valu("v_mov_b32", I.sub(i), 0) for i in (0, 1, 4, 5)]
        return [(4, f) for f in ops]

    def pack_row(self, acc, r, dst=None):
        p = self.p
        a = [acc[2 * T + r] for T in range(3)]
        X, Y, Z = dst or (a[0].sub(0, 4), a[1].sub(4, 4), a[2].sub(0, 4))
        q = "quad_perm:[1,0,3,2] row_mask:0xf bank_mask:0xf"
        ops = [(4, lambda v=v, i=i: p.valu("v_cvt_pk_bf16_f32", v.sub(i), v.sub(2 * i), v.sub(2 * i + 1))) for v in (a[1], a[0], a[2]) for i in range(4)]
        ops.append((0, lambda: p.salu("s_mov_b64", "vcc", sEV)))
        for i in range(4):
            ops.append((4, lambda i=i: p.valu("v_cndmask_b32_e64", Y.sub(i), a[0].sub(i), a[2].sub(i), sEV)))
            ops.append((4, lambda i=i: p.valu("v_cndmask_b32_dpp", X.sub(i), a[1].sub(i), a[0].sub(i), "vcc", mods=q)))
        ops.append((0, lambda: p.salu("s_not_b64", "vcc", sEV)))
        ops += [(4, lambda i=i: p.valu("v_cndmask_b32_dpp", Z.sub(i), a[1].sub(i), a[2].sub(i), "vcc", mods=q)) for i in range(4)]
        return ops, (X, Y, Z)

    def store_line(self, v, ti, r, k):
        p = self.p
        if 'O' in self.o.get('x_no', ''):
            return
        if r:
            p.salu("s_add_u32", sT3, sTILE[ti], ROWB)
        p.buf_store("buffer_store_dwordx4", v, self.vO, sOUT, sT3 if r else sTILE[ti], 128 * k, flags=self.o.get('osf1' if ti == 1 else 'osf', 'sc1'))

    def phase2(self):
        p, o = self.p, self.o
        S3, S2, J2 = self.S3, self.S2, self.J2
        hs = o.get('hs', 0)
        C2_ = [] if hs else [j for j in range(12) if j not in J2]
        half = lambda v: [v.sub(0, 4), v.sub(4, 4)]
        A = [V(120 + 8 * i, 8) for i in range(6)]
        kl = self.kl
        g7 = self.g7
        assert not g7 or (kl and not hs)
        st2 = [S2[j] for j in J2] + S3[6 - kl + g7:6]
        xs = half(S3[g7]) + half(S3[1 + g7]) + half(st2[6])
        self.id16 = S3[2 + g7].sub(0, 6)
        R0 = [x for v in self.KL + S3[3 + g7:6 - kl + g7] for x in half(v)]
        B = S3[6:12]
        Y = half(st2[0]) + half(st2[1])
        W = regs(st2[2], st2[3], st2[4].sub(0, 4))
        G = st2[5]
        d2 = o.get('d2', 0) and not hs
        GG = [G, st2[6]] if d2 else [G, G]
        ext = half(st2[7])
        ring0 = self.ring2[:2] + (half(S3[0]) if g7 else [V(240, 4), V(244, 4)])
        ring3 = ring0 + ext
        R1 = [self.LN[2].sub(4 * k, 4) for k in range(6)]
        self.ge = Gelu(self, W, sK, sM, 0)
        seq = [(2, j) for j in C2_] + [(0, j) for j in ints(o.get('o0j', '0,1,2,4,3,5,6,7,8,9,10,11'))] + [(1, j) for j in range(12)]
        NE = len(seq)
        pre = [seg() for _ in range(10)]
        for j in range(12):
            pre[j // 2]['mf'] += self.gemm2_16(j, [(A, S3[j], j == 0 and not g7)])
        if g7:
            r00 = ring0[:2]
            for it in pre[0]['mf'][:6]:
                it['reads'][0]['ring'] = r00
            pre[0]['free_from'] = {v.b: 5 for v in ring0[2:]}
        for k, j in enumerate(J2):
            pre[(6, 6, 7, 7, 8, 8, 8, 9)[k]]['mf'] += self.gemm2_16(j, [(B, S2[j], k == 0)])
        for j in range(o.get('nsw', 2), 12):
            pre[j // 2 - 1]['fill'] += self.swaps(*half(S3[j]))
        for k, j in enumerate(J2):
            pre[(5, 5, 4, 3, 7, 7, 7, 8)[k]]['fill'] += self.swaps(*half(S2[j]))
        if hs:
            HB = S3[3:6] + [st2[6]]
            rl = [lambda k=k: self.ws_frag(12 + (k & ~1), lambda so: p.buf_load(
                "buffer_load_dwordx4", HB[k // 2].sub(4 * (k & 1), 4), self.vR, sWS, so, 256 * (k & 1), flags=o.get('rlf', 'nt'))) for k in range(8)]
            pre[9]['vm'] += rl[6:]
            R0, R1 = R1, R0
        else:
            for k in range(3):
                pre[(0, 1, 5)[k]]['fill'] += self.swaps(R1[2 * k], R1[2 * k + 1])
            for k in range(kl):
                pre[(6, 8, 8)[k]]['fill'] += self.swaps(R0[2 * k], R0[2 * k + 1])
            rl = self.reload_ln(0, R0)[2 * kl:]
        pre[2 + g7]['vm'] += rl[:2]
        for k in range(2, 6 - 2 * kl):
            pre[int(o.get('rl0', 3 + g7) + (k - 2) * o.get('rl0s', 0.5))]['vm'].append(rl[k])
        pre[2]['fill'] += self.ident16()
        pre[5]['pre'].append(self.out_map)
        g1 = self.gemm1_16(seq[0][1], R0 if hs else R1, Y, 0)
        for k in range(2):
            m = pre[7 + k]['mf']
            pre[7 + k]['mf'] = [x for i in range(3) for x in m[4 * i:4 * i + 2] + [g1[3 * k + i]] + m[4 * i + 2:4 * i + 4]] + m[12:]
        NP = NE + 2
        P = [seg() for _ in range(NP)]
        P[0] = pre.pop()
        for s in pre + P:
            s['cl'] = 1
        acc = {2: B, 0: A, 1: B, 3: A}
        lns = {2: R1, 0: R0, 1: R1}
        nds = ints(o.get('nd2', '5'))
        yl = regs(*Y)
        ex = [[] for _ in range(NP)]
        late = []
        for s in range(NP):
            S_ = P[s]
            a = self.gemm1_16(seq[s + 1][1], lns[seq[s + 1][0]], Y, 8) if s + 1 < NE else []
            b = list(S_['mf'])
            if 1 <= s <= NE:
                ti, j = seq[s - 1]
                users = [(acc[ti], GG[(s - 1) % 2], ti != 2 and (s == 1 or seq[s - 2][0] != ti))]
                if hs and ti == 0 and j < 4:
                    users.append((B, HB[j], False))
                b = self.gemm2_16(j, users, 'g')
            if s < NE and d2:
                S_['fill'], mk, late = self.period_def(W, yl, 5, regs(GG[s % 2]), s % 2, late, now=s == NE - 1, ph=2)
                if s:
                    for it in b:
                        it['mark'] = mk
            elif s < NE:
                S_['fill'] = self.period_fill(yl, 6 if s in ints(o.get('nd6', 'n' if hs else f'0,{7 + kl - g7},{12 + kl - g7},{19 + kl - g7},{24 + kl - g7}')) else nds[s % len(nds)], G=regs(G), tag='g' if s else None, ph=2)
            S_['ab'] = (a, b)
            S_['tail'] = o.get('t2', 0 if d2 else 32)
            if d2 and 1 <= s < NE:
                S_['head'] = o.get('h2', 32)
        n2 = len(C2_)
        allseg = pre + P
        base = len(pre)
        minl = o.get('minl', 2)
        xs += [st2[4].sub(4, 4)] + R0
        avail = {0: -8, 1: -8, 2: -8, 3: -8, 4: 0, 5: 0, 6: 0}
        avail.update({7 + k: n2 + 11 for k in range(6)})
        hat = {j: seq.index((0, j)) + 1 for j in range(4)}
        if hs:
            avail[4] = avail[5] = hat[3] + 1
        if d2:
            del avail[4], avail[5]
        if kl - g7 == 2:
            avail[4] = avail[5] = -6
        if g7:
            avail[2] = avail[3] = -7
        kl -= g7
        done = {}
        gl, gu = o.get('gl', 1), o.get('gu', 1)
        po = self.po
        want = [(-8, -6 + i // 2, 3, k) for i, k in enumerate(po)]
        rest = []
        for ti, d in (((2, '-4,0.8,1,1'), (0, '7,1.4,12,1.3'), (1, '15,1.1,19,1')) if hs else ((2, f'-4,0.8,{1 + kl},1'), (0, f'{10 + kl},1.6,{16 + kl},1.4'), (1, f'{19 + kl},1.1,{23 + kl},1'))):
            l0, ls_, u0, us = flts(o.get(f'x{ti}', d))
            rest += [(math.floor(l0 + (i - i % gl) * ls_), math.floor(u0 + (i - i % gu) * us), ti, k) for i, k in enumerate(po)]
        want += sorted(rest, key=lambda w: w[:3])
        log = []
        for i, (at, s, ti, k) in enumerate(want):
            if True:
                ok = [b_ for b_ in avail if avail[b_] <= at]
                bi = max(ok, key=lambda b_: (avail[b_], b_)) if ok else min(avail, key=lambda b_: (avail[b_], b_))
                at = max(avail[bi], at)
                s = max(s, at + minl)
                f = lambda buf=xs[bi], ti=ti, k=k: self.load_x1(buf, ti, k)
                vm = allseg[base + at]['vm']
                if gl > 1 and log and log[-1][0] == ti and log[-1][2] == at and i > 2:
                    vm[-1] = (lambda f0=vm[-1], f=f: (f0(), f()))
                else:
                    vm.append(f)
            it = self.resid_item(acc[ti], k, xs[bi])
            (allseg[base + s]['mf'] if s < 0 else ex[s]).append(it)
            avail[bi] = s + 1
            done[(ti, k)] = s
            log.append((ti, k, at, s))
        if o.get('show'):
            print('x (tile, piece, load, use)', log)
        first = {3: -9, 2: -3, 0: n2 + 1, 1: n2 + 13}
        assert all(done[(ti, k)] > first[ti] for ti, k in done), done
        last = {3: -4, 2: max(hat.values()) if hs else n2, 0: n2 + 12, 1: NE}
        free = {3: n2, 2: n2 + 12, 0: NP - 1, 1: NP - 1}
        r1_free = [hat[k // 2] + 1 for k in range(6)] if hs else [n2 - 1] * 6
        olog = []
        for ti, d in (((3, '-3,0.7'), (2, '6,1.3'), (0, '15,1.7'), (1, '25,0')) if hs else ((3, '-3,1'), (2, f'{7 + kl},1.8'), (0, f'{19 + kl},1.7'), (1, f'{29 + kl},0'))):
            o0, st = flts(o.get(f'o{ti}', d))
            for r in range(2):
                ts = [math.floor(o0 + (3 * r + k) * st) for k in range(3)]
                s = min(max([ts[0], last[ti] + 1] + [done[(ti, 2 * T + r)] + 1 for T in range(3)]), free[ti])
                ts = [max(t_, s) for t_ in ts]
                dst = None
                if ts[2] > free[ti]:
                    assert ti == 3 and s >= n2 - 1 and not hs
                    dst = R1[3 * r:3 * r + 3]
                    r1_free[3 * r:3 * r + 3] = [t_ + 1 for t_ in ts]
                ops, V3 = self.pack_row(acc[ti], r, dst)
                for k in range(3):
                    f = lambda v=V3[k], ti=ti, r=r, k=k: self.store_line(v, ti, r, k)
                    if ts[k] == s:
                        ops.append((0, lambda f=f: self.gq.append(f)))
                    else:
                        allseg[base + ts[k]]['vm'].append(f)
                olog.append((ti, r, s, ts))
                if s < 0:
                    allseg[base + s]['fill'] += ops
                    allseg[base + s]['head'] = -24
                elif s < NE:
                    f = P[s]['fill']
                    assert not P[s].get('packed')
                    P[s]['packed'] = True
                    cut = next((i for i, x in enumerate(f) if len(x) > 2), len(f) - 8)
                    P[s]['fill'] = f[:8] + merge(f[8:cut - 4], ops) + f[cut - 4:]
                else:
                    P[s]['fill'] += ops + [(0, self.flush)]
        if o.get('show'):
            print('out (tile, row, pack, stores)', olog)
        for k, f in enumerate(self.reload_ln(1, R1)):
            t_ = max(int(o.get('rl1', 2 if hs else 3 + kl) + k * o.get('rl1s', 1)), r1_free[k])
            assert t_ <= n2 + 9
            P[t_]['vm'].append(f)
        for s in range(NP):
            a, b = P[s].pop('ab')
            src = {'a': a, 'b': b, 'x': ex[s]}
            P[s]['mf'] = [src[c].pop(0) for c in ((o.get('ord', 'aaxaaxaabbbbbb') if d2 and s else 'bbabxababbxaaa') + 'x' * 6) if src[c]]
            if d2 and s == 0:
                P[s]['tail'] = 32
            assert not any(src.values())
            if s == NE and o.get('rf', 1):
                its = [it for it in P[s]['mf'] if it['reads']]
                keep = []
                A_ = dict(reads=[it['reads'][0] for it in its], tag='r0',
                          emit=[(lambda *w, k=k, it=it: (keep.append(w[k]), it['emit'][0](w[k]))) for k, it in enumerate(its)])
                B_ = dict(reads=[], emit=[(lambda k=k, it=it: it['emit'][1](keep[k])) for k, it in enumerate(its)])
                P[s]['mf'] = [it for it in P[s]['mf'] if not it['reads']] + [A_, B_]
                f = P[s + 1]['fill']
                h = next(i for i, x in enumerate(f) if x[1] == self.flush) + 1
                P[s]['fill'] += [x + ('r0',) for x in f[:h]]
                P[s + 1]['fill'] = f[h:]
                P[s]['tail'] = 0
            if s >= 1:
                P[s]['ring'] = ring3
        n_pre = sum(len(s['mf']) for s in pre + P[:1])
        for s in P[1:]:
            s['free_from'] = {v.b: n_pre - 1 for v in ext}
        self.touches(allseg, o.get('t2s', 'n'), S3[2 + g7].sub(7), base)
        for k in ints(o.get('ca2', 'n')):
            P[k]['end'].append(lambda k=k: self.code_again(W[0], f'b{k}'))
        lc = o.get('lc2', 3)
        for a in range(o.get('l2a', 0), NP - o.get('l2e', 8), lc):
            self.ladder(P, a, a + lc, flts(o.get('pf2', '0,0.4,0.7,0.9')))
        for k in ints(o.get('ssp', '0,6,12,18,24' if o.get('dbg') else '0,3,6,10,14,18,22,24')):
            P[k]['end'].append(self.sstamp)
        p.raw(f"s_setprio {o.get('pp', 3)}")
        p.lds_age = o.get('age2', 24)
        self.imm = o.get('imm2', 99)
        self.run(allseg, ring0)
        if o.get('stamps'):
            p.raw('s_waitcnt vmcnt(0)')
        self.stamp(96)
        self.sstamp_flush(100)
        self.mark_flush()
        self.pad('padend')

    def build(self):
        self.alloc()
        self.vW1g, self.vW1r, self.vW1w = V(189), V(190), V(191)
        self.p.lines.append("Lmain:")
        self.prologue()
        self.phase1()
        self.gap()
        self.phase2()
        self.p.raw("s_endpgm")
        self.poll_routine()
        self.p.lines.append("Lend:")
        self.p.raw("s_endpgm")
        return self.p


HEADER = open('standalone__modern_conv_block_convnext_v2__vision.s.ref').read().split('; Override launch')[0]


def wrap(p):
    return f"""{HEADER}; Generated by gen/gen2.py (hand-written generator; see gen/asmgen.py, gen/engine.py, gen/gelu.py)
; @launch grid=(256,1,1) block=(512,1,1) lds={LDS_BYTES}
.amdgcn_target "amdgcn-amd-amdhsa--gfx950"
.text
.globl {NAME}
.p2align 8
.type {NAME},@function
{NAME}:
{p.text()}
.section .rodata,"a"
.p2align 6
.amdhsa_kernel {NAME}
  .amdhsa_next_free_vgpr 256
  .amdhsa_next_free_sgpr 102
  .amdhsa_accum_offset 256
  .amdhsa_group_segment_fixed_size 0
  .amdhsa_kernarg_size 72
  .amdhsa_user_sgpr_count 2
  .amdhsa_user_sgpr_kernarg_segment_ptr 1
  .amdhsa_system_sgpr_workgroup_id_x 1
.end_amdhsa_kernel
"""


def generate(out, args):
    opt = {}
    for a in args:
        k, v = a.split('=')
        try:
            opt[k] = int(v)
        except ValueError:
            try:
                opt[k] = float(v)
            except ValueError:
                opt[k] = v
    g = Gen(opt)
    p = g.build()
    from align import align_dp
    al = align_dp(p.lines, opt.get('wcost', 0.2), opt.get('ncost', 0)) if opt.get('al', 0) else None
    open(out, 'w').write(wrap(p))
    print(out, 'align', al, 'instructions', sum(p.stats.values()), 'stamps', g.nstamp,
          {k: v for k, v in p.stats.items() if k in ('s_nop', 's_waitcnt', 'ds_read_b128') or 'mfma' in k})


if __name__ == '__main__':
    generate(sys.argv[1], sys.argv[2:])
```

```python
class V:
    __slots__ = ("b", "n")

    def __init__(self, b, n=1):
        assert 0 <= b and b + n <= 256, (b, n)
        if n > 1:
            assert b % 2 == 0, ("unaligned tuple", b, n)
        self.b, self.n = b, n

    def __str__(self):
        return f"v{self.b}" if self.n == 1 else f"v[{self.b}:{self.b + self.n - 1}]"

    def regs(self):
        return range(self.b, self.b + self.n)

    def sub(self, off, n=1):
        assert off + n <= self.n
        return V(self.b + off, n)


class S:
    __slots__ = ("b", "n")

    def __init__(self, b, n=1):
        self.b, self.n = b, n

    def __str__(self):
        return f"s{self.b}" if self.n == 1 else f"s[{self.b}:{self.b + self.n - 1}]"

    def sub(self, off, n=1):
        return S(self.b + off, n)


TRANS = ("v_exp_f32", "v_rcp_f32", "v_rsq_f32", "v_sqrt_f32", "v_log_f32",
         "v_exp_f16", "v_rcp_f16", "v_exp_f16_sdwa", "v_rcp_f16_sdwa")
NEG = -10 ** 9


class Prog:
    def __init__(self):
        self.lines = []
        self.pos = 0
        self.w_valu = [NEG] * 256
        self.w_trans = [NEG] * 256
        self.w_dot = [NEG] * 256
        self.w_mfma = [(NEG, None)] * 256
        self.c_read = [NEG] * 256
        self.st_read = [NEG] * 256
        self.p_lgkm = [None] * 256
        self.p_vm = [None] * 256
        self.lgkm_seq = 0
        self.lgkm_done = 0
        self.vm_seq = 0
        self.vm_done = 0
        self.sgpr_valu_w = {}
        self.m0_w = NEG
        self.stats = {}
        self.lds_age = 0
        self.lds_pos = {}

    def raw(self, text, states=1):
        self.lines.append(text)
        self.pos += states
        k = text.split()[0]
        self.stats[k] = self.stats.get(k, 0) + 1

    def comment(self, text):
        self.lines.append("; " + text)

    def nop(self, n):
        while n > 0:
            k = min(n, 16)
            self.raw(f"s_nop {k - 1}", k)
            n -= k

    def _need(self, target):
        if target > self.pos:
            self.nop(target - self.pos)

    def wait(self, lgkm=None, vm=None):
        parts = []
        if vm is not None and vm > self.vm_done:
            n = min(self.vm_seq - vm, 63)
            parts.append(f"vmcnt({n})")
            self.vm_done = self.vm_seq - n
        if lgkm is not None and lgkm > self.lgkm_done:
            if self.lds_age:
                while lgkm < self.lgkm_seq and self.lds_pos.get(lgkm + 1, self.pos) <= self.pos - self.lds_age:
                    lgkm += 1
            n = min(self.lgkm_seq - lgkm, 15)
            parts.append(f"lgkmcnt({n})")
            self.lgkm_done = self.lgkm_seq - n
        if parts:
            self.raw("s_waitcnt " + " ".join(parts))

    def wait_all(self, lgkm=True, vm=True):
        self.wait(self.lgkm_seq if lgkm else None, self.vm_seq if vm else None)

    def sync(self):
        self.raw("s_waitcnt vmcnt(0) lgkmcnt(0)")
        self.lgkm_done = self.lgkm_seq
        self.vm_done = self.vm_seq
        last = max(p for p, _ in self.w_mfma)
        self._need(max(last + 1 + 12, self.pos + 5))

    def _mem_deps(self, regs):
        lg = vm = None
        for r in regs:
            if self.p_lgkm[r] is not None:
                lg = max(lg or 0, self.p_lgkm[r])
            if self.p_vm[r] is not None:
                vm = max(vm or 0, self.p_vm[r])
        self.wait(lg, vm)

    @staticmethod
    def _vregs(ops):
        out = []
        for o in ops:
            if isinstance(o, V):
                out.extend(o.regs())
        return out

    def _sgpr_from_valu(self, ops, states):
        for o in ops:
            if isinstance(o, S):
                for r in range(o.b, o.b + o.n):
                    if r in self.sgpr_valu_w:
                        self._need(self.sgpr_valu_w[r] + 1 + states)
            elif o == "vcc" and "vcc" in self.sgpr_valu_w:
                self._need(self.sgpr_valu_w["vcc"] + 1 + states)

    def valu(self, op, dst, *src, mods="", rmw=False, extra_w=()):
        rd = self._vregs(src)
        wr = self._vregs([dst] + list(extra_w))
        if rmw:
            rd += wr
        self._mem_deps(rd + wr)
        trans = op in TRANS
        t = self.pos
        for r in rd + wr:
            t = max(t, self.w_mfma[r][0] + 1 + 12)
        for r in wr:
            t = max(t, self.c_read[r] + 1 + 7, self.st_read[r] + 1 + 2)
        if not trans or rmw:
            for r in rd:
                t = max(t, self.w_trans[r] + 1 + 1)
        if not op.startswith("v_dot2"):
            for r in rd + wr:
                t = max(t, self.w_dot[r] + 1 + 3)
        if "permlane" in op or "dpp" in op:
            for r in rd:
                t = max(t, self.w_valu[r] + 1 + 2)
        if "readfirstlane" in op or "readlane" in op:
            for r in rd:
                t = max(t, self.w_valu[r] + 1 + 1)
        self._need(t)
        self._sgpr_from_valu(src, 2)
        txt = f"{op} {dst}" + "".join(f", {s}" for s in src) + (" " + mods if mods else "")
        p = self.pos
        self.raw(txt)
        for r in wr:
            self.w_valu[r] = p
            if trans:
                self.w_trans[r] = p
            if op.startswith("v_dot2"):
                self.w_dot[r] = p
        if isinstance(dst, S):
            for r in range(dst.b, dst.b + dst.n):
                self.sgpr_valu_w[r] = p
        elif dst == "vcc":
            self.sgpr_valu_w["vcc"] = p

    def swap32(self, a, b):
        self.valu("v_permlane32_swap_b32", a, b, rmw=True, extra_w=(b,))

    def swap16(self, a, b):
        self.valu("v_permlane16_swap_b32", a, b, rmw=True, extra_w=(b,))

    def hi16(self, op, dst, src):
        self.valu(op + "_sdwa", dst, src, mods="dst_sel:WORD_1 dst_unused:UNUSED_PRESERVE src0_sel:WORD_1", rmw=True)

    def mfma(self, d, a, b, c, ty="bf16"):
        rd_ab = self._vregs([a, b])
        rd_c = self._vregs([c])
        wr = list(d.regs())
        self._mem_deps(rd_ab + rd_c + wr)
        t = self.pos
        for r in rd_ab + rd_c:
            t = max(t, self.w_valu[r] + 1 + 2)
        for r in rd_ab:
            t = max(t, self.w_mfma[r][0] + 1 + 12)
        key = (d.b, d.n)
        for r in rd_c:
            p, k = self.w_mfma[r]
            if k != (c.b, c.n):
                t = max(t, p + 1 + 10)
        for r in wr:
            p, k = self.w_mfma[r]
            if not (isinstance(c, V) and k == (c.b, c.n) == key):
                t = max(t, p + 1 + 10)
            t = max(t, self.st_read[r] + 1 + 2)
        self._need(t)
        p = self.pos
        short = 4 if d.n == 4 else 0
        name = ("v_mfma_f32_16x16x32_" if d.n == 4 else "v_mfma_f32_32x32x16_") + ty
        self.raw(f"{name} {d}, {a}, {b}, {c}")
        for r in wr:
            self.w_mfma[r] = (p - short, key)
        for r in rd_c:
            self.c_read[r] = p - short

    def smfmac(self, d, a, b, idx):
        n = len(self.lines)
        t = max(self.w_valu[idx.b] + 1 + 2, self.w_mfma[idx.b][0] + 1 + 12)
        self._need(t)
        self.mfma(d, a, b, d)
        assert self.lines[-1].startswith("v_mfma_f32_16x16x32_bf16")
        self.lines[-1] = f"v_smfmac_f32_16x16x32_bf16 {d}, {a}, {b}, {idx}"

    def _mem_issue(self, rd, wr):
        self._mem_deps(rd + wr)
        t = self.pos
        for r in rd + wr:
            t = max(t, self.w_mfma[r][0] + 1 + 12)
        for r in rd:
            t = max(t, self.w_trans[r] + 1 + 1)
        for r in wr:
            t = max(t, self.c_read[r] + 1 + 7, self.st_read[r] + 1 + 1)
        self._need(t)

    def ds_read(self, op, dst, addr, off=0):
        assert 0 <= off < 65536, off
        self._mem_issue([addr.b], list(dst.regs()))
        self.raw(f"{op} {dst}, {addr}" + (f" offset:{off}" if off else ""))
        self.lgkm_seq += 1
        self.lds_pos[self.lgkm_seq] = self.pos
        for r in dst.regs():
            self.p_lgkm[r] = self.lgkm_seq
        return self.lgkm_seq

    def ds_write(self, op, addr, data, off=0):
        assert 0 <= off < 65536, off
        self._mem_issue([addr.b] + list(data.regs()), [])
        p = self.pos
        self.raw(f"{op} {addr}, {data}" + (f" offset:{off}" if off else ""))
        for r in data.regs():
            self.st_read[r] = p
        self.lgkm_seq += 1
        return self.lgkm_seq

    def _vm_text(self, op, data, voff, srd, soff, off, flags):
        assert 0 <= off < 4096, off
        self._sgpr_from_valu([srd, soff], 5)
        t = op + " " + (f"{data}, " if data is not None else "") + f"{voff}, {srd}, {soff} offen"
        if off:
            t += f" offset:{off}"
        if flags:
            t += " " + flags
        return t

    def buf_load(self, op, dst, voff, srd, soff=0, off=0, flags=""):
        self._mem_issue([voff.b], list(dst.regs()))
        self.raw(self._vm_text(op, dst, voff, srd, soff, off, flags))
        self.vm_seq += 1
        for r in dst.regs():
            self.p_vm[r] = self.vm_seq
        return self.vm_seq

    def buf_store(self, op, data, voff, srd, soff=0, off=0, flags="", ret=False):
        self._mem_issue([voff.b] + list(data.regs()), [])
        txt = self._vm_text(op, data, voff, srd, soff, off, flags)
        p = self.pos
        self.raw(txt)
        self.vm_seq += 1
        for r in data.regs():
            self.st_read[r] = p
            if ret:
                self.p_vm[r] = self.vm_seq
        return self.vm_seq

    def dma(self, voff, srd, soff=0, off=0, flags=""):
        self._mem_issue([voff.b], [])
        self._need(self.m0_w + 1 + 1)
        self.raw(self._vm_text("buffer_load_dwordx4", None, voff, srd, soff, off, (flags + " lds").strip()))
        self.vm_seq += 1
        return self.vm_seq

    def salu(self, op, *ops):
        self._sgpr_from_valu(ops, 2)
        p = self.pos
        self.raw(f"{op} " + ", ".join(str(o) for o in ops))
        if ops and ops[0] == "m0":
            self.m0_w = p

    def label(self, name):
        self.sync()
        self.lines.append(f"{name}:")

    def branch(self, op, name):
        self.sync_soft()
        self.raw(f"{op} {name}")

    def sync_soft(self):
        self.raw("s_waitcnt vmcnt(0) lgkmcnt(0)")
        self.lgkm_done = self.lgkm_seq
        self.vm_done = self.vm_seq
        last = max(p for p, _ in self.w_mfma)
        self._need(max(last + 1 + 12, self.pos + 5))

    def cond_begin(self):
        self._cond = (self.vm_seq, self.vm_done, self.lgkm_seq, self.lgkm_done)
        self._cond_pos = self.pos

    def cond_end(self):
        vs, vd, ls, ld = self._cond
        for arr, lim in ((self.p_vm, vs), (self.p_lgkm, ls)):
            for r in range(256):
                if arr[r] is not None and arr[r] > lim:
                    arr[r] = lim
        self.vm_done = min(vd, vs - 1) if self.vm_seq > vs else vd
        self.lgkm_done = min(ld, ls - 1) if self.lgkm_seq > ls else ld
        self.vm_seq, self.lgkm_seq = vs, ls
        shift = self.pos - self._cond_pos
        for arr in (self.w_valu, self.w_trans, self.w_dot, self.c_read, self.st_read):
            for r in range(256):
                if arr[r] < self._cond_pos:
                    arr[r] += shift
        for r in range(256):
            if self.w_mfma[r][0] < self._cond_pos:
                self.w_mfma[r] = (self.w_mfma[r][0] + shift, self.w_mfma[r][1])
        for k, v in self.sgpr_valu_w.items():
            if v < self._cond_pos:
                self.sgpr_valu_w[k] = v + shift
        if self.m0_w < self._cond_pos:
            self.m0_w += shift
        return vs

    def barrier(self):
        self.raw("s_barrier")

    def text(self):
        return "\n".join(self.lines) + "\n"
```

```python
from engine import *


class Gelu:
    def __init__(self, eng, W, sK, sM, tab=0, bf=False):
        self.bf = bf
        self.e, self.W, self.sK, self.sM, self.tab = eng, W, sK, sM, tab

    def need(self, *rs):
        if any(getattr(f, 'reg', None) == r.b for f in self.e.gq for r in rs):
            self.e.flush()

    def look(self, op, r):
        f = lambda: self.e.p.ds_read(op, r, r, self.tab)
        f.reg = r.b
        self.e.gq.append(f)
        if len(self.e.gq) >= self.e.imm:
            self.e.flush()

    def treg(self, k):
        n = len(self.W)
        return [self.W[n - 1 - 3 * k - j] for j in range(3)]

    def cvts(self, y, nD):
        p = self.e.p
        assert 2 * nD + 3 * (8 - nD) <= len(self.W)
        d = [(4, lambda i=i: p.valu("v_cvt_pkrtz_f16_f32", self.W[2 * i + 1], y[2 * i], y[2 * i + 1])) for i in range(nD)]
        return d + [(4, lambda i=i: p.valu("v_cvt_pk_f16_f32", self.treg(i - nD)[0], y[2 * i], y[2 * i + 1])) for i in range(nD, 8)]

    def front(self, nD, grp=2, stat=False):
        p, e = self.e.p, self.e
        R = [self.treg(k) for k in range(8 - nD)]
        a = [(4, lambda P=P, T=T: p.valu("v_pk_fma_f16", T, P, P, self.sK)) for P, T, E in R]
        a += [(4, lambda P=P, T=T: p.valu("v_pk_mul_f16", T, P, T)) for P, T, E in R]
        d = []
        for i0 in range(0, nD, grp):
            g = [(self.W[2 * i], self.W[2 * i + 1]) for i in range(i0, min(nD, i0 + grp))]
            d += [(4, lambda b=b: p.valu("v_and_b32", b, self.sM, b)) for a_, b in g]
            for a_, b in g:
                d.append((4, lambda a_=a_, b=b: (p.valu("v_lshrrev_b16", a_, 2, b) if e.o.get('b16', 1) else p.valu("v_bfe_u32", a_, b, 2, 14))))
                d.append((0, lambda a_=a_: self.look("ds_read_u16_d16_hi" if stat and self.bf else "ds_read_u16_d16", a_)))
            for a_, b in g:
                d.append((4, lambda b=b: p.valu("v_lshrrev_b32", b, 18, b)))
                d.append((0, lambda b=b: self.look("ds_read_u16_d16_hi", b)))
        return a, d

    def mid(self, nD):
        p = self.e.p
        R = [self.treg(k) for k in range(8 - nD)]
        a = [(8, lambda T=T, E=E: p.valu("v_exp_f16", E, T)) for P, T, E in R]
        a += [(8, lambda T=T, E=E: p.hi16("v_exp_f16", E, T)) for P, T, E in R]
        a += [(4, lambda E=E: p.valu("v_pk_add_f16", E, E, "1.0", mods="op_sel_hi:[1,0]")) for P, T, E in R]
        a += [(8, lambda T=T, E=E: p.valu("v_rcp_f16", T, E)) for P, T, E in R]
        a += [(8, lambda T=T, E=E: p.hi16("v_rcp_f16", T, E)) for P, T, E in R]
        return a

    def back_pack(self, G, nD):
        p = self.e.p
        a = [(4, lambda k=k: p.valu("v_pk_mul_f16", G[nD + k], self.treg(k)[0], self.treg(k)[1])) for k in range(8 - nD)]
        d = [(4, lambda i=i: (self.need(self.W[2 * i], self.W[2 * i + 1]), p.valu("v_or_b32", G[i], self.W[2 * i], self.W[2 * i + 1]))) for i in range(nD)]
        return a, d

    def back_stat(self, sq, sq2, nD, first, mix=False):
        p = self.e.p
        R = [self.treg(k) for k in range(8 - nD)]
        a = [(4, lambda P=P, T=T: p.valu("v_pk_mul_f16", P, P, T)) for P, T, E in R]
        st = {'f': first}

        def acc(r, h, one=False):
            c = 0 if st['f'] else sq
            st['f'] = False
            if one:
                p.valu("v_fma_mix_f32", sq, r, "1.0", c, mods=f"op_sel:[{h},0,0] op_sel_hi:[1,0,0]")
            else:
                p.valu("v_fma_mix_f32", sq, r, r, c, mods=f"op_sel:[{h},{h},0] op_sel_hi:[1,1,0]")
        if mix == 2:
            def blk():
                p.raw("s_setprio 3")
                for P, T, E in R:
                    p.valu("v_dot2_f32_f16", sq, P, P, 0 if st['f'] else sq)
                    st['f'] = False
                p.raw(f"s_setprio {self.e.prio}")
            a.append((4 * len(R), blk))
        elif mix:
            a += [(4, lambda P=P, h=h: acc(P, h)) for P, T, E in R for h in range(2)]
        elif R:
            A = R[0][2]
            a += [(4, lambda k=k: p.valu("v_pk_fma_f16", A, R[k][0], R[k][0], A) if k else p.valu("v_pk_mul_f16", A, R[k][0], R[k][0])) for k in range(len(R))]
            a += [(4, lambda h=h: acc(A, h, True)) for h in range(2)]
        def accd(r):
            if st['f']:
                p.valu("v_mul_f32", sq, r, r)
            else:
                p.valu("v_fmac_f32", sq, r, r, rmw=True)
            st['f'] = False
        d = [(4, lambda i=i: (self.need(self.W[i]), accd(self.W[i]) if self.bf else acc(self.W[i], i % 2))) for i in range(2 * nD)]
        return a, d


def fix_flush(eng, fill, keep):
    return [(c, eng.flush if f == 'flush' else f) for c, f in fill if keep or f != 'flush']


def split_cost(stream, c):
    x = 0
    for k, (cc, *_) in enumerate(stream):
        if x >= c:
            return stream[:k], stream[k:]
        x += cc
    return stream, []


def regs(*vs):
    return [V(r) for v in vs for r in v.regs()]
```

```python
import math
import struct
import sys

from gelu import *

NAME = 'standalone__modern_conv_block_convnext_v2__vision_kernel'


def f2u(x):
    return struct.unpack('<I', struct.pack('<f', x))[0]


C2 = -2 * math.sqrt(2 / math.pi) * math.log2(math.e)
C1 = C2 * 0.044715
KH = 0x44EA
GK = 4.9140625
GA = C2 / GK
GC = C1 / GA ** 3

H0, H1 = 0x1F00, 0x3F00
BT0, BT1 = H0, H1
CNT = H1 + 128
E_ROW, E_FREE, E_W1, E_W1B, E_ROWA = 12, 16, 20, 24, 28
W1F = 16384
W2R = 90112
RP = 6656
DIAG = W2R + 10 * RP
TABO = 7168
LDS_BYTES = 163840
WS_TOT = 96 * 256 * 16
WS_STAMP = 1 << 20
WS_LN = 4 << 20
WS_BYTES = 80 << 20
OOB_V = 0x80000000
OOB_S = 0x40000000
X_BYTES = 512 * 512 * 96 * 2
ROWB = 512 * 192
REP = 8

sX, sOUT, sW1, sW2, sDW, sGA, sBE, sWS, sDBG = [S(4 + 4 * i, 4) for i in range(9)]
sWAVE, sX0, sY0, sT0, sT1, sT2, sT3 = [S(40 + i) for i in range(7)]
sK, sM = S(48), S(49)
sYB, sXM, sROWT = S(66), S(67), S(47)
sW1L, sW1G = S(77), S(3)
sRED = S(3)
sTILE = [S(68 + i) for i in range(4)]
sPRIV = S(72)
sSTAMP = S(73)
sEX = S(74, 2)
sEV = sEX
sCNT = S(76)
sROLE = S(77)
sRET = S(78, 2)
sLNB, sW2B = S(80), S(82)
sLD = S(80, 16)
sTM = S(96, 2)
sRT = S(98, 2)


def ints(s):
    return [int(x) for x in str(s).split(',') if x not in ('', 'n')]


def flts(s):
    return [float(x) for x in str(s).split(',') if x not in ('', 'n')]


class Gen(Engine):
    def __init__(self, opt):
        super().__init__(opt)
        self.nstamp = 0
        self.ss = []
        self.mk = []
        self.nrow = self.nready = 0

    def stamp(self, tb):
        if not self.o.get('stamps'):
            self.nmk = getattr(self, 'nmk', 0) + 1
            if True:
                self.mark()
            return
        p = self.p
        t = V(tb, 4)
        p.raw(f"s_memtime {sTM}")
        p.raw(f"s_memrealtime {sRT}")
        p.raw("s_waitcnt lgkmcnt(0)")
        p.lgkm_done = p.lgkm_seq
        for i in range(4):
            p.valu("v_mov_b32", t.sub(i), S(sTM.b + i))
        p.raw("s_mov_b64 exec, 1")
        p.buf_store("buffer_store_dwordx4", t, self.vA[0], sWS, sSTAMP, 16 * self.nstamp)
        p.raw("s_mov_b64 exec, -1")
        p.nop(2)
        self.nstamp += 1

    def mark(self):
        if not self.o.get('dbg'):
            return
        p = self.p
        r = S((84, 86, 88, 90, 92, 94, 50, 52, 54, 56, 58, 60, 62, 64)[len(self.mk)], 2)
        self.mk.append(r)
        p.raw(f"s_memrealtime {r}")
        p.raw("s_waitcnt lgkmcnt(0)")
        p.lgkm_done = p.lgkm_seq

    def mark_flush(self):
        if not self.o.get('dbg'):
            return
        p = self.p
        p.raw("s_waitcnt vmcnt(0)")
        self.mark()
        p.salu("s_and_b32", sT0, S(2), 0x78)
        p.salu("s_and_b32", sT1, sWAVE, 3)
        p.salu("s_or_b32", sT0, sT0, sT1)
        p.salu("s_cmp_lg_u32", sT0, 0)
        p.raw("s_cbranch_scc1 Lend")
        p.raw("s_mov_b64 exec, 1")
        p.salu("s_not_b32", sT0, S(100))
        p.valu("v_mov_b32", V(96), sT0)
        p.raw(f"buffer_atomic_umax v96, {self.vA[0]}, {sDBG}, 0 offen offset:4")
        for k, r in enumerate(self.mk):
            p.valu("v_mov_b32", V(97 + k), r.sub(0))
            p.raw(f"buffer_atomic_umax v{97 + k}, {self.vA[0]}, {sDBG}, 0 offen offset:{8 + 4 * k}")

    def pad(self, where):
        t = self.o.get('x_' + where)
        if not t:
            return
        p = self.p
        p.raw("s_waitcnt vmcnt(0) lgkmcnt(0)")
        p.lines.append(f"Lpad{where}:")
        p.raw("s_sleep 2")
        p.raw("s_memrealtime s[98:99]")
        p.raw("s_waitcnt lgkmcnt(0)")
        p.salu("s_sub_u32", S(98), S(98), S(100))
        p.salu("s_cmp_lt_u32", S(98), t)
        p.raw(f"s_cbranch_scc1 Lpad{where}")
        p.lgkm_done, p.vm_done = p.lgkm_seq, p.vm_seq

    def sstamp(self, where='p2'):
        if not self.o.get('stamps') or self.o.get('fine', 'p2') != where:
            if where == 'p2':
                self.mark()
            return
        p = self.p
        k = len(self.ss)
        self.ss.append(S((50, 52, 54, 56, 58, 60, 84, 86, 88, 90, 92, 94)[k], 2))
        p.raw(f"s_memtime {self.ss[-1]}")
        p.raw("s_waitcnt lgkmcnt(0)")
        p.lgkm_done = p.lgkm_seq

    def sstamp_flush(self, tb):
        p = self.p
        t = V(tb, 4)
        if self.o.get('stamps'):
            for i in range(4):
                p.valu("v_mov_b32", t.sub(i), S(62 + i))
            p.raw("s_mov_b64 exec, 1")
            p.buf_store("buffer_store_dwordx4", t, self.vA[0], sWS, sSTAMP, 0)
            p.raw("s_mov_b64 exec, -1")
            p.nop(2)
            p.raw("s_getreg_b32 s100, hwreg(HW_REG_XCC_ID)")
            p.raw("s_getreg_b32 s101, hwreg(HW_REG_HW_ID)")
            self.ss.append(S(100, 2))
        for r in self.ss:
            p.valu("v_mov_b32", t.sub(0), r.sub(0))
            p.valu("v_mov_b32", t.sub(1), r.sub(1))
            p.valu("v_mov_b32", t.sub(2), sRT.sub(0))
            p.valu("v_mov_b32", t.sub(3), sRT.sub(1))
            p.raw("s_mov_b64 exec, 1")
            p.buf_store("buffer_store_dwordx4", t, self.vA[0], sWS, sSTAMP, 16 * self.nstamp)
            p.raw("s_mov_b64 exec, -1")
            p.nop(2)
            self.nstamp += 1

    def frag(self, byte, ring=None):
        return rd128(self.vA[byte >> 16], byte & 0xFFFF, ring)

    def srd(self, d, ptr, nbytes):
        p = self.p
        p.salu("s_mov_b32", d.sub(0), ptr.sub(0))
        p.salu("s_and_b32", d.sub(1), ptr.sub(1), 0xFFFF)
        p.salu("s_mov_b32", d.sub(2), nbytes)
        p.salu("s_mov_b32", d.sub(3), 0x20000)

    def row_off(self, dst, base, delta):
        p = self.p
        p.salu("s_add_i32", sT0, base, delta)
        p.salu("s_mul_i32", sT1, sT0, ROWB)
        p.salu("s_cmp_lt_u32", sT0, 512)
        p.salu("s_cselect_b32", dst, sT1, OOB_S)

    def lane_sum64(self, v, t):
        p = self.p
        for r in (8, 4, 2, 1):
            p.valu("v_add_f32_dpp", v, v, v, mods=f"row_ror:{r} row_mask:0xf bank_mask:0xf")
        p.valu("v_mov_b32", t, v)
        p.swap16(v, t)
        p.valu("v_add_f32", v, v, t)
        p.valu("v_mov_b32", t, v)
        p.swap32(v, t)
        p.valu("v_add_f32", v, v, t)

    def cond(self, cmp, a, b, label, body, skip_on=1):
        p = self.p
        p.salu(cmp, a, b)
        p.raw(f"s_cbranch_scc{skip_on} {label}")
        p.cond_begin()
        body()
        tok = p.cond_end()
        p.lines.append(f"{label}:")
        return tok

    def spin_guard(self, exit_label):
        p = self.p
        p.salu("s_cmp_eq_u32", sCNT, 0)
        p.salu("s_cbranch_scc1", exit_label)
        p.salu("s_sub_u32", sCNT, sCNT, 1)

    def lds_spin(self, a, t, off, target, tag):
        p = self.p
        p.valu("v_mov_b32", a, CNT)
        p._mem_issue([a.b], [t.b])
        p.lines.append(f"L{tag}w:")
        p.raw(f"ds_read_b32 {t}, {a} offset:{off}")
        p.raw("s_waitcnt lgkmcnt(0)")
        p.lgkm_done = p.lgkm_seq
        p.raw(f"v_readfirstlane_b32 {sT0}, {t}")
        self.spin_guard(f"L{tag}x")
        p.raw(f"s_cmp_lt_u32 {sT0}, {target}")
        p.raw(f"s_cbranch_scc0 L{tag}x")
        p.raw("s_sleep 2")
        p.raw(f"s_branch L{tag}w")
        p.lines.append(f"L{tag}x:")

    def signal(self, off):
        p = self.p
        p.raw("s_mov_b64 exec, 1")
        p.raw(f"ds_add_u32 {self.vCN}, {self.vONE} offset:{off}")
        p.raw("s_mov_b64 exec, -1")
        p.lgkm_seq += 1

    def ev_read(self, off):
        assert getattr(self, 'ev_open', None) is None
        self.ev_open = off
        self.p.ds_read("ds_read_b32", self.vEV, self.vCN, off)

    def ev_wait(self, off, target):
        p = self.p
        assert self.ev_open == off
        self.ev_open = None
        self.nev = getattr(self, 'nev', 0) + 1
        tag = f"Lev{self.nev}"
        p.valu("v_readfirstlane_b32", sT0, self.vEV)

        def slow():
            p.lines.append(f"{tag}w:")
            p.raw("s_sleep 1")
            p.raw(f"ds_read_b32 {self.vEV}, {self.vCN} offset:{off}")
            p.raw("s_waitcnt lgkmcnt(0)")
            p.raw(f"v_readfirstlane_b32 {sT0}, {self.vEV}")
            self.spin_guard(tag)
            p.raw(f"s_cmp_lt_u32 {sT0}, {target}")
            p.raw(f"s_cbranch_scc1 {tag}w")
        self.cond("s_cmp_ge_u32", sT0, target, tag, slow)

    def alloc(self):
        o = self.o
        self.S3 = [V(8 * i, 8) for i in range(12)]
        self.CA = V(0, 48)
        self.LN = [V(48, 24), V(72, 24), V(96, 24), V(168, 24)]
        self.Y = V(120, 16)
        self.W = regs(V(136, 20))
        self.SQ = [V(156 + i) for i in range(12)]
        self.ls = [V(168, 2), V(170, 2), V(172, 2)]
        self.rb = [V(192 + 4 * i, 4) for i in range(o.get('nrb', 6))]
        self.D0 = V(192, 16)
        self.A0 = [V(48 + 4 * i, 4) for i in range(18)]
        self.idf = [V(240, 4), V(244, 4)]
        self.ring2 = [V(224 + 4 * i, 4) for i in range(4)]
        self.ring1 = self.ring2 + [V(216, 4), V(220, 4)]
        self.vX, self.vL = V(240), V(241)
        self.vB = [V(242), V(243), V(244)]
        self.vC = [V(245), V(246)]
        self.tq = [V(247), V(252), V(253), V(254), V(255)]
        self.vCN, self.vONE, self.vEV = V(253), V(254), V(247)
        self.vA = [V(248), V(249), V(250)]
        self.vLane = V(251)
        self.vG, self.vR, self.vBias = V(252), V(253), V(254)
        self.g7 = 1 if o.get('g7', 0 if o.get('hs') else 2) else 0
        self.kl = o.get('kl', 0 if o.get('hs') else 2)
        keep, dst = [V(208, 8), V(216, 8)], [V(168 + 8 * k, 8) for k in range(5)] + [V(240, 8)] * self.g7 + [V(232, 8)]
        if o.get('g7', 0 if o.get('hs') else 2) == 2:
            keep.insert(0, self.S3[11])
            self.S3[11] = dst.pop(0)
        self.KL, keep = keep[:self.kl], keep[self.kl:]
        self.nk = len(keep)
        self.JG = list(range(12 - self.nk - len(dst), 12 - self.nk))
        self.J2 = self.JG + list(range(12 - self.nk, 12))
        self.S2 = dict(zip(self.J2, dst + keep))
        self.vTAB = V(255)
        self.ge = Gelu(self, self.W, sK, sM, 0)
        self.po = ints(o.get('po', '0,2,4,1,3,5'))
        self.vO = V(255)
        self.fsh = 18 if o.get('smap', 0) else 21

    def rows_dma(self, rows):
        p = self.p
        for r in rows:
            p.salu("s_add_u32", "m0", sXM, ((r + 1) % 10) * RP)
            if r > 0:
                p.salu("s_add_u32", sT2, sYB, r * ROWB)
            p.dma(self.vX, sX, sT3 if r < 0 else (sT2 if r else sYB), flags='nt' if r < self.o.get('ntrows', 9) else '')

    def row_dma_fast(self, r):
        p = self.p
        p.salu("s_add_u32", "m0", sXM, ((r + 1) % 10) * RP)
        p.salu("s_add_u32", sYB, sYB, ROWB)
        self.nrow += 1
        self.x_tok = p.dma(self.vX, sX, sYB, flags='nt' if r < self.o.get('ntrows', 9) else '')

    def gelu_table(self, tid):
        p = self.p
        y = [V(0 + i) for i in range(8)]
        t = [V(8 + i) for i in range(8)]
        r = [V(16 + i) for i in range(8)]
        a, b = V(24), V(25)
        pn, pp = V(28, 4), V(32, 4)
        p.valu("v_lshlrev_b32", a, 6, tid)
        p.salu("s_mov_b32", sT0, f2u(GC))
        p.valu("v_mov_b32", b, f2u(GK))
        for i in range(8):
            p.valu("v_add_u32", y[i], 0x8004 + 8 * i, a)
        for i in range(8):
            p.valu("v_cvt_f32_f16", y[i], y[i])
        for i in range(8):
            p.valu("v_mul_f32", t[i], y[i], y[i])
        for i in range(8):
            p.valu("v_fma_f32", t[i], t[i], sT0, b)
        for i in range(8):
            p.valu("v_mul_f32", t[i], y[i], t[i])
        for i in range(8):
            p.valu("v_exp_f32", t[i], t[i])
        for i in range(8):
            p.valu("v_add_f32", r[i], "1.0", t[i])
        for i in range(8):
            p.valu("v_rcp_f32", r[i], r[i])
        for i in range(8):
            p.valu("v_mul_f32", y[i], y[i], r[i])
        for i in range(8):
            p.valu("v_mul_f32", t[i], t[i], y[i])
        for i in range(4):
            p.valu("v_cvt_pk_f16_f32", pn.sub(i), y[2 * i], y[2 * i + 1])
            p.valu("v_cvt_pk_f16_f32", pp.sub(i), f"-{t[2 * i]}", f"-{t[2 * i + 1]}")
        tb = self.o.get('tbits', 0)
        for r_ in (regs(pn, pp) if tb else []):
            p.valu("v_add_u32", r_, (1 << (tb - 1)) * 0x10001, r_)
            p.valu("v_and_b32", r_, (0xFFFF & ~((1 << tb) - 1)) * 0x10001, r_)
        p.valu("v_lshlrev_b32", a, 4, tid)
        p.valu("v_mov_b32", b, LDS_BYTES)
        p.salu("s_movk_i32", sT0, 496)
        p.valu("v_cmp_gt_u32", "vcc", sT0, tid)
        p.valu("v_cndmask_b32", a, b, a, "vcc")
        p.ds_write("ds_write_b128", a, pp)
        p.ds_write("ds_write_b128", a, pn, 8192)

    def prologue(self):
        p, o = self.p, self.o
        p.salu("s_cmp_ge_u32", S(2), 256)
        p.raw("s_cbranch_scc1 Lend")
        p.raw(f"s_load_dwordx16 {sLD}, s[0:1], 0")
        p.raw(f"s_load_dwordx2 {sTM}, s[0:1], 64")
        if o.get('dbg') or any(k.startswith('x_pad') for k in o):
            p.raw("s_memrealtime s[100:101]")
        if o.get('stamps'):
            p.raw("s_memtime s[62:63]")
            p.raw("s_memrealtime s[64:65]")
        lane = self.vLane
        tid = V(199)
        t = [V(120 + i) for i in range(40)]
        if o.get('pf0', 1):
            p.raw(f"s_getpc_b64 {sEX}")
            p.lines.append("Lpc0:")
            p.raw(f"s_sub_u32 {sEX.sub(0)}, {sEX.sub(0)}, Lpc0-Lmain")
            p.raw(f"s_subb_u32 {sEX.sub(1)}, {sEX.sub(1)}, 0")
            p.valu("v_lshlrev_b32", t[39], 7, V(0))
            p.salu("s_movk_i32", sT0, o.get('pf0n', 64))
            p.valu("v_cmp_gt_u32", "vcc", sT0, V(0))
            p.raw(f"s_and_saveexec_b64 {sRET}, vcc")
            p.raw("s_cbranch_execz Lpf0x")
            p.raw(f"global_load_dword {self.tq[4]}, {t[39]}, {sEX}")
            p.lines.append("Lpf0x:")
            p.raw(f"s_mov_b64 exec, {sRET}")
        p.valu("v_mov_b32", tid, V(0))
        p.valu("v_and_b32", lane, 63, V(0))
        p.valu("v_lshrrev_b32", t[0], 6, V(0))
        p.valu("v_readfirstlane_b32", sWAVE, t[0])
        mw = o.get('mw', 4)
        p.salu("s_and_b32", sT0, S(2), 7)
        p.salu("s_lshr_b32", sT1, S(2), 3)
        p.salu("s_and_b32", sX0, sT0, (16 >> mw) - 1)
        p.salu("s_lshl_b32", sX0, sX0, mw)
        p.salu("s_and_b32", sT2, sT1, (1 << mw) - 1)
        p.salu("s_add_u32", sX0, sX0, sT2)
        p.salu("s_lshr_b32", sY0, sT0, 4 - mw)
        p.salu("s_lshl_b32", sY0, sY0, 5 - mw)
        p.salu("s_lshr_b32", sT2, sT1, mw)
        p.salu("s_add_u32", sY0, sY0, sT2)
        p.salu("s_lshl_b32", sX0, sX0, 5)
        p.salu("s_lshl_b32", sY0, sY0, 5)
        p.salu("s_lshl_b32", sXM, sWAVE, 6)
        p.salu("s_cmp_eq_u32", sWAVE, 6)
        p.salu("s_cselect_b32", sXM, 352, sXM)
        p.valu("v_add_u32", t[5], sXM, lane)
        p.valu("v_mul_u32_u24", t[1], 5462, t[5])
        p.valu("v_lshrrev_b32", t[1], 16, t[1])
        p.valu("v_mul_u32_u24", t[2], 12, t[1])
        p.valu("v_sub_u32", t[2], t[5], t[2])
        p.valu("v_bfe_u32", t[3], t[1], 2, 2)
        p.valu("v_xor_b32", t[2], t[2], t[3])
        p.valu("v_add_u32", t[3], sX0, t[1])
        p.valu("v_subrev_u32", t[3], 1, t[3])
        p.valu("v_mul_u32_u24", t[4], 192, t[3])
        p.valu("v_lshl_add_u32", t[4], t[2], 4, t[4])
        p.valu("v_mov_b32", self.vX, OOB_V)
        p.salu("s_movk_i32", sT0, 512)
        p.valu("v_cmp_gt_u32", "vcc", sT0, t[3])
        p.valu("v_cndmask_b32", t[4], self.vX, t[4], "vcc")
        p.valu("v_cmp_gt_u32", "vcc", 34, t[1])
        p.valu("v_cndmask_b32", self.vX, self.vX, t[4], "vcc")
        self.row_off(sT3, sY0, -1)
        p.salu("s_mul_i32", sYB, sY0, ROWB)
        p.salu("s_mov_b32", sX.sub(2), X_BYTES)
        p.salu("s_mov_b32", sX.sub(3), 0x20000)
        p.salu("s_lshl_b32", sXM, sXM, 4)
        p.salu("s_add_u32", sXM, sXM, W2R)
        p.salu("s_cmp_eq_u32", sWAVE, 7)
        p.salu("s_cselect_b32", sXM, LDS_BYTES, sXM)
        dv, di, ad = t[6:10], t[32:36], t[36:40]
        p.valu("v_lshlrev_b32", t[10], 1, tid)
        p.valu("v_add_u32", di[3], 768, tid)
        p.valu("v_min_u32", di[3], 863, di[3])
        p.valu("v_lshlrev_b32", t[11], 1, di[3])
        p.raw("s_waitcnt lgkmcnt(0)")
        self.sstamp('s0')
        p.salu("s_mov_b32", sX.sub(0), sLD.sub(0))
        p.salu("s_and_b32", sX.sub(1), sLD.sub(1), 0xFFFF)

        def dw_loads():
            self.srd(sDW, sLD.sub(2, 2), 1728)
            for r in range(4):
                p.raw(f"buffer_load_ushort {dv[r]}, {t[10 + r // 3]}, {sDW}, 0 offen offset:{512 * (r % 3)}")
        self.cond("s_cmp_ge_u32", sWAVE, 4, "Lnodw", dw_loads)
        self.cond("s_cmp_eq_u32", sWAVE, 7, "Lskipx0", lambda: self.rows_dma(range(-1, 5)))
        self.sstamp('s0')
        self.srd(sW1, sLD.sub(4, 2), 73728)
        if o.get('pw1', 0):
            def pw1():
                p.salu("s_lshr_b32", sT0, S(2), 3)
                p.salu("s_mul_i32", sT0, sT0, 18 * 128)
                p.valu("v_min_u32", t[5], 17, lane)
                p.valu("v_lshlrev_b32", t[5], 7, t[5])
                p.raw(f"buffer_load_dword {self.tq[4]}, {t[5]}, {sW1}, {sT0} offen")
            self.cond("s_cmp_lg_u32", sWAVE, 7, "Lnopw1", pw1)
        if o.get('pf', 1) == 2:
            self.code_prefetch()
        p.valu("v_lshrrev_b32", self.vW1g, 2, lane)
        p.valu("v_mul_u32_u24", self.vW1g, 768, self.vW1g)
        p.valu("v_and_b32", t[5], 3, lane)
        p.valu("v_lshl_add_u32", self.vW1g, t[5], 4, self.vW1g)
        p.salu("s_and_b32", sT0, sWAVE, 3)
        p.salu("s_lshl_b32", sW1G, sT0, 6)
        p.salu("s_mul_i32", sW1L, sT0, 6144)
        p.salu("s_add_u32", sW1L, sW1L, W1F)
        p.valu("v_mov_b32", self.vCN, CNT)
        p.valu("v_mov_b32", self.vONE, 1)

        tok_a = p.vm_seq
        p.salu("s_add_u32", sT0, sY0, sWAVE)
        p.salu("s_add_u32", sT0, sT0, 1)
        p.salu("s_lshl_b32", sT0, sT0, 9)
        p.salu("s_add_u32", sT0, sT0, sX0)
        p.salu("s_mul_i32", sROWT, sT0, 192)
        p.salu("s_sub_u32", sROWT, sROWT, 256)
        p.salu("s_and_b32", sT0, sWAVE, 1)
        p.salu("s_lshl_b32", sT3, sT0, 4)
        p.salu("s_add_u32", sX0, sX0, sT3)
        p.salu("s_and_b32", sT0, sWAVE, 6)
        p.salu("s_add_u32", sY0, sY0, sT0)
        p.salu("s_mul_i32", sT2, sT0, RP)
        p.salu("s_add_u32", sT2, sT2, W2R)
        m, g = t[11], t[12]
        p.valu("v_and_b32", m, 15, lane)
        p.valu("v_lshrrev_b32", g, 4, lane)
        p.valu("v_mul_u32_u24", t[2], RP, g)
        p.valu("v_add_u32", t[2], sT2, t[2])
        p.valu("v_add_u32", t[1], sT3, m)
        for dx in range(3):
            if dx:
                p.valu("v_add_u32", t[1], 1, t[1])
            p.valu("v_mul_u32_u24", t[3], 192, t[1])
            p.valu("v_bfe_u32", t[4], t[1], 2, 2)
            p.valu("v_lshl_add_u32", t[3], t[4], 4, t[3])
            p.valu("v_add_u32", self.vB[dx], t[2], t[3])
        p.salu("s_mul_i32", sPRIV, sWAVE, 9216)
        p.salu("s_add_u32", sPRIV, sPRIV, W2R)
        p.valu("v_bfe_u32", t[13], m, 2, 1)
        p.valu("v_sub_u32", t[13], g, t[13])
        p.valu("v_lshrrev_b32", t[14], 3, m)
        p.valu("v_and_b32", t[15], 3, m)
        p.valu("v_lshl_add_u32", t[15], t[14], 2, t[15])
        p.valu("v_lshlrev_b32", t[16], 7, t[13])
        p.valu("v_lshl_add_u32", t[16], t[15], 4, t[16])
        p.valu("v_add_u32", t[16], DIAG, t[16])
        p.valu("v_mov_b32", t[15], LDS_BYTES)
        p.valu("v_cmp_gt_u32", "vcc", 3, t[13])
        p.valu("v_cndmask_b32", self.vC[0], t[15], t[16], "vcc")
        p.valu("v_and_b32", t[15], 3, m)
        p.valu("v_mul_u32_u24", self.vC[1], 0x55, t[15])
        self.srd(sW2, sLD.sub(6, 2), 73728)
        self.srd(sGA, sLD.sub(8, 2), 768)
        self.srd(sBE, sLD.sub(10, 2), 768)
        self.srd(sOUT, sLD.sub(12, 2), X_BYTES)
        self.srd(sDBG, sLD.sub(14, 2), 256)
        self.srd(sWS, sTM, WS_BYTES)
        p.valu("v_lshlrev_b32", self.vL, 4, lane)
        p.valu("v_and_b32", t[13], 0x23, lane)
        p.valu("v_bfe_u32", t[14], lane, 2, 2)
        p.valu("v_lshl_add_u32", t[13], t[14], 3, t[13])
        p.valu("v_bfe_u32", t[14], lane, 4, 1)
        p.valu("v_lshl_add_u32", t[13], t[14], 2, t[13])
        p.valu("v_lshlrev_b32", self.vA[0], 4, t[13])
        p.valu("v_add_u32", self.vA[1], 0x10000, self.vA[0])
        p.valu("v_add_u32", self.vA[2], 0x20000, self.vA[0])
        p.salu("s_lshl_b32", sSTAMP, S(2), 3)
        p.salu("s_add_u32", sSTAMP, sSTAMP, sWAVE)
        if o.get('smap', 0):
            p.salu("s_and_b32", sT0, S(2), 7)
            p.salu("s_mul_i32", sT0, sT0, 3 << 10)
            p.salu("s_and_b32", sT1, S(2), 0xF8)
            p.salu("s_add_u32", sT0, sT0, sT1)
            p.salu("s_add_u32", sLNB, sT0, sWAVE)
            p.salu("s_lshl_b32", sLNB, sLNB, 10)
        elif o.get('rot', 0):
            p.salu("s_lshr_b32", sT0, S(2), 5)
            p.salu("s_add_u32", sT0, sT0, S(2))
            p.salu("s_and_b32", sT0, sT0, 7)
            p.salu("s_and_b32", sT1, S(2), 0xF8)
            p.salu("s_or_b32", sT0, sT0, sT1)
            p.salu("s_lshl_b32", sT0, sT0, 3)
            p.salu("s_add_u32", sLNB, sT0, sWAVE)
            p.salu("s_lshl_b32", sLNB, sLNB, 10)
        else:
            p.salu("s_lshl_b32", sLNB, sSTAMP, 10)
        p.salu("s_add_u32", sLNB, sLNB, WS_LN)
        p.salu("s_mul_i32", sSTAMP, sSTAMP, 16 * o.get('stamps', 1))
        p.salu("s_add_u32", sSTAMP, sSTAMP, WS_STAMP)
        p.salu("s_mul_i32", sT3, sX0, 192)
        for ti in range(4):
            p.salu("s_add_u32", sT0, sY0, 8 * ti)
            p.salu("s_mul_i32", sT0, sT0, ROWB)
            p.salu("s_add_u32", sTILE[ti], sT0, sT3)
        p.salu("s_mul_i32", sW2B, sWAVE, 9216)
        p.salu("s_mov_b32", sK, KH * 0x10001)
        p.salu("s_mov_b32", sM, 0xFFF8FFF8)
        p.salu("s_mov_b32", sCNT, 400000)
        p.valu("v_lshrrev_b32", t[28], 5, lane)
        p.valu("v_lshlrev_b32", self.vW1r, 8, t[28])
        for sh, w, up in ((2, 2, 6), (4, 1, 5), (0, 1, 4), (1, 1, 3)):
            p.valu("v_bfe_u32", t[28], lane, sh, w)
            p.valu("v_lshl_add_u32", self.vW1r, t[28], up, self.vW1r)
        p.valu("v_add_u32", self.vW1r, sW1L, self.vW1r)
        p.valu("v_add_u32", self.vW1w, sW1L, self.vA[0])
        later = p.vm_seq - tok_a
        self.sstamp('s0')

        def young():
            self.gelu_table(tid)

        def old():
            for r in range(4):
                if r < 3:
                    p.valu("v_add_u32", di[r], 256 * r, tid)
                p.valu("v_mul_u32_u24", t[20], 683, di[r])
                p.valu("v_lshrrev_b32", t[20], 16, t[20])
                p.valu("v_mul_u32_u24", t[22], 11, t[20])
                p.valu("v_lshrrev_b32", t[22], 5, t[22])
                p.valu("v_lshrrev_b32", t[23], 5, di[r])
                p.valu("v_bfe_u32", t[21], di[r], 3, 2)
                p.valu("v_bfe_u32", t[24], di[r], 4, 1)
                p.valu("v_xor_b32", t[21], t[21], t[24])
                p.valu("v_sub_u32", t[21], t[21], t[22])
                p.valu("v_mul_i32_i24", t[21], 9, t[21])
                p.valu("v_add_u32", t[23], t[23], t[21])
                p.valu("v_lshrrev_b32", t[21], 1, t[23])
                p.valu("v_mul_u32_u24", t[21], 384 - 16, t[21])
                p.valu("v_lshl_add_u32", t[23], t[23], 3, t[21])
                p.valu("v_lshl_add_u32", t[23], t[22], 7, t[23])
                p.valu("v_and_b32", t[24], 7, di[r])
                p.valu("v_lshl_add_u32", t[23], t[24], 4, t[23])
                p.valu("v_add_u32", ad[r], DIAG, t[23])
            z = V(160, 4)
            for i in range(4):
                p.valu("v_mov_b32", z.sub(i), 0)
            p.raw("s_mov_b64 exec, 1")
            p.ds_write("ds_write_b128", self.vCN, z)
            p.ds_write("ds_write_b128", self.vCN, z, 16)
            p.raw("s_mov_b64 exec, -1")
            p.raw(f"s_waitcnt vmcnt({6 + later})")
            for r in range(4):
                ch = V(164 + 2 * r, 2)
                p.valu("v_and_b32", t[10], 4, di[r])
                p.valu("v_cmp_eq_u32", "vcc", 0, t[10])
                p.valu("v_cndmask_b32", ch.sub(0), 0, dv[r], "vcc")
                p.valu("v_sub_u32", ch.sub(1), dv[r], ch.sub(0))
                p.ds_write("ds_write_b64", ad[r], ch)
            p.raw("s_waitcnt lgkmcnt(0)")
        self.cond("s_cmp_lt_u32", sWAVE, 4, "Lnoy", young)
        self.cond("s_cmp_ge_u32", sWAVE, 4, "Lnoo", old)
        self.sstamp('s0')
        p.barrier()
        self.sstamp('s0')

        def young2():
            p.valu("v_subrev_u32", tid, 256, tid)
            self.gelu_table(tid)
        self.cond("s_cmp_lt_u32", sWAVE, 4, "Lnoy2", young2)
        self.sstamp('s0')
        p.vm_done = p.vm_seq
        self.nstamp += 4

    def w1_dma(self, u):
        p = self.p
        g, x = divmod(u, 6)
        p.salu("s_add_u32", "m0", sW1L, g * 24576 + x * 1024)
        p.salu("s_add_u32", sT0, sW1G, (2 * (x % 3) + x // 3) * 12288 + g * 256)
        return p.dma(self.vW1g, sW1, sT0)

    def sentinels(self):
        p, lane = self.p, self.vLane
        t = [V(100 + i) for i in range(16)]
        sv = V(104, 4)

        def bias():
            p.salu("s_lshl_b32", sT1, sT0, 1)
            p.valu("v_mul_u32_u24", t[0], 192, lane)
            p.valu("v_lshlrev_b32", t[1], 1, lane)
            for i in range(6):
                p.salu("s_add_u32", sT2, sT1, 64 * 192 * i)
                p.raw(f"buffer_load_ushort {t[2 + i]}, {t[0]}, {sW2}, {sT2} offen")
                p.raw(f"buffer_load_ushort {t[8 + i]}, {t[1]}, {sBE}, 0 offen offset:{128 * i}")

        def body():
            for i in range(4):
                p.valu("v_mov_b32", sv.sub(i), -1)
            p.valu("v_lshlrev_b32", t[0], 12, lane)
            p.valu("v_add_u32", t[1], 64 * 4096, t[0])
            p.valu("v_cmp_gt_u32", "vcc", 32, lane)
            p.valu("v_mov_b32", t[2], OOB_V)
            p.valu("v_cndmask_b32", t[1], t[2], t[1], "vcc")
            p.salu("s_lshl_b32", sT0, S(2), 4)
            p.raw(f"buffer_store_dwordx4 {sv}, {t[0]}, {sWS}, {sT0} offen sc1")
            p.raw(f"buffer_store_dwordx4 {sv}, {t[1]}, {sWS}, {sT0} offen sc1")
            p.salu("s_add_u32", sT0, sT0, WS_TOT)
            p.salu("s_cmp_lt_u32", S(2), 96)
            p.salu("s_cselect_b32", sT0, sT0, OOB_S)
            p.valu("v_lshlrev_b32", t[2], 11, lane)
            p.raw(f"s_mov_b64 exec, {hex((1 << REP) - 1)}")
            p.raw(f"buffer_store_dwordx4 {sv}, {t[2]}, {sWS}, {sT0} offen sc1")
            p.raw("s_mov_b64 exec, -1")
            p.salu("s_sub_u32", sT0, S(2), 96)
            p.salu("s_cmp_lt_u32", sT0, 96)
            p.raw("s_cbranch_scc0 Lnobias")
            bias()
            p.lines.append("Lnobias:")
            p.nop(2)
        self.cond("s_cmp_lg_u32", sWAVE, 7, "Lnosent", body)
        self.sent_tok = p.vm_seq

    def code_prefetch(self):
        p, lane = self.p, self.vLane
        t = [V(100 + i) for i in range(16)]

        def body():
            p.raw(f"s_getpc_b64 {sEX}")
            p.lines.append("Lpc:")
            p.salu("s_lshr_b32", sT0, S(2), 3)
            p.salu("s_and_b32", sT0, sT0, 15)
            p.salu("s_lshl_b32", sT0, sT0, 13)
            p.valu("v_lshlrev_b32", t[2], 7, lane)
            p.valu("v_add_u32", t[2], sT0, t[2])
            p.valu("v_min_u32", t[2], "Lend-Lpc", t[2])
            if self.o.get('pf', 1):
                p.raw(f"global_load_dword {self.tq[4]}, {t[2]}, {sEX}")
        self.cond("s_cmp_lg_u32", sWAVE, 7, "Lnopf", body)

    def code_again(self, a, tag):
        p = self.p

        def body():
            p.raw(f"s_getpc_b64 {sTM}")
            p.lines.append(f"Lcq{tag}:")
            p.salu("s_lshr_b32", sT0, S(2), 3)
            p.salu("s_and_b32", sT0, sT0, self.o.get('cam', 15))
            p.salu("s_mul_i32", sT0, sT0, 3072)
            p.valu("v_lshl_add_u32", a, self.vLane, 7, sT0)
            p.valu("v_min_u32", a, f"Lend-Lcq{tag}", a)
            p.salu("s_mov_b32", "m0", CNT + 32)
            p.raw("s_mov_b64 exec, 0xffffff")
            p.raw(f"global_load_lds_dword {a}, {sTM}")
            p.raw("s_mov_b64 exec, -1")
            p.vm_seq += 1
        self.cond("s_cmp_lg_u32", sWAVE, self.o.get('caw', 7), f"Lcp{tag}", body)

    def bias_finish(self):
        p = self.p
        t = [V(100 + i) for i in range(16)]

        def body():
            p.salu("s_sub_u32", sT0, S(2), 96)
            p.salu("s_cmp_lt_u32", sT0, 96)
            p.raw("s_cbranch_scc0 Lnobias2")
            p.raw(f"s_waitcnt vmcnt({p.vm_seq - self.sent_tok})")
            for i in range(12):
                p.valu("v_lshlrev_b32", t[2 + i], 16, t[2 + i])
            p.valu("v_mul_f32", t[0], t[2], t[8])
            for i in range(1, 6):
                p.valu("v_fmac_f32", t[0], t[2 + i], t[8 + i], rmw=True)
            self.lane_sum64(t[0], t[1])
            p.salu("s_lshl_b32", sT1, sT0, 2)
            p.salu("s_add_u32", sT1, sT1, WS_TOT + 1536)
            p.valu("v_lshlrev_b32", t[15], 11, self.vLane)
            p.raw(f"s_mov_b64 exec, {hex((1 << REP) - 1)}")
            p.raw(f"buffer_store_dword {t[0]}, {t[15]}, {sWS}, {sT1} offen sc1")
            p.raw("s_mov_b64 exec, -1")
        self.cond("s_cmp_lg_u32", sWAVE, 7, "Lnobias2", body)
        self.sent_tok = p.vm_seq

    def init_counter(self):
        p = self.p

        def body():
            p.raw(f"s_waitcnt vmcnt({p.vm_seq - self.sent_tok})")
            p.raw(f"v_mov_b32 {self.tq[4]}, 1")
            p.raw("s_mov_b64 exec, 1")
            p.raw(f"buffer_atomic_add {self.tq[4]}, {self.vL}, {sDBG}, 0 offen")
            p.raw("s_mov_b64 exec, -1")
        self.cond("s_cmp_lg_u32", sWAVE, 7, "Lnoinit", body)

    def ln_stats(self):
        p, C, ls = self.p, self.CA, self.ls
        s2, q2 = ls[0], ls[1]
        ops = [lambda: p.valu("v_pk_add_f32", s2, C.sub(0, 2), C.sub(2, 2)),
               lambda: p.valu("v_pk_mul_f32", q2, C.sub(0, 2), C.sub(0, 2))]
        for i in range(1, 24):
            if i >= 2:
                ops.append(lambda i=i: p.valu("v_pk_add_f32", s2, s2, C.sub(2 * i, 2)))
            ops.append(lambda i=i: p.valu("v_pk_fma_f32", q2, C.sub(2 * i, 2), C.sub(2 * i, 2), q2))
        return ops

    def ln_stats_plain(self, rs):
        p, ls = self.p, self.ls
        C = [self.CA.sub(r) for r in rs]
        ops = []
        for i in range(48):
            s_, q_ = ls[0].sub(i % 2), ls[1].sub(i % 2)
            if i < 2:
                ops.append((4, lambda i=i, q_=q_: p.valu("v_mul_f32", q_, C[i], C[i])))
            else:
                ops.append((4, lambda i=i, s_=s_: p.valu("v_add_f32", s_, C[i - 2] if i < 4 else s_, C[i])))
                ops.append((4, lambda i=i, q_=q_: p.valu("v_fmac_f32", q_, C[i], C[i], rmw=True)))
        return ops

    def ln_scalar(self):
        p, ls = self.p, self.ls
        s, s1, q, q1, rs, off = [ls[i // 2].sub(i % 2) for i in range(6)]
        return [
            (4, lambda: p.valu("v_add_f32", s, s, s1)),
            (4, lambda: p.valu("v_add_f32", q, q, q1)),
            (4, lambda: p.swap32(s, q)),
            (4, lambda: p.valu("v_add_f32", s, s, q)),
            (4, lambda: p.valu("v_mul_f32", s, f2u(1.0 / 96), s)),
            (4, lambda: p.valu("v_mov_b32", q, s)),
            (4, lambda: p.swap32(s, q)),
            (4, lambda: p.valu("v_fma_f32", q, f"-{s}", s, q)),
            (4, lambda: p.valu("v_max_f32", q, 0, q)),
            (4, lambda: p.valu("v_add_f32", q, f2u(1e-5), q)),
            (8, lambda: p.valu("v_rsq_f32", q, q)),
            (4, lambda: p.valu("v_mul_f32", rs, f2u(GA), q)),
            (4, lambda: p.valu("v_mul_f32", off, s, rs)),
        ]

    def ln_norm(self):
        p, C, ro = self.p, self.CA, self.ls[2]
        return [lambda i=i: p.valu("v_pk_fma_f32", C.sub(2 * i, 2), C.sub(2 * i, 2), ro, ro,
                                   mods="op_sel:[0,0,1] op_sel_hi:[1,0,1] neg_lo:[0,0,1] neg_hi:[0,0,1]")
                for i in range(24)]

    def ln_pack(self, t):
        p, C = self.p, self.CA
        return [(4, lambda i=i: p.valu("v_cvt_pk_bf16_f32", self.LN[t].sub(i), C.sub(2 * i), C.sub(2 * i + 1)))
                for i in range(24)]

    def conv_items(self, ti, gate=None):
        p = self.p
        seq = [(cl, dx, cq) for cl in (0, 1, 3, 2) for dx in range(3) for cq in range(3)]
        state = [2 * (ti % 2)] * 3
        items = [dict(reads=[rd128(self.vA[2], 0xFFF0)], w=0.5,
                      emit=[(lambda z, k=k: p.mfma(self.CA.sub(16 * k, 16), z, z, 0)) for k in range(3)])]
        for pr in (range(18) if ti % 2 == 0 else range(17, -1, -1)):
            reads, em = [rd128(self.vC[0], pr * 384)], []
            for k, h in enumerate((0, 1) if ti % 2 == 0 else (1, 0)):
                cl, dx, cq = seq[2 * pr + h]
                hook = None
                if state[dx] != cl:
                    hook = (lambda dx=dx, d=16 * (cl ^ state[dx]): p.valu("v_xor_b32", self.vB[dx], d, self.vB[dx]))
                    state[dx] = cl
                rb_ = rd128(self.vB[dx], 64 * cq, self.rb, hook)
                rb_['after'] = gate
                reads.append(rb_)
                acc = self.CA.sub(4 * (4 * cq + cl), 4)
                em.append(lambda a, *b, acc=acc, h=h, k=k: p.smfmac(acc, a.sub(2 * h, 2), b[k], self.vC[1]))
            items.append(dict(reads=reads, w=self.o.get('cw', 0.5), emit=em))
        return items

    def gemm1_32(self, j, ln, pixel_lane, need):
        p, y = self.p, self.Y
        items = []
        for s6 in range(6):
            b = ln.sub(4 * s6, 4)
            if pixel_lane:
                e = (lambda w, b=b, s6=s6: p.mfma(y, w, b, y if s6 else 0))
            else:
                e = (lambda w, b=b, s6=s6: p.mfma(y, b, w, y if s6 else 0))
            items.append(dict(reads=[self.frag(W1F + (j * 6 + 3 * (s6 & 1) + (s6 >> 1)) * 1024)], emit=e, need=need))
        return items

    def period_fill(self, y, n, G=None, sq=None, first=False, tag=None, ph=1, fl=False):
        o, ge = self.o, self.ge
        a, d = ge.front(n, o.get('grp', 2), G is None)
        if fl:
            d = d[:len(d) // 2] + [(0, self.flush)] + d[len(d) // 2:] + [(0, self.flush)]
        t0, t1 = split_cost(a + ge.mid(n), o.get(f'ds{ph}', 96 if ph == 1 else 64))
        if G is not None:
            ba, bd = ge.back_pack(G, n)
            if tag:
                ba, bd = [x + (tag,) for x in ba], [x + (tag,) for x in bd]
            t1a, t1b = split_cost(t1, sum(x[0] for x in t1) - o.get(f'de{ph}', 32 if ph == 1 else 16))
            return ge.cvts(y, n) + merge(t0, d) + t1a + merge(t1b, bd) + ba
        ba, bd = ge.back_stat(sq, None, n, first, o.get('mix', 1))
        tl = t1 + ba
        t1a, t1b = split_cost(tl, sum(x[0] for x in tl) - o.get('des', 64))
        return ge.cvts(y, n) + merge(t0, d) + t1a + merge(t1b, bd)

    def period_def(self, W, y, n, G, par, late, now=False, ph=1):
        o = self.o
        assert n == 5 and len(W) >= 19
        lo = W[5 * par:5 * par + 5]
        ge = Gelu(self, [r for i in range(n) for r in (lo[i], G[i])] + W[10:], sK, sM, 0)
        a, d = ge.front(n, o.get('grpd', 1))
        ba, bd = ge.back_pack(G, n)
        t = a + ge.mid(n)
        tot = sum(x[0] for x in t + ba)
        mark = (0, lambda: None)
        if now:
            d = d + [(0, self.flush)]
            t0, t1 = split_cost(t, 64)
            t1a, t1b = split_cost(t1, sum(x[0] for x in t1) - 24)
            fill = ge.cvts(y, n) + merge(merge(t0, late + [mark]), d) + t1a + merge(t1b, bd) + ba
            bd = []
        else:
            t0, t1 = split_cost(t + ba, tot * o.get(f'dm{ph}', 50) // 100)
            u = merge(t0, late + [mark]) + t1
            u0, u1 = split_cost(u, sum(x[0] for x in u) * o.get(f'dd{ph}', 90) // 100)
            fill = ge.cvts(y, n) + merge(u0, d) + u1
        return fill, mark, bd

    @staticmethod
    def mix_in(s, ops, lo=8):
        s['fill'] = s['fill'][:lo] + merge(s['fill'][lo:], ops)

    @staticmethod
    def spread(segs, s0, fns, per):
        for k, f in enumerate(fns):
            segs[s0 + k // per]['vm'].append(f)

    def ladder(self, segs, a, b, fr):
        for f, lv in zip(fr, range(len(fr) - 1, -1, -1)):
            h = a + f * (b - a)
            if h < len(segs):
                insert_at(segs, h, lambda lv=lv: self.setprio(lv))

    def jitter(self, segs, tag):
        j = self.o.get('x_jit')
        if not j:
            return
        p = self.p
        for k, s_ in enumerate(segs):
            if (k * 7 + j) % 3 == 0:
                w = (k * 5 + j) % 8
                s_['end'].append(lambda k=k, w=w: self.cond("s_cmp_lg_u32", sWAVE, w, f"Ljit{tag}_{k}", lambda: p.raw(f"s_sleep {20 + 13 * ((k + j) % 5)}")))

    def swaps(self, a, b):
        return [(8, lambda i=i: self.p.swap16(a.sub(i), b.sub(i))) for i in range(4)]

    def ws_frag(self, f, fn):
        p = self.p
        if f == 0:
            return fn(sLNB)
        p.salu("s_add_u32", sT3, sLNB, f << self.fsh)
        return fn(sT3)

    def spill_ln(self, ti):
        p = self.p
        return [lambda k=k: self.ws_frag(6 * ti + k, lambda so: p.buf_store(
            "buffer_store_dwordx4", self.LN[ti].sub(4 * k, 4), self.vL, sWS, so, flags=self.o.get(f'ssf{ti}', 'sc1'))) for k in range(6)]

    def touch(self, kind, ti, a, part=None):
        p, lane = self.p, self.vLane
        if kind == 'x':
            p.valu("v_lshrrev_b32", a, 1, lane)
            p.valu("v_lshlrev_b32", a, 7, a)
            p.raw("s_mov_b64 exec, 0xaaaaaaaa")
            p.salu("s_mov_b32", "exec_hi", 0xAAAAAAAA)
            p.valu("v_add_u32", a, ROWB, a)
            srd, so, n = sX, sTILE[ti], 48
        elif kind == 'l':
            p.valu("v_mul_u32_u24", a, (1 << (self.fsh - 3)) + 128, lane)
            p.valu("v_and_b32", a, (7 << self.fsh) | 0x380, a)
            p.salu("s_add_u32", sT3, sLNB, (6 * ti) << self.fsh)
            srd, so, n = sWS, sT3, 48
        else:
            p.valu("v_lshlrev_b32", a, 7, lane)
            p.salu("s_add_u32", sT3, sROWT, (8 * ti + (4 if kind == 'R' else 0)) * ROWB)
            srd, so, n = sX, sT3, 52
        k, m = part or (0, 1)
        mask = ((1 << (n * (k + 1) // m)) - 1) & ~((1 << (n * k // m)) - 1)
        p.salu("s_mov_b32", "exec_lo", mask & 0xFFFFFFFF)
        p.salu("s_mov_b32", "exec_hi", mask >> 32)
        assert n * (k + 1) // m - n * k // m <= 24
        p.salu("s_mov_b32", "m0", CNT + 32 - 4 * (n * k // m))
        p.nop(1)
        p.raw(f"buffer_load_dword {a}, {srd}, {so} offen lds")
        p.vm_seq += 1
        p.raw("s_mov_b64 exec, -1")

    def touches(self, segs, spec, a, base=0):
        for e in str(spec).split(','):
            if e in ('', 'n'):
                continue
            what, pos = e.split('@')
            pos = [float(x) for x in pos.split('/')] + [1, 1]
            for k in range(int(pos[1])):
                segs[base + int(pos[0] + k * pos[2])]['end'].append(lambda what=what, k=k, m=int(pos[1]): self.touch(what[0], int(what[1]), a, (k, m)))

    def w2_addr(self, a, b):
        p, lane = self.p, self.vLane
        p.valu("v_lshrrev_b32", a, 2, lane)
        p.valu("v_mul_u32_u24", a, 192, a)
        p.valu("v_and_b32", b, 3, lane)
        p.valu("v_lshl_add_u32", a, b, 4, a)

    def w2_fetch(self, a, u):
        p = self.p
        p.salu("s_add_u32", "m0", sPRIV, u * 1024)
        p.salu("s_add_u32", sT0, sW2B, (u // 3) * 3072 + (u % 3) * 64)
        p.dma(a, sW2, sT0)

    def startup_routines(self):
        main = self.p

        def w1_transform(us, fr):
            p = self.p
            off = lambda u: (u // 6) * 24576 + (u % 6) * 1024
            for k, u in enumerate(us):
                for i in range(2):
                    p.ds_read("ds_read_b64_tr_b16", fr[k].sub(2 * i, 2), self.vW1r, off(u) + i * 512)
            for k, u in enumerate(us):
                p.ds_write("ds_write_b128", self.vW1w, fr[k], off(u))
            p.wait_all(vm=False)

        for name in ("Lconv0", "Lln0", "Lw1a", "Lw1i", "Lw1b", "Lw1c", "Lpre", "Lrb", "Lw1f"):
            self.p = p = Prog()
            p.lines.append(f"{name}:")
            if name == "Lw1a":
                w1_transform(range(6), [V(148 + 4 * u, 4) for u in range(6)])
            elif name == "Lpre":
                for it, a in zip(self.conv_items(0)[1:], self.A0):
                    for op, addr, off, so, n in it['reads'][0]['parts']:
                        p.ds_read(op, a.sub(so, n), addr, off)
                for r in self.CA.regs():
                    p.valu("v_mov_b32", V(r), 0)
                p.wait_all(vm=False)
            elif name == "Lrb":
                self.rows_dma(range(5, 9))
            elif name == "Lw1f":
                for u in range(6):
                    self.w1_dma(u)
            elif name == "Lw1i":
                for u in range(6, 18):
                    self.w1_dma(u)
            elif name in ("Lw1b", "Lw1c"):
                u0 = 6 if name == "Lw1b" else 12
                w1_transform(range(u0, u0 + 6), [V(72 + 4 * u, 4) for u in range(6)])
            elif name == "Lconv0":
                s = seg()
                rb0 = self.rb + self.ring1
                for it, a in zip(self.conv_items(0)[1:], self.A0):
                    for rd in it['reads'][1:]:
                        rd['ring'] = rb0
                    s['mf'].append(dict(reads=it['reads'][1:], emit=[(lambda *b, a=a, e=e: e(a, *b)) for e in it['emit']]))
                s['cl'] = 1
                self.run([s], self.ring1)
                p.nop(12)
            else:
                for f in self.ln_stats():
                    f()
                for _, f in self.ln_scalar():
                    f()
                for f in self.ln_norm():
                    f()
                for _, f in self.ln_pack(0):
                    f()
                p.nop(2)
            p.raw(f"s_setpc_b64 {sRET}")
            main.lines += p.lines
        self.p = main

    def phase1(self):
        p, o, lane = self.p, self.o, self.vLane

        def su(n):
            if o.get('fine') == 'su' and n not in ('s_setprio 3', 's_setprio 2', 'Lpre', 'Lln0', 'Lw1b', 'Lw1c'):
                self.sstamp('su')

        def call_if(older, names, tag):
            self.cond("s_cmp_lt_u32" if older else "s_cmp_ge_u32", sWAVE, 4, tag,
                      lambda: [(p.raw(n if n.startswith("s_") else f"s_call_b64 {sRET}, {n}"), su(n)) for n in names], 0)

        def act(n):
            if n.startswith("+"):
                self.signal(int(n[1:]))
            elif n.startswith("?"):
                off, tg = ints(n[1:])
                self.lds_spin(self.vCN, self.vEV, off, tg, f"sw{off}{tg}")
            else:
                p.raw(n if n.startswith("s_") else f"s_call_b64 {sRET}, {n}")
                su(n)

        def seq_if(older, names, tag):
            self.cond("s_cmp_lt_u32" if older else "s_cmp_ge_u32", sWAVE, 4, tag, lambda: [act(n) for n in names], 0)

        p.raw("s_setprio 2")
        vw = lambda n: f"s_waitcnt vmcnt({n})"
        seq_if(True, ["Lpre", "Lrb", vw(4), f"+{E_ROWA}", f"?{E_ROWA},8", "Lconv0", f"+{E_FREE}", "Lln0", vw(0), f"+{E_ROW}", "Lw1i"], "Lsu0")
        seq_if(False, [f"s_setprio {o.get('sp', 3)}", "Lw1f", vw(6), f"+{E_ROWA}", "Lrb", vw(4), "Lw1a", f"+{E_W1}", "Lpre", vw(0),
                       f"+{E_ROW}", f"?{E_ROW},8", "Lconv0", f"+{E_FREE}", "Lln0"], "Lsu2")
        w1_tok = p.vm_seq
        p.raw("s_branch Lgo")
        self.startup_routines()
        p.lines.append("Lgo:")
        act(f"?{E_W1},4")
        if o.get('pf', 1) == 1:
            self.code_prefetch()
        self.stamp(192)
        self.pad('padsu')
        p.lds_age = o.get('age1', 24)
        NG = len(self.JG)
        NS = 49 + NG
        P = [seg() for _ in range(NS)]
        c0s = [o.get('c1', 6), o.get('cn', 2), o.get('cn', 2)]
        conv = {}

        def landed():
            assert self.nrow % 8 == 0 and self.nrow > self.nready, (self.nrow, self.nready)
            self.nready = self.nrow
            self.cond("s_cmp_eq_u32", sWAVE, 7, f"Lrdy{self.nrow}", lambda: p.wait(vm=self.x_tok))
            self.signal(E_ROW)

        gate = {}

        def check(pos, off, target, name=None):
            insert_at(P, pos - o.get('evl', 0.3), lambda: self.gq.append(lambda: self.ev_read(off)))
            insert_at(P, pos, lambda: (self.flush(), self.ev_wait(off, target), gate.__setitem__(name, True)))

        def advance_rows():
            a, b = V(174), V(175)
            p.valu("v_add_u32", a, 8 * RP - W2R, self.vB[0])
            p.valu("v_subrev_u32", b, 10 * RP, a)
            p.valu("v_min_u32", a, a, b)
            p.valu("v_add_u32", a, W2R, a)
            p.valu("v_sub_u32", b, a, self.vB[0])
            for k in range(3):
                p.valu("v_add_u32", self.vB[k], b, self.vB[k])

        for ti in range(1, 4):
            s0, first = 12 * (ti - 1), c0s[ti - 1]
            for k, it in enumerate(self.conv_items(ti, gate=lambda ti=ti: gate.get(('r', ti)))):
                conv.setdefault(s0 + first + max(k - 1, 0) * (10 - first) // 18, []).append(it)
        ndc, ndn, ndk = ints(o.get('ndc', '4,5')), ints(o.get('ndn', 5)), ints(o.get('ndk', '5'))
        late = []
        nd0 = ints(o.get('nd0', 'n'))
        ndx = dict(zip(ints(o.get('ndx', '10,6,11,6'))[::2], ints(o.get('ndx', '10,6,11,6'))[1::2]))
        hs = o.get('hs', 0)
        dk = o.get('dk', 0) and not hs
        packed = lambda e: 36 - self.nk <= e < 48 + NG or (hs and 24 <= e < 28)
        dest = lambda e: V(56 + 8 * (e % 2), 8) if e < 28 else (self.S2[e - 24] if e < 36 else (self.S3[e - 36] if e < 48 else self.S2[self.JG[e - 48]]))
        for s in range(NS):
            S_ = P[s]
            e = s - 1
            if 0 <= e < 36 and not packed(e):
                n = ndc[(s + 3) % len(ndc)] if s in conv else ndn[s % len(ndn)]
                if s < len(nd0):
                    n = nd0[s]
                elif s % 12 in ndx:
                    n = ndx[s % 12]
                self.ge.W = self.W + ([V(174), V(175), V(176), V(177)] if n < 4 else [])
                if o.get('dfr', 95) and not hs and e < 34:
                    assert 4 <= n <= (6 if s > 5 else 5)
                    self.ge.W = (regs(V(178, 12)) if e % 2 else regs(V(136, 8), V(176, 2), V(190, 2))) + self.W[8:]
                    ge = self.ge
                    a, d = ge.front(n, o.get('grpd', 1), True)
                    ba, bd = ge.back_stat(self.SQ[e % 12], None, n, e < 12, o.get('mix', 1))
                    blk = []
                    if o.get('mix', 1) == 2:
                        ba, blk = ba[:-1], ba[-1:]
                        S_['tail2'] = o.get('dt', 40)
                    t = a + ge.mid(n) + ba
                    if e == 33:
                        t0, t1 = split_cost(t, 96)
                        t1a, t1b = split_cost(t1, sum(x[0] for x in t1) - 64)
                        S_['fill'] = ge.cvts(regs(self.Y), n) + merge(merge(t0, late), d) + t1a + merge(t1b, bd)
                    else:
                        ta, tb = split_cost(t, sum(x[0] for x in t) * o.get('dl0', 0) // 100)
                        t0, t1 = split_cost(ta + merge(tb, late), sum(x[0] for x in t + late) * o.get('dfr', 95) // 100)
                        S_['rg'] = o.get('rgc', 1) if s in conv else o.get('rgn', 1)
                        S_['fill'] = ge.cvts(regs(self.Y), n) + merge(t0, d) + t1
                    S_['fill'] += blk
                    late = bd
                else:
                    S_['fill'] = self.period_fill(regs(self.Y), n, sq=self.SQ[e % 12], first=e < 12)
                self.ge = Gelu(self, self.W, sK, sM, 0)
            elif packed(e) and dk:
                S_['fill'], nlate, late = self.period_def(self.W, regs(self.Y), 5, regs(dest(e)), e % 2, late if e > 34 else [], now=e in (47, 47 + NG))
            elif packed(e):
                S_['fill'] = self.period_fill(regs(self.Y), (o.get('nd35', 6) if s == 35 else ndk[s % len(ndk)]) if e < 48 else o.get('ndg', 5), G=regs(dest(e)), fl=e == 47 + NG)
            g1 = []
            if s < 48:
                g1 = self.gemm1_32(s % 12, self.LN[s // 12], packed(s), 8 if s else 0)
            elif s < 48 + NG:
                g1 = self.gemm1_32(self.JG[s - 48], self.LN[2], True, 8)
            if s >= 35:
                S_['ring'] = self.ring2
            ex = conv.get(s, [])
            tr = []
            if packed(s - 2) and s - 2 < 48:
                G, j = dest(s - 2), (s - 2) % 12
                sq = self.SQ[j]
                D0, idf = (self.D0, self.idf) if s >= 36 else (V(176, 16), [V(48, 4), V(52, 4)])
                tr = [dict(reads=[], tag='tr' if q else None, w=0.5,
                           emit=(lambda q=q, G=G, D0=D0, idf=idf: p.mfma(D0, G.sub(4 * q, 4), idf[q], D0 if q else 0, 'f16'))) for q in range(2)]
                ops = [(4, lambda i=i, sq=sq, D0=D0: p.valu("v_fmac_f32", sq, D0.sub(i), D0.sub(i), rmw=True), 'tr') for i in range(16)]
                if o.get('kpk', 40) and s < 49:
                    a2 = D0.sub(0, 2)

                    def blk(D0=D0, a2=a2):
                        p.raw("s_setprio 3")
                        p.valu("v_pk_mul_f32", a2, a2, a2)
                        for i in range(1, 8):
                            p.valu("v_pk_fma_f32", a2, D0.sub(2 * i, 2), D0.sub(2 * i, 2), a2)
                        p.raw(f"s_setprio {self.prio}")
                    ops = [(32, blk, 'tr'), (4, lambda a2=a2, sq=sq: p.valu("v_add_f32", sq, sq, a2.sub(0))), (4, lambda a2=a2, sq=sq: p.valu("v_add_f32", sq, sq, a2.sub(1)))]
                if s >= 38 and j % 2:
                    a_, b_ = self.SQ[j - 1], sq
                    ops += [(8, lambda a_=a_, b_=b_: p.swap32(a_, b_)), (4, lambda a_=a_, b_=b_: p.valu("v_add_f32", a_, a_, b_)),
                            (0, lambda a_=a_, j=j: p.ds_write("ds_write_b32", self.vTAB, a_, TABO + (j - 1) * 128))]
                if s == 49:
                    S_['fill'] = S_['fill'][:18] + ops + [(0, self.arrive)] + S_['fill'][18:]
                elif dk:
                    for it in tr:
                        it['mark'] = nlate
                    at = next(i for i, x in enumerate(S_['fill']) if x is nlate)
                    self.mix_in(S_, ops, min(at + o.get('trl', 14), len(S_['fill'])))
                    S_['trpos'] = o.get('trp', 4) if s < 48 else 2
                elif o.get('kpk', 40):
                    S_['fill'] += ops
                    S_['tail2'] = o.get('kpk', 40)
                else:
                    self.mix_in(S_, ops, 18)
                if s < 36:
                    S_['vm'] += [lambda q=q, G=G, j=j: self.ws_frag(12 + 2 * j + q, lambda so: p.buf_store(
                        "buffer_store_dwordx4", G.sub(4 * q, 4), self.vL, sWS, so, flags=o.get('ssf', 'sc1'))) for q in range(2)]
            if ex:
                nf, nl = (0 if tr else 1), 1
                mid = ex[nf:len(ex) - nl]
                m = []
                for k in range(6):
                    m.append(g1[k])
                    if k < 5:
                        m += mid[k * len(mid) // 5:(k + 1) * len(mid) // 5]
                S_['mf'] = tr + ex[:nf] + m + ex[len(ex) - nl:]
                S_['cl'] = o.get('clc', 1)
                if 'tail2' in S_:
                    S_['tail'] = o.get('dtc', 40)
            else:
                k = S_.get('trpos', 0)
                S_['mf'] = g1[:k] + tr + g1[k:]
                S_['head'], S_['tail'] = (0 if tr and not k else 32), S_.get('tail2', o.get('t1', 24))
        p.salu("s_add_u32", sYB, sYB, 8 * ROWB)
        P[0]['end'].append(advance_rows)
        P[o.get('wb', 2)]['end'].append(lambda: seq_if(True, [vw(6 + p.vm_seq - w1_tok), 'Lw1b', f'+{E_W1B}'], 'Lsu5'))
        P[o.get('wc', 4)]['end'].append(lambda: seq_if(True, [vw(p.vm_seq - w1_tok), 'Lw1c', f'+{E_ROWA}'], 'Lsu6'))
        extra = {}
        for ti in range(1, 4):
            s0 = 12 * (ti - 1)
            P[s0 + 9]['tail'] = 32
            if o.get('lnp', 0) & 4:
                first, order = c0s[ti - 1], ((0, 1, 3, 2) if ti % 2 == 0 else (2, 3, 1, 0))
                rs = [16 * cq + 4 * cl + i for cl in order for cq in range(3) for i in range(4)]
                ops = self.ln_stats_plain(rs)
                ends = [first + ((9 * (k + 1) + 1) // 2 - 1) * (10 - first) // 18 + 1 for k in range(4)]
                for k in range(4):
                    part = ops[max(0, 24 * k - 2):24 * k + 22]
                    span = range(ends[k], max(ends[k] + 1, ends[k + 1])) if k < 3 else [10]
                    for m, q in enumerate(span):
                        extra.setdefault(s0 + q, []).extend(part[m * len(part) // len(span):(m + 1) * len(part) // len(span)])
                extra[s0 + 10] += self.ln_scalar()
            elif o.get('lnp', 0) & 1:
                self.mix_in(P[s0 + 10], self.ln_stats_plain(range(48)) + self.ln_scalar())
            else:
                P[s0 + 9]['pb'] += self.ln_stats()
                self.mix_in(P[s0 + 10], self.ln_scalar())
            P[s0 + 9]['mf'][-1]['post'] = lambda: self.signal(E_FREE)
            if ti < 3:
                P[s0 + 9]['end'].append(advance_rows)
            if o.get('lnp', 0) & 2:
                ro = self.ls[2]
                nm = [(4, lambda i=i: p.valu("v_fma_f32", self.CA.sub(i), self.CA.sub(i), ro.sub(0), f"-{ro.sub(1)}")) for i in range(48)]
                pk = self.ln_pack(ti)
                self.mix_in(P[s0 + 11], nm + pk)
            else:
                P[s0 + 10]['pb'] += self.ln_norm()
                self.mix_in(P[s0 + 11], self.ln_pack(ti))
        for q, ops in extra.items():
            self.mix_in(P[q], ops)
        for it in P[4]['mf']:
            it['reads'][0]['after'] = lambda: gate.get('w1')
        check(o.get('wck', 3.5), E_W1B, 4, 'w1')
        for it in P[8]['mf']:
            it['reads'][0]['after'] = lambda: gate.get('w2')
        check(o.get('wck2', 7.0), E_ROWA, 12, 'w2')
        for ti in range(3):
            d0 = o.get('f0', 2) if ti == 0 else 12 * ti - 12 + o.get('fn', 11)
            check(d0, E_FREE, 8 * (ti + 1))
            fns = [lambda r=r: self.row_dma_fast(r) for r in range(8 * ti + 9, 8 * ti + 17)]
            self.spread(P, d0, fns, o.get('per0', 8) if ti == 0 else o.get('pern', 8))
            c = 12 * ti + c0s[ti]
            insert_at(P, c - o.get('sgl', 1.2), landed)
            check(c - o.get('ckl', 0.4), E_ROW, 8 * (ti + 2), ('r', ti + 1))
        assert o.get('fn', 11) <= 11
        check(24 + o.get('fn', 11), E_FREE, 32)
        for ti, d in ((0, 14), (1, 30 if hs else 25)):
            for k, f in enumerate(self.spill_ln(ti)[0 if ti else 2 * self.kl:]):
                at = int(o.get(f'sl{ti}', d) + k * o.get(f'sls{ti}', 0.8 if hs and ti else 1))
                assert at <= (min(34, ints(o.get('rs', '36,39,42,44,48'))[0]) if ti else (22 if hs else 34))
                P[at]['vm'].append(f)
        P[o.get('sent', 6)]['end'].append(self.sentinels)
        P[17]['end'].append(self.bias_finish)
        P[24]['end'].append(self.init_counter)
        u = self.tq[1]
        P[33]['end'].append(lambda: self.w2_addr(u, self.vX))
        self.spread(P, 24 + o.get('fn', 11), [lambda k=k: self.w2_fetch(u, k) for k in range(7)], 3)
        self.mix_in(P[35], self.ident32(self.idf, V(192, 4)))
        if hs:
            self.mix_in(P[24], self.ident32([V(48, 4), V(52, 4)], V(176, 4)))
            P[46 + NG]['end'].append(self.reload_map)
            ld = self.reload_ln(0, [self.LN[2].sub(4 * k, 4) for k in range(6)])
            P[48 + NG]['pre'].append(lambda: self.cond("s_cmp_eq_u32", sWAVE, 0, "Lnorl0", lambda: [f() for f in ld]))
        self.mix_in(P[37], self.tab_addr())
        for k, v in enumerate(self.KL):
            self.mix_in(P[36 + k], [(4, lambda i=i, k=k, v=v: p.valu("v_mov_b32", v.sub(i), self.LN[0].sub(8 * k + i))) for i in range(8)])
        for s in range(49, NS):
            if s in ints(o.get('pps', '49,50,51,52,53,54,55')):
                P[s]['end'].append(lambda s=s: self.poll_point(s, s < o.get('pr1', 54)))
            for q in range(1, o.get('npp', 1) if s >= 50 else 0):
                insert_at(P, s + q / o['npp'], lambda s=s, q=q: self.poll_point(100 * q + s))
        P[48 + NG - o.get('w2b', 3)]['end'] += [lambda: self.lds_spin(self.W[0], self.W[1], 4, 1, "w2"), lambda: self.w2_addr(self.W[0], self.W[1]),
                                                   lambda: self.w2_fetch(self.W[0], 7), lambda: self.w2_fetch(self.W[0], 8)]
        assert not dk
        for k, f in zip(ints(o.get('rs', '36,39,42,44,48')), self.role_steps()):
            P[k]['end'].append(f)
        self.touches(P, o.get('t1s', 'r2@7/3/1,r3@18/3/1'), self.tq[1])
        self.touches(P, o.get('t3s', 'n'), V(86))
        for k in ints(o.get('ca1', 'n')):
            P[k]['end'].append(lambda k=k: self.code_again(self.W[0], f'a{k}'))
        fr = flts(o.get('pf1', '0,0.5,0.85'))
        marks = [0] + list(range(o.get('l1a', 6), NS, o.get('lc', 2))) + [NS]
        for a, b in zip(marks, marks[1:]):
            self.ladder(P, a, b, fr)
        self.jitter(P, 1)
        if o.get('fine') == 'p1':
            for k in ints(o.get('ss1', '2,4,5,9,12,14,15,21,26,27,33,41')):
                P[k]['end'].append(lambda: self.sstamp('p1'))
        self.imm = o.get('imm1', 99)
        self.run(P, self.ring1)
        p.lds_age = 0

    def tab_addr(self):
        p, lane, a, b = self.p, self.vLane, self.vTAB, V(87)
        return [(4, f) for f in (lambda: p.valu("v_and_b32", a, 0x33, lane), lambda: p.valu("v_bfe_u32", b, lane, 2, 1),
                                 lambda: p.valu("v_lshl_add_u32", a, b, 3, a), lambda: p.valu("v_bfe_u32", b, lane, 3, 1),
                                 lambda: p.valu("v_lshl_add_u32", a, b, 2, a), lambda: p.valu("v_lshl_add_u32", a, a, 2, sPRIV))]

    def arrive(self):
        p, lane = self.p, self.vLane
        self.flush()
        age, p.lds_age = p.lds_age, 0
        p.raw("s_setprio 3")
        t = [V(240 + i) for i in range(8)]
        p._mem_issue([], [t[2].b])
        p.raw("s_mov_b64 exec, 1")
        p.raw(f"ds_add_rtn_u32 {t[2]}, {self.vCN}, {self.vONE}")
        p.raw("s_mov_b64 exec, -1")
        p.raw("s_waitcnt lgkmcnt(0)")
        p.lgkm_done = p.lgkm_seq
        p.valu("v_readfirstlane_b32", sT0, t[2])

        def publish():
            pv = [V(176 + 8 * w, 8) for w in range(4)] + [V(156, 8)]
            p.valu("v_min_u32", t[3], 47, lane)
            p.valu("v_lshlrev_b32", t[4], 5, t[3])
            p.valu("v_add_u32", t[4], W2R + TABO, t[4])
            rd = lambda v, w: [p.ds_read("ds_read_b128", v.sub(4 * k, 4), t[4], 9216 * w + 16 * k) for k in range(2)]
            add = lambda x, y: [p.valu("v_add_f32", x.sub(i), x.sub(i), y.sub(i)) for i in range(8)]
            for w in range(5):
                rd(pv[w], w)
            p.valu("v_lshlrev_b32", t[6], 13, t[3])
            p.valu("v_add_u32", t[7], 4096, t[6])
            add(pv[0], pv[1])
            rd(pv[1], 5)
            add(pv[2], pv[3])
            rd(pv[3], 6)
            add(pv[0], pv[2])
            rd(pv[2], 7)
            add(pv[4], pv[1])
            add(pv[3], pv[2])
            add(pv[4], pv[3])
            add(pv[0], pv[4])
            for i in range(8):
                p.valu("v_min_u32", pv[1].sub(i), -2, pv[0].sub(i))
            p.salu("s_lshl_b32", sT0, S(2), 4)
            p.buf_store("buffer_store_dwordx4", pv[1].sub(0, 4), t[6], sWS, sT0, flags="sc1")
            p.buf_store("buffer_store_dwordx4", pv[1].sub(4, 4), t[7], sWS, sT0, flags="sc1")
            p.ds_write("ds_write_b32", self.vCN, self.vONE, 4)
            p.nop(2)
        self.cond("s_cmp_lg_u32", sT0, 7, "Lnopub", publish)
        self.stamp(192)
        rv, tv, gv, t = self.poll_regs()
        p.salu("s_mov_b32", sROLE, 0)

        def role():
            if not self.g7:
                p.valu("v_lshlrev_b32", t[0], 2, lane)
                for i in range(3):
                    p.raw(f"buffer_load_dword {gv[i]}, {t[0]}, {sGA}, 0 offen offset:{256 * i}")
            if not self.o.get('dyn', 1):
                p.salu("s_mov_b32", sRED, S(2))
            p.salu("s_cmp_lt_u32", sRED, 96)
            p.salu("s_cselect_b32", sROLE, 1, 2)
            for r in rv:
                for i in range(4):
                    p.valu("v_mov_b32", r.sub(i), -1)
            if self.g7:
                p.raw("s_cbranch_scc1 Lrole1")
                p.raw(f"s_call_b64 {sRET}, LpollG")
                p.raw("s_branch Lnorole")
                p.lines.append("Lrole1:")
            p.raw(f"s_call_b64 {sRET}, Lpoll1")
        self.cond("s_cmp_lg_u32", sWAVE, 0, "Lnorole", role)
        p.raw(f"s_setprio {self.prio}")
        p.lds_age = age

    def role_steps(self):
        p, lane = self.p, self.vLane
        gv = self.poll_regs()[2]
        t = [V(80 + i) for i in range(8)]

        def a():
            p.valu("v_mov_b32", t[2], 0)
            p.raw(f"buffer_load_dword {t[3]}, {t[2]}, {sDBG}, 0 offen sc1")

        def b():
            p.valu("v_mov_b32", t[2], 0)
            p.lines.append("Lpi:")
            p.raw("s_waitcnt vmcnt(0)")
            p.raw(f"v_readfirstlane_b32 {sT0}, {t[3]}")
            self.spin_guard("Lpix")
            p.raw(f"s_cmp_ge_u32 {sT0}, 256")
            p.raw("s_cbranch_scc1 Lpix")
            p.raw(f"buffer_load_dword {t[3]}, {t[2]}, {sDBG}, 0 offen sc1")
            p.raw("s_branch Lpi")
            p.lines.append("Lpix:")
            p.valu("v_min_u32", t[0], 47, lane)
            p.valu("v_lshlrev_b32", t[0], 3, t[0])
            p.salu("s_and_b32", sT1, S(2), REP - 1)
            p.salu("s_lshl_b32", sT1, sT1, 11)
            p.salu("s_add_u32", sT1, sT1, WS_TOT + 1536)
            p.raw(f"buffer_load_dwordx2 {V(84, 2)}, {t[0]}, {sWS}, {sT1} offen sc1")

        def c():
            p.valu("v_min_u32", t[0], 47, lane)
            p.valu("v_lshlrev_b32", t[0], 3, t[0])
            p.valu("v_add_u32", t[1], BT0, t[0])
            p.valu("v_add_u32", t[0], BT1 - 256, t[0])
            p.valu("v_cmp_gt_u32", "vcc", 32, lane)
            p.valu("v_cndmask_b32", t[0], t[0], t[1], "vcc")
            p.raw("s_waitcnt vmcnt(0)")
            p.ds_write("ds_write_b64", t[0], V(84, 2))
        def d():
            p.valu("v_mov_b32", V(250), 1)
            p.valu("v_mov_b32", t[2], 0)
            p.raw("s_mov_b64 exec, 1")
            p.raw(f"buffer_atomic_add v250, {t[2]}, {sDBG}, 0 offen offset:128 sc0")
            p.raw("s_mov_b64 exec, -1")

        def e():
            p.raw("s_waitcnt vmcnt(0)")
            p.valu("v_readfirstlane_b32", sRED, V(250))
            p.salu("s_and_b32", sRED, sRED, 255)
        return [lambda f=f, k=k: self.cond("s_cmp_lg_u32", sWAVE, 0, f"Lrs{k}", f) for k, f in enumerate((a, b, c, d, e)[:5 if self.o.get('dyn', 1) else 3])]

    def ident32(self, idf, tmp):
        p, lane = self.p, self.vLane
        a, b, c = tmp.sub(0), tmp.sub(1), tmp.sub(2)
        ops = [lambda: p.valu("v_and_b32", a, 1, lane),
               lambda: p.valu("v_lshlrev_b32", a, 4, a),
               lambda: p.valu("v_mov_b32", b, 0x3C00),
               lambda: p.valu("v_lshlrev_b32", a, a, b),
               lambda: p.valu("v_lshrrev_b32", b, 3, lane),
               lambda: p.valu("v_xor_b32", b, b, lane),
               lambda: p.valu("v_and_b32", b, 4, b),
               lambda: p.valu("v_bfe_u32", c, lane, 3, 2),
               lambda: p.valu("v_lshl_add_u32", b, b, 1, 0),
               lambda: p.valu("v_lshl_add_u32", b, c, 1, b),
               lambda: p.valu("v_bfe_u32", c, lane, 1, 1),
               lambda: p.valu("v_add_u32", b, b, c)]
        for i in range(8):
            ops.append(lambda i=i: (p.valu("v_cmp_eq_u32", "vcc", i, b), p.valu("v_cndmask_b32", idf[i // 4].sub(i % 4), 0, a, "vcc")))
        return [(4, f) for f in ops]

    def poll_regs(self):
        rv = [V(156, 4), V(160, 4), V(164, 4), V(240, 4)]
        tv = V(156, 6)
        gv = [V(244), V(245), V(246)]
        t = [V(247), V(255), V(162), V(163), V(164), V(165), V(166), V(167)]
        if self.g7:
            rv[3] = V(252, 4)
            gv = [V(162), V(163), V(164)]
            t = [V(250), V(250), V(165), V(166), V(167), V(252), V(253)]
        return rv, tv, gv, t

    def poll_loads(self, p, reducer, gamma=False):
        rv, tv, gv, t = self.poll_regs()
        if reducer:
            p.valu("v_lshlrev_b32", t[0], 4, self.vLane)
            p.salu("s_lshl_b32", sT1, sRED, 12)
            for i in range(4):
                p.buf_load("buffer_load_dwordx4", rv[i], t[0], sWS, sT1, 1024 * i, flags=self.o.get('prf', 'sc1').replace('+', ' '))
        else:
            if self.g7 and gamma:
                p.valu("v_lshlrev_b32", t[0], 2, self.vLane)
                for i in range(3):
                    p.buf_load("buffer_load_dword", gv[i], t[0], sGA, 0, 256 * i)
            p.valu("v_lshlrev_b32", t[0], 3, self.vLane)
            p.salu("s_and_b32", sT1, S(2), REP - 1)
            p.salu("s_lshl_b32", sT1, sT1, 11)
            p.salu("s_add_u32", sT1, sT1, WS_TOT)
            for i in range(3):
                p.buf_load("buffer_load_dwordx2", tv.sub(2 * i, 2), t[0], sWS, sT1, 512 * i, flags=self.o.get('pcf', 'sc1').replace('+', ' '))

    def poll_routine(self):
        main, self.p = self.p, Prog()
        p = self.p
        rv, tv, gv, t = self.poll_regs()
        ret = f"s_setpc_b64 {sRET}"
        p.lines.append("Lpoll:")
        p.raw("s_waitcnt vmcnt(0)")
        p.lines.append("Lpoll1:")
        p.salu("s_cmp_eq_u32", sROLE, 2)
        p.raw("s_cbranch_scc1 LpollC")
        allr = [rv[i].sub(k) for i in range(4) for k in range(4)]
        p.valu("v_max_u32", t[1], allr[0], allr[1])
        for i in range(2, 16, 2):
            p.valu("v_max3_u32", t[1], t[1], allr[i], allr[i + 1])
        p.valu("v_cmp_eq_u32", "vcc", -1, t[1])
        p.nop(5)
        p.raw("s_cbranch_vccz LpollR")
        self.poll_loads(p, True)
        p.raw(ret)
        self.p = p2 = Prog()
        p2.lines.append("LpollR:")
        p2.raw("s_setprio 3")
        for k in range(4):
            p2.valu("v_add_f32", rv[0].sub(k), rv[0].sub(k), rv[1].sub(k))
            p2.valu("v_add_f32", rv[3].sub(k), rv[2].sub(k), rv[3].sub(k))
            p2.valu("v_add_f32", rv[3].sub(k), rv[0].sub(k), rv[3].sub(k))
        vs, ts = regs(rv[3]), regs(rv[0])
        for r in (8, 4, 2, 1):
            for v in vs:
                p2.valu("v_add_f32_dpp", v, v, v, mods=f"row_ror:{r} row_mask:0xf bank_mask:0xf")
        for sw in (p2.swap16, p2.swap32):
            for v, u in zip(vs, ts):
                p2.valu("v_mov_b32", u, v)
            for v, u in zip(vs, ts):
                sw(v, u)
            for v, u in zip(vs, ts):
                p2.valu("v_add_f32", v, v, u)
        for v in vs:
            p2.valu("v_min_u32", v, -2, v)
        p2.salu("s_lshl_b32", sT1, sRED, 4)
        p2.salu("s_add_u32", sT1, sT1, WS_TOT)
        p2.valu("v_lshlrev_b32", t[1], 11, self.vLane)
        p2.raw(f"s_mov_b64 exec, {hex((1 << REP) - 1)}")
        p2.buf_store("buffer_store_dwordx4", rv[3], t[1], sWS, sT1, flags="sc1")
        p2.raw("s_mov_b64 exec, -1")
        p2.salu("s_cmp_eq_u32", sWAVE, 0)
        p2.salu("s_cselect_b32", sROLE, 2, 0)
        p2.raw("s_cbranch_scc0 LpollRx")
        p2.lines.append("LpollG:")
        p2.nop(2)
        self.poll_loads(p2, False, True)
        p2.lines.append("LpollRx:")
        p2.raw(ret)
        self.p = p3 = Prog()
        p3.lines.append("LpollC:")
        p3.valu("v_max3_u32", t[1], tv.sub(0), tv.sub(1), tv.sub(2))
        p3.valu("v_max3_u32", t[1], t[1], tv.sub(3), tv.sub(4))
        p3.valu("v_max_u32", t[1], t[1], tv.sub(5))
        p3.valu("v_cmp_eq_u32", "vcc", -1, t[1])
        p3.nop(5)
        p3.raw("s_cbranch_vccz LpollS")
        self.poll_loads(p3, False)
        p3.raw(ret)
        self.p = p4 = Prog()
        p4.lines.append("LpollS:")
        p4.raw("s_setprio 3")
        p4.salu("s_mov_b32", sT0, f2u(1.0 / (GA * GA)))
        p4.valu("v_mov_b32", t[2], f2u(1e-6))
        for i in range(6):
            p4.valu("v_fma_f32", tv.sub(i), tv.sub(i), sT0, t[2])
        for i in range(6):
            p4.valu("v_sqrt_f32", tv.sub(i), tv.sub(i))
        p4.valu("v_add_f32", t[3], tv.sub(0), tv.sub(1))
        for i in range(2, 6):
            p4.valu("v_add_f32", t[3], t[3], tv.sub(i))
        self.lane_sum64(t[3], t[1])
        p4.salu("s_mov_b32", sT0, f2u(1.0 / 384))
        p4.valu("v_fma_f32", t[3], t[3], sT0, t[2])
        p4.valu("v_rcp_f32", t[3], t[3])
        p4.valu("v_mov_b32", t[2], f2u(1.0 / GA))
        p4.valu("v_mul_f32", t[3], t[3], t[2])
        for i in range(3):
            p4.valu("v_lshlrev_b32", t[4], 16, gv[i])
            p4.valu("v_and_b32", t[5], 0xFFFF0000, gv[i])
            p4.valu("v_mul_f32", tv.sub(2 * i), tv.sub(2 * i), t[3])
            p4.valu("v_mul_f32", tv.sub(2 * i + 1), tv.sub(2 * i + 1), t[3])
            p4.valu("v_fma_f32", t[4], t[4], tv.sub(2 * i), t[2])
            p4.valu("v_fma_f32", t[5], t[5], tv.sub(2 * i + 1), t[2])
            p4.valu("v_cvt_pk_f16_f32", gv[i], t[4], t[5])
        p4.salu("s_mov_b32", sROLE, 0)
        p4.raw(ret)
        self.p = main
        for q in (p, p2, p3, p4):
            main.lines += q.lines

    def poll_point(self, k, red=False):
        p = self.p

        def body():
            if self.o.get('nb', 1):
                p.raw(f"s_getreg_b32 {sT0}, hwreg(HW_REG_IB_STS, 0, 4)")
                p.raw(f"s_cmp_lg_u32 {sT0}, 0")
                p.raw(f"s_cbranch_scc1 Lpp{k}")
            p.raw(f"s_call_b64 {sRET}, Lpoll")
            p.raw(f"s_setprio {self.prio}")
        if red:
            self.cond("s_cmp_lg_u32", sROLE, 1, f"Lpp{k}", body)
        else:
            self.cond("s_cmp_eq_u32", sROLE, 0, f"Lpp{k}", body)

    def gap(self):
        p, o, lane = self.p, self.o, self.vLane
        rv, tv, gv, t = self.poll_regs()
        self.stamp(224)
        p.raw("s_setprio 2")
        fr = [V(120 + 4 * u, 4) for u in range(9)]
        u = [V(224 + i) for i in range(4)]
        p.valu("v_lshrrev_b32", u[1], 5, lane)
        p.valu("v_lshl_add_u32", u[0], u[1], 9, sPRIV)
        p.valu("v_lshl_add_u32", u[2], u[1], 4, sPRIV)
        p.valu("v_and_b32", u[1], 15, lane)
        p.valu("v_lshl_add_u32", u[0], u[1], 4, u[0])
        p.valu("v_bfe_u32", u[1], lane, 4, 1)
        p.valu("v_lshl_add_u32", u[0], u[1], 3, u[0])
        if o.get('hs', 0):
            p.raw(f"s_waitcnt vmcnt({6 + (1 if o.get('stamps') else 0)})")
            self.cond("s_cmp_lg_u32", sWAVE, 0, "Lw0w", lambda: p.raw("s_waitcnt vmcnt(0)"))
        else:
            p.raw("s_waitcnt vmcnt(0)")
            p.vm_done = p.vm_seq
        for k in range(9):
            for i in range(2):
                p.ds_read("ds_read_b64_tr_b16", fr[k].sub(2 * i, 2), u[0], k * 1024 + i * 256)

        def lane_maps():
            g, n = u[1], u[3]
            p.valu("v_lshrrev_b32", g, 4, lane)
            p.valu("v_and_b32", n, 15, lane)
            p.valu("v_mul_u32_u24", self.vG, 192, n)
            p.valu("v_lshl_add_u32", self.vG, g, 4, self.vG)
            p.valu("v_lshlrev_b32", self.vBias, 5, g)
            p.valu("v_and_b32", self.vR, 0x2F, lane)
            p.valu("v_lshlrev_b32", self.vR, 4, self.vR)
            p.valu("v_and_b32", g, 1, g)
            p.valu("v_mul_u32_u24", n, 3072, g)
            p.valu("v_add_u32", self.vA[0], n, self.vR)
            p.valu("v_add_u32", self.vA[1], 0x10000, self.vA[0])
            p.valu("v_add_u32", self.vA[2], 0x20000, self.vA[0])
            p.valu("v_lshl_add_u32", self.vR, g, self.fsh, self.vR)
        if not self.g7:
            lane_maps()
        p.valu("v_mov_b32", u[1], CNT)
        p.valu("v_mov_b32", u[3], 1)
        for G in self.S3[:2]:
            for _, f in self.swaps(G.sub(0, 4), G.sub(4, 4)):
                f()
        p.wait_all(vm=False)
        p.raw("s_mov_b64 exec, 1")
        p.raw(f"ds_add_u32 {u[1]}, {u[3]} offset:8")
        p.raw("s_mov_b64 exec, -1")
        p.lgkm_seq += 1
        w = [V(228 + i) for i in range(4)]
        def to_f16(k):
            f, a, b = V(120 + k), w[2 * (k % 2)], w[2 * (k % 2) + 1]
            p.valu("v_lshlrev_b32", a, 16, f)
            p.valu("v_and_b32", b, 0xFFFF0000, f)
            p.valu("v_cvt_pk_f16_f32", f, a, b)
        ncv = o.get('ncv', 36)
        self.prio = 2
        for k in range(ncv):
            to_f16(k)
            if k % 12 == 11:
                self.poll_point(900 + k)
        p.valu("v_lshl_add_u32", u[0], lane, 4, sPRIV)
        for k, G in enumerate(self.S3[2:o.get('nsw', 2)]):
            for _, f in self.swaps(G.sub(0, 4), G.sub(4, 4)):
                f()
            if k % 4 == 3:
                self.poll_point(950 + k)
        for e in str(o.get('tb4', 'n')).split(','):
            if e != 'n':
                self.cond("s_cmp_eq_u32", sWAVE, 0, f"Ltb{e}", lambda: [self.touch(e[0], int(e[1]), w[0], (k, 2)) for k in range(2)])

        for i in range(3):
            p.valu("v_add_u32", w[i], 64 * i, lane)
            p.valu("v_mul_u32_u24", w[3], 2731, w[i])
            p.valu("v_lshrrev_b32", w[3], 16, w[3])
            p.valu("v_mul_u32_u24", w[3], 9216 - 96, w[3])
            p.valu("v_lshl_add_u32", w[i], w[i], 2, w[3])
            p.valu("v_add_u32", w[i], W2R, w[i])

        def helper():
            p.salu("s_cmp_ge_u32", S(2), 96)
            p.raw("s_cbranch_scc1 Lnohelp")
            p.salu("s_mov_b32", sROLE, 1)
            for r in rv:
                for i in range(4):
                    p.valu("v_mov_b32", r.sub(i), -1)
        if o.get('nred', 1) > 1:
            p.salu("s_sub_u32", sT0, sWAVE, 1)
            self.cond("s_cmp_ge_u32", sT0, o['nred'] - 1, "Lnohelp", helper)
        p.cond_begin()
        p.lines.append("Lspin:")
        p.salu("s_cmp_eq_u32", sROLE, 0)
        p.raw("s_cbranch_scc1 Lspinx")
        self.spin_guard("Lspinx")
        p.raw(f"s_call_b64 {sRET}, Lpoll")
        if o.get('bo'):
            p.raw(f"s_sleep {o['bo']}")
        p.raw("s_branch Lspin")
        p.lines.append("Lspinx:")
        p.cond_end()

        def finish():
            self.lds_spin(t[5], t[6], 8, 8, "rr")
            for i in range(3):
                p.ds_write("ds_write_b32", w[i], gv[i])
        self.cond("s_cmp_lg_u32", sWAVE, 0, "Lnofin", finish)
        p.raw("s_waitcnt lgkmcnt(0)")
        p.lgkm_done = p.lgkm_seq
        self.stamp(228)
        p.barrier()
        self.stamp(228)
        if o.get('hs', 0):
            ld = self.reload_ln(0, [self.LN[2].sub(4 * k, 4) for k in range(6)])
            for r in self.LN[2].regs():
                p.p_vm[r] = None
            self.cond("s_cmp_lg_u32", sWAVE, 0, "Lrl0w", lambda: [f() for f in ld])
        sc = [V(156, 4), V(160, 4), V(164, 4)]
        for k in range(3):
            p.ds_read("ds_read_b128", sc[k], u[2], 32 * k)
        if self.g7:
            lane_maps()
        p.wait_all(vm=False)
        for k in range(9):
            for i in range(4):
                if 4 * k + i >= ncv:
                    to_f16(4 * k + i)
            for i in range(4):
                p.valu("v_pk_mul_f16", fr[k].sub(i), fr[k].sub(i), sc[k // 3].sub(i))
            wb = o.get('wbits', 0)
            for r_ in (regs(fr[k]) if wb else []):
                p.valu("v_add_u32", r_, (1 << (wb - 1)) * 0x10001, r_)
                p.valu("v_and_b32", r_, (0xFFFF & ~((1 << wb) - 1)) * 0x10001, r_)
            tok = p.ds_write("ds_write_b128", u[0], fr[k], k * 1024)
        if self.g7:
            for k in range(12):
                T, b = k // 4, k % 2
                p.ds_read("ds_read_b128", V(120 + 4 * k, 4), self.vBias, (BT0 + 128 * T if T < 2 else BT1) + 16 * b)
        p.wait(lgkm=tok)
        self.pad('padb5')
        p.barrier()
        if o.get('x_rel'):
            p.raw("s_memrealtime s[100:101]")
            p.raw("s_waitcnt lgkmcnt(0)")
        self.stamp(228)

    def load_x1(self, dst, ti, k):
        p = self.p
        if k % 2:
            p.salu("s_add_u32", sT3, sTILE[ti], ROWB)
        if 'X' in self.o.get('x_no', ''):
            return
        if 'x' in self.o.get('x_lin', ''):
            p.buf_load("buffer_load_dwordx4", dst, self.vO, sX, sT3 if k % 2 else sTILE[ti], 128 * (k // 2), flags=self.o.get('xlf', ''))
            return
        p.buf_load("buffer_load_dwordx4", dst, self.vG, sX, sT3 if k % 2 else sTILE[ti], 64 * (k // 2), flags='nt' if f'{ti}{k // 2}' in str(self.o.get('xnt', '')).split(',') else '')

    def reload_ln(self, ti, dst):
        p = self.p
        if 'L' in self.o.get('x_no', '') and ti == 1:
            return []
        return [lambda k=k: self.ws_frag(6 * ti + (k & ~1), lambda so: p.buf_load(
            "buffer_load_dwordx4", dst[k], self.vR, sWS, so, 256 * (k & 1), flags=self.o.get('rlf', 'nt'))) for k in range(6)]

    def reload_map(self):
        p, lane = self.p, self.vLane
        p.valu("v_and_b32", self.vR, 0x2F, lane)
        p.valu("v_lshlrev_b32", self.vR, 4, self.vR)
        p.valu("v_bfe_u32", self.vBias, lane, 4, 1)
        p.valu("v_lshl_add_u32", self.vR, self.vBias, self.fsh, self.vR)

    def out_map(self):
        p = self.p
        p.valu("v_and_b32", self.vO, 1, self.vLane)
        p.valu("v_lshlrev_b32", self.vO, 7, self.vO)
        p.valu("v_sub_u32", self.vO, self.vG, self.vO)
        p.salu("s_mov_b32", sEV.sub(0), 0x55555555)
        p.salu("s_mov_b32", sEV.sub(1), 0x55555555)

    def early_loads(self):
        self.load_x1(V(240, 4), 3, self.po[0])
        self.load_x1(V(244, 4), 3, self.po[1])

    def gemm1_16(self, j, ln, y, need):
        p = self.p
        return [dict(reads=[self.frag(W1F + (j * 6 + u) * 1024 + 256 * b)], need=need,
                     emit=[(lambda w, u=u, b=b, r=r: p.mfma(y[2 * r + b], w, ln[2 * u + r], y[2 * r + b] if u else 0)) for r in range(2)])
                for u in range(3) for b in range(2)]

    def gemm2_16(self, j, users, tag=None):
        p = self.p
        items = []
        for T in range(3):
            for b in range(2):
                reads = [self.frag(W2R + (j * 6 + T) * 1024 + 256 * b)]
                if any(f for _, _, f in users):
                    reads.append(rd128(self.vBias, (BT0 + 128 * T if T < 2 else BT1) + 16 * b))
                em = []
                for acc, G, f in users:
                    for r in range(2):
                        d = acc[2 * T + r].sub(4 * b, 4)
                        em.append(lambda w, c=None, d=d, G=G, r=r, f=f: p.mfma(d, w, G.sub(4 * r, 4), c if f else d, 'f16'))
                items.append(dict(reads=reads, emit=em, tag=tag if (T, b) == (2, 1) else None))
        return items

    def resid_item(self, acc, k, x):
        p = self.p
        return dict(reads=[], emit=[(lambda b=b: p.mfma(acc[k].sub(4 * b, 4), self.id16.sub(2 - 2 * b, 4), x, acc[k].sub(4 * b, 4))) for b in range(2)])

    def ident16(self):
        p, lane, I = self.p, self.vLane, self.id16
        a, b = I.sub(0), I.sub(1)
        ops = [lambda: p.valu("v_and_b32", a, 1, lane),
               lambda: p.valu("v_lshlrev_b32", a, 4, a),
               lambda: p.valu("v_mov_b32", b, 0x3F80),
               lambda: p.valu("v_lshlrev_b32", a, a, b),
               lambda: p.valu("v_lshrrev_b32", b, 2, lane),
               lambda: p.valu("v_xor_b32", b, b, lane),
               lambda: p.valu("v_and_b32", b, 12, b),
               lambda: p.valu("v_and_b32", I.sub(4), 2, lane),
               lambda: p.valu("v_or_b32", b, b, I.sub(4)),
               lambda: (p.valu("v_cmp_eq_u32", "vcc", 0, b), p.valu("v_cndmask_b32", I.sub(2), 0, a, "vcc")),
               lambda: (p.valu("v_cmp_eq_u32", "vcc", 2, b), p.valu("v_cndmask_b32", I.sub(3), 0, a, "vcc"))]
        ops += [lambda i=i: p.valu("v_mov_b32", I.sub(i), 0) for i in (0, 1, 4, 5)]
        return [(4, f) for f in ops]

    def pack_row(self, acc, r, dst=None):
        p = self.p
        a = [acc[2 * T + r] for T in range(3)]
        X, Y, Z = dst or (a[0].sub(0, 4), a[1].sub(4, 4), a[2].sub(0, 4))
        q = "quad_perm:[1,0,3,2] row_mask:0xf bank_mask:0xf"
        ops = [(4, lambda v=v, i=i: p.valu("v_cvt_pk_bf16_f32", v.sub(i), v.sub(2 * i), v.sub(2 * i + 1))) for v in (a[1], a[0], a[2]) for i in range(4)]
        ops.append((0, lambda: p.salu("s_mov_b64", "vcc", sEV)))
        for i in range(4):
            ops.append((4, lambda i=i: p.valu("v_cndmask_b32_e64", Y.sub(i), a[0].sub(i), a[2].sub(i), sEV)))
            ops.append((4, lambda i=i: p.valu("v_cndmask_b32_dpp", X.sub(i), a[1].sub(i), a[0].sub(i), "vcc", mods=q)))
        ops.append((0, lambda: p.salu("s_not_b64", "vcc", sEV)))
        ops += [(4, lambda i=i: p.valu("v_cndmask_b32_dpp", Z.sub(i), a[1].sub(i), a[2].sub(i), "vcc", mods=q)) for i in range(4)]
        return ops, (X, Y, Z)

    def store_line(self, v, ti, r, k):
        p = self.p
        if 'O' in self.o.get('x_no', ''):
            return
        if r:
            p.salu("s_add_u32", sT3, sTILE[ti], ROWB)
        p.buf_store("buffer_store_dwordx4", v, self.vO, sOUT, sT3 if r else sTILE[ti], 128 * k, flags=self.o.get('osf1' if ti == 1 else 'osf', 'sc1'))

    def phase2(self):
        p, o = self.p, self.o
        S3, S2, J2 = self.S3, self.S2, self.J2
        hs = o.get('hs', 0)
        C2_ = [] if hs else [j for j in range(12) if j not in J2]
        half = lambda v: [v.sub(0, 4), v.sub(4, 4)]
        A = [V(120 + 8 * i, 8) for i in range(6)]
        kl = self.kl
        g7 = self.g7
        assert not g7 or (kl and not hs)
        st2 = [S2[j] for j in J2] + S3[6 - kl + g7:6]
        xs = half(S3[g7]) + half(S3[1 + g7]) + half(st2[6])
        self.id16 = S3[2 + g7].sub(0, 6)
        R0 = [x for v in self.KL + S3[3 + g7:6 - kl + g7] for x in half(v)]
        B = S3[6:12]
        Y = half(st2[0]) + half(st2[1])
        W = regs(st2[2], st2[3], st2[4].sub(0, 4))
        G = st2[5]
        d2 = o.get('d2', 0) and not hs
        GG = [G, st2[6]] if d2 else [G, G]
        ext = half(st2[7])
        ring0 = self.ring2[:2] + (half(S3[0]) if g7 else [V(240, 4), V(244, 4)])
        ring3 = ring0 + ext
        R1 = [self.LN[2].sub(4 * k, 4) for k in range(6)]
        self.ge = Gelu(self, W, sK, sM, 0)
        seq = [(2, j) for j in C2_] + [(0, j) for j in ints(o.get('o0j', '0,1,2,4,3,5,6,7,8,9,10,11'))] + [(1, j) for j in range(12)]
        NE = len(seq)
        pre = [seg() for _ in range(10)]
        for j in range(12):
            pre[j // 2]['mf'] += self.gemm2_16(j, [(A, S3[j], j == 0 and not g7)])
        if g7:
            r00 = ring0[:2]
            for it in pre[0]['mf'][:6]:
                it['reads'][0]['ring'] = r00
            pre[0]['free_from'] = {v.b: 5 for v in ring0[2:]}
        for k, j in enumerate(J2):
            pre[(6, 6, 7, 7, 8, 8, 8, 9)[k]]['mf'] += self.gemm2_16(j, [(B, S2[j], k == 0)])
        for j in range(o.get('nsw', 2), 12):
            pre[j // 2 - 1]['fill'] += self.swaps(*half(S3[j]))
        for k, j in enumerate(J2):
            pre[(5, 5, 4, 3, 7, 7, 7, 8)[k]]['fill'] += self.swaps(*half(S2[j]))
        if hs:
            HB = S3[3:6] + [st2[6]]
            rl = [lambda k=k: self.ws_frag(12 + (k & ~1), lambda so: p.buf_load(
                "buffer_load_dwordx4", HB[k // 2].sub(4 * (k & 1), 4), self.vR, sWS, so, 256 * (k & 1), flags=o.get('rlf', 'nt'))) for k in range(8)]
            pre[9]['vm'] += rl[6:]
            R0, R1 = R1, R0
        else:
            for k in range(3):
                pre[(0, 1, 5)[k]]['fill'] += self.swaps(R1[2 * k], R1[2 * k + 1])
            for k in range(kl):
                pre[(6, 8, 8)[k]]['fill'] += self.swaps(R0[2 * k], R0[2 * k + 1])
            rl = self.reload_ln(0, R0)[2 * kl:]
        pre[2 + g7]['vm'] += rl[:2]
        for k in range(2, 6 - 2 * kl):
            pre[int(o.get('rl0', 3 + g7) + (k - 2) * o.get('rl0s', 0.5))]['vm'].append(rl[k])
        pre[2]['fill'] += self.ident16()
        pre[5]['pre'].append(self.out_map)
        g1 = self.gemm1_16(seq[0][1], R0 if hs else R1, Y, 0)
        for k in range(2):
            m = pre[7 + k]['mf']
            pre[7 + k]['mf'] = [x for i in range(3) for x in m[4 * i:4 * i + 2] + [g1[3 * k + i]] + m[4 * i + 2:4 * i + 4]] + m[12:]
        NP = NE + 2
        P = [seg() for _ in range(NP)]
        P[0] = pre.pop()
        for s in pre + P:
            s['cl'] = 1
        acc = {2: B, 0: A, 1: B, 3: A}
        lns = {2: R1, 0: R0, 1: R1}
        nds = ints(o.get('nd2', '5'))
        yl = regs(*Y)
        ex = [[] for _ in range(NP)]
        late = []
        for s in range(NP):
            S_ = P[s]
            a = self.gemm1_16(seq[s + 1][1], lns[seq[s + 1][0]], Y, 8) if s + 1 < NE else []
            b = list(S_['mf'])
            if 1 <= s <= NE:
                ti, j = seq[s - 1]
                users = [(acc[ti], GG[(s - 1) % 2], ti != 2 and (s == 1 or seq[s - 2][0] != ti))]
                if hs and ti == 0 and j < 4:
                    users.append((B, HB[j], False))
                b = self.gemm2_16(j, users, 'g')
            if s < NE and d2:
                S_['fill'], mk, late = self.period_def(W, yl, 5, regs(GG[s % 2]), s % 2, late, now=s == NE - 1, ph=2)
                if s:
                    for it in b:
                        it['mark'] = mk
            elif s < NE:
                S_['fill'] = self.period_fill(yl, 6 if s in ints(o.get('nd6', 'n' if hs else f'0,{7 + kl - g7},{12 + kl - g7},{19 + kl - g7},{24 + kl - g7}')) else nds[s % len(nds)], G=regs(G), tag='g' if s else None, ph=2)
            S_['ab'] = (a, b)
            S_['tail'] = o.get('t2', 0 if d2 else 32)
            if d2 and 1 <= s < NE:
                S_['head'] = o.get('h2', 32)
        n2 = len(C2_)
        allseg = pre + P
        base = len(pre)
        minl = o.get('minl', 2)
        xs += [st2[4].sub(4, 4)] + R0
        avail = {0: -8, 1: -8, 2: -8, 3: -8, 4: 0, 5: 0, 6: 0}
        avail.update({7 + k: n2 + 11 for k in range(6)})
        hat = {j: seq.index((0, j)) + 1 for j in range(4)}
        if hs:
            avail[4] = avail[5] = hat[3] + 1
        if d2:
            del avail[4], avail[5]
        if kl - g7 == 2:
            avail[4] = avail[5] = -6
        if g7:
            avail[2] = avail[3] = -7
        kl -= g7
        done = {}
        gl, gu = o.get('gl', 1), o.get('gu', 1)
        po = self.po
        want = [(-8, -6 + i // 2, 3, k) for i, k in enumerate(po)]
        rest = []
        for ti, d in (((2, '-4,0.8,1,1'), (0, '7,1.4,12,1.3'), (1, '15,1.1,19,1')) if hs else ((2, f'-4,0.8,{1 + kl},1'), (0, f'{10 + kl},1.6,{16 + kl},1.4'), (1, f'{19 + kl},1.1,{23 + kl},1'))):
            l0, ls_, u0, us = flts(o.get(f'x{ti}', d))
            rest += [(math.floor(l0 + (i - i % gl) * ls_), math.floor(u0 + (i - i % gu) * us), ti, k) for i, k in enumerate(po)]
        want += sorted(rest, key=lambda w: w[:3])
        log = []
        for i, (at, s, ti, k) in enumerate(want):
            if True:
                ok = [b_ for b_ in avail if avail[b_] <= at]
                bi = max(ok, key=lambda b_: (avail[b_], b_)) if ok else min(avail, key=lambda b_: (avail[b_], b_))
                at = max(avail[bi], at)
                s = max(s, at + minl)
                f = lambda buf=xs[bi], ti=ti, k=k: self.load_x1(buf, ti, k)
                vm = allseg[base + at]['vm']
                if gl > 1 and log and log[-1][0] == ti and log[-1][2] == at and i > 2:
                    vm[-1] = (lambda f0=vm[-1], f=f: (f0(), f()))
                else:
                    vm.append(f)
            it = self.resid_item(acc[ti], k, xs[bi])
            (allseg[base + s]['mf'] if s < 0 else ex[s]).append(it)
            avail[bi] = s + 1
            done[(ti, k)] = s
            log.append((ti, k, at, s))
        if o.get('show'):
            print('x (tile, piece, load, use)', log)
        first = {3: -9, 2: -3, 0: n2 + 1, 1: n2 + 13}
        assert all(done[(ti, k)] > first[ti] for ti, k in done), done
        last = {3: -4, 2: max(hat.values()) if hs else n2, 0: n2 + 12, 1: NE}
        free = {3: n2, 2: n2 + 12, 0: NP - 1, 1: NP - 1}
        r1_free = [hat[k // 2] + 1 for k in range(6)] if hs else [n2 - 1] * 6
        olog = []
        for ti, d in (((3, '-3,0.7'), (2, '6,1.3'), (0, '15,1.7'), (1, '25,0')) if hs else ((3, '-3,1'), (2, f'{7 + kl},1.8'), (0, f'{19 + kl},1.7'), (1, f'{29 + kl},0'))):
            o0, st = flts(o.get(f'o{ti}', d))
            for r in range(2):
                ts = [math.floor(o0 + (3 * r + k) * st) for k in range(3)]
                s = min(max([ts[0], last[ti] + 1] + [done[(ti, 2 * T + r)] + 1 for T in range(3)]), free[ti])
                ts = [max(t_, s) for t_ in ts]
                dst = None
                if ts[2] > free[ti]:
                    assert ti == 3 and s >= n2 - 1 and not hs
                    dst = R1[3 * r:3 * r + 3]
                    r1_free[3 * r:3 * r + 3] = [t_ + 1 for t_ in ts]
                ops, V3 = self.pack_row(acc[ti], r, dst)
                for k in range(3):
                    f = lambda v=V3[k], ti=ti, r=r, k=k: self.store_line(v, ti, r, k)
                    if ts[k] == s:
                        ops.append((0, lambda f=f: self.gq.append(f)))
                    else:
                        allseg[base + ts[k]]['vm'].append(f)
                olog.append((ti, r, s, ts))
                if s < 0:
                    allseg[base + s]['fill'] += ops
                    allseg[base + s]['head'] = -24
                elif s < NE:
                    f = P[s]['fill']
                    assert not P[s].get('packed')
                    P[s]['packed'] = True
                    cut = next((i for i, x in enumerate(f) if len(x) > 2), len(f) - 8)
                    P[s]['fill'] = f[:8] + merge(f[8:cut - 4], ops) + f[cut - 4:]
                else:
                    P[s]['fill'] += ops + [(0, self.flush)]
        if o.get('show'):
            print('out (tile, row, pack, stores)', olog)
        for k, f in enumerate(self.reload_ln(1, R1)):
            t_ = max(int(o.get('rl1', 2 if hs else 3 + kl) + k * o.get('rl1s', 1)), r1_free[k])
            assert t_ <= n2 + 9
            P[t_]['vm'].append(f)
        for s in range(NP):
            a, b = P[s].pop('ab')
            src = {'a': a, 'b': b, 'x': ex[s]}
            P[s]['mf'] = [src[c].pop(0) for c in ((o.get('ord', 'aaxaaxaabbbbbb') if d2 and s else 'bbabxababbxaaa') + 'x' * 6) if src[c]]
            if d2 and s == 0:
                P[s]['tail'] = 32
            assert not any(src.values())
            if s == NE and o.get('rf', 1):
                its = [it for it in P[s]['mf'] if it['reads']]
                keep = []
                A_ = dict(reads=[it['reads'][0] for it in its], tag='r0',
                          emit=[(lambda *w, k=k, it=it: (keep.append(w[k]), it['emit'][0](w[k]))) for k, it in enumerate(its)])
                B_ = dict(reads=[], emit=[(lambda k=k, it=it: it['emit'][1](keep[k])) for k, it in enumerate(its)])
                P[s]['mf'] = [it for it in P[s]['mf'] if not it['reads']] + [A_, B_]
                f = P[s + 1]['fill']
                h = next(i for i, x in enumerate(f) if x[1] == self.flush) + 1
                P[s]['fill'] += [x + ('r0',) for x in f[:h]]
                P[s + 1]['fill'] = f[h:]
                P[s]['tail'] = 0
            if s >= 1:
                P[s]['ring'] = ring3
        n_pre = sum(len(s['mf']) for s in pre + P[:1])
        for s in P[1:]:
            s['free_from'] = {v.b: n_pre - 1 for v in ext}
        self.touches(allseg, o.get('t2s', 'n'), S3[2 + g7].sub(7), base)
        for k in ints(o.get('ca2', 'n')):
            P[k]['end'].append(lambda k=k: self.code_again(W[0], f'b{k}'))
        lc = o.get('lc2', 3)
        for a in range(o.get('l2a', 0), NP - o.get('l2e', 8), lc):
            self.ladder(P, a, a + lc, flts(o.get('pf2', '0,0.4,0.7,0.9')))
        for k in ints(o.get('ssp', '0,6,12,18,24' if o.get('dbg') else '0,3,6,10,14,18,22,24')):
            P[k]['end'].append(self.sstamp)
        p.raw(f"s_setprio {o.get('pp', 3)}")
        p.lds_age = o.get('age2', 24)
        self.imm = o.get('imm2', 99)
        self.run(allseg, ring0)
        if o.get('stamps'):
            p.raw('s_waitcnt vmcnt(0)')
        self.stamp(96)
        self.sstamp_flush(100)
        self.mark_flush()
        self.pad('padend')

    def build(self):
        self.alloc()
        self.vW1g, self.vW1r, self.vW1w = V(189), V(190), V(191)
        self.p.lines.append("Lmain:")
        self.prologue()
        self.phase1()
        self.gap()
        self.phase2()
        self.p.raw("s_endpgm")
        self.poll_routine()
        self.p.lines.append("Lend:")
        self.p.raw("s_endpgm")
        return self.p


HEADER = open('standalone__modern_conv_block_convnext_v2__vision.s.ref').read().split('; Override launch')[0]


def wrap(p):
    return f"""{HEADER}; Generated by gen/gen2.py (hand-written generator; see gen/asmgen.py, gen/engine.py, gen/gelu.py)
; One persistent grid (one 32x32-pixel block per workgroup): conv (sparse MFMA) -> LayerNorm -> GEMM1 -> GELU -> sum of squares,
; grid reduction through d_ws (sentinel-tagged words, counters in d_debug), then GEMM1 -> GELU -> GEMM2 with the GRN scale folded into W2.
; GELU(tanh) = h / (1 + exp2(c2*h + c1*h^3)): evaluated with f16 exp / rcp, or looked up in an LDS table that the kernel fills with the
; @launch grid=(256,1,1) block=(512,1,1) lds={LDS_BYTES}
.amdgcn_target "amdgcn-amd-amdhsa--gfx950"
.text
.globl {NAME}
.p2align 8
.type {NAME},@function
{NAME}:
{p.text()}
.section .rodata,"a"
.p2align 6
.amdhsa_kernel {NAME}
  .amdhsa_next_free_vgpr 256
  .amdhsa_next_free_sgpr 102
  .amdhsa_accum_offset 256
  .amdhsa_group_segment_fixed_size 0
  .amdhsa_kernarg_size 72
  .amdhsa_user_sgpr_count 2
  .amdhsa_user_sgpr_kernarg_segment_ptr 1
  .amdhsa_system_sgpr_workgroup_id_x 1
.end_amdhsa_kernel
"""


def generate(out, args):
    opt = {}
    for a in args:
        k, v = a.split('=')
        try:
            opt[k] = int(v)
        except ValueError:
            try:
                opt[k] = float(v)
            except ValueError:
                opt[k] = v
    g = Gen(opt)
    p = g.build()
    from align import align_dp
    al = align_dp(p.lines, opt.get('wcost', 0.2), opt.get('ncost', 0)) if opt.get('al', 0) else None
    open(out, 'w').write(wrap(p))
    print(out, 'align', al, 'instructions', sum(p.stats.values()), 'stamps', g.nstamp,
          {k: v for k, v in p.stats.items() if k in ('s_nop', 's_waitcnt', 'ds_read_b128') or 'mfma' in k})


if __name__ == '__main__':
    generate(sys.argv[1], sys.argv[2:])
```
